```python
import torch

def _softmax(x, axis=-1):
    return torch.softmax(x, dim=axis)
def _gelu(x):
    return torch.nn.functional.gelu(x, approximate="tanh")
def _silu(x):
    return torch.nn.functional.silu(x)
def _sigmoid(x):
    return torch.sigmoid(x)
def _layernorm(x, axis=-1, eps=1e-5):
    m = x.mean(dim=axis, keepdim=True)
    v = x.var(dim=axis, keepdim=True, unbiased=False)
    return (x - m) / torch.sqrt(v + eps)
def _scatter_add(tgt, idx, src, axis=0):
    return tgt.clone().index_add_(axis, idx, src)
def _segment_sum(src, seg, n):
    out = torch.zeros((n,) + src.shape[1:], dtype=src.dtype)
    return out.index_add_(0, seg, src)
def _pad(x, pw):
    flat = tuple(v for pair in reversed(pw) for v in pair)
    return torch.nn.functional.pad(x, flat)

kernel_name = 'interleave_layers__sliding_local_dilated__glu_gated_glu__prompt'

def setup_inputs():

    _w = (lambda a: (lambda t: t.to(torch.bfloat16) if t.is_floating_point() else t)(torch.as_tensor(a)))
    def _A_setup():
        B, S, D = 1, 2048, 512
        return {
            "x": _w((lambda *s: torch.randn(*s, dtype=torch.bfloat16) * 0.05)(B, S, D)),
            "wqkv": _w((lambda *s: torch.randn(*s, dtype=torch.bfloat16) * 0.05)(D, 3 * D)),
            "wo": _w((lambda *s: torch.randn(*s, dtype=torch.bfloat16) * 0.05)(D, D)),
        }
    _A_in = _A_setup()

    def _B_setup():
        B, S, D, F = 1, 2048, 512, 1376
        return {
            "x": _w((lambda *s: torch.randn(*s, dtype=torch.bfloat16) * 0.05)(B, S, D)),
            "w_gate": _w((lambda *s: torch.randn(*s, dtype=torch.bfloat16) * 0.05)(D, F)),
            "w_up": _w((lambda *s: torch.randn(*s, dtype=torch.bfloat16) * 0.05)(D, F)),
            "w_down": _w((lambda *s: torch.randn(*s, dtype=torch.bfloat16) * 0.05)(F, D)),
        }
    _B_in = _B_setup()

    return {
        "A_x": _A_in["x"],
        "A_wqkv": _A_in["wqkv"],
        "A_wo": _A_in["wo"],
        "B_x": _B_in["x"],
        "B_w_gate": _B_in["w_gate"],
        "B_w_up": _B_in["w_up"],
        "B_w_down": _B_in["w_down"],
    }

def reference(A_x, A_wqkv, A_wo, B_x, B_w_gate, B_w_up, B_w_down):
    def _A_ref(x, wqkv, wo):
        B, S, D = x.shape
        H = 32; Dh = D // H
        W, dil = 8, 2
        qkv = (lambda x, *d: x.permute(*d))((x @ wqkv).reshape(B, S, 3, H, Dh), 2, 0, 3, 1, 4)
        q, k, v = qkv[0], qkv[1], qkv[2]
        scale = Dh ** -0.5
        pos = torch.arange(S)
        off = torch.arange(W) * dil
        idx = pos[:, None] - off[None, :]
        mask = idx >= 0
        idx_c = torch.where(mask, idx, 0).reshape(-1)
        kg = k[:, :, idx_c, :].reshape(B, H, S, W, Dh)
        vg = v[:, :, idx_c, :].reshape(B, H, S, W, Dh)
        logits = torch.einsum("bhsd,bhswd->bhsw", q, kg) * scale
        logits = torch.where(mask[None, None, :, :], logits, -1e9)
        attn = _softmax(logits, axis=-1)
        o = torch.einsum("bhsw,bhswd->bhsd", attn, vg)
        return (lambda x, *d: x.permute(*d))(o, 0, 2, 1, 3).reshape(B, S, D) @ wo

    def _B_ref(x, w_gate, w_up, w_down):
        g = torch.einsum("bsd,df->bsf", x, w_gate)
        u = torch.einsum("bsd,df->bsf", x, w_up)
        h = _sigmoid(g) * u
        return torch.einsum("bsf,fd->bsd", h, w_down)

    x = A_x
    x = x + _A_ref(_layernorm(x, axis=-1), A_wqkv, A_wo)
    x = x + _B_ref(_layernorm(x, axis=-1), B_w_gate, B_w_up, B_w_down)
    x = x + _A_ref(_layernorm(x, axis=-1), A_wqkv, A_wo)
    x = x + _B_ref(_layernorm(x, axis=-1), B_w_gate, B_w_up, B_w_down)
    return x
```

```python
import re

class Reg:
    __slots__ = ("k", "i", "n")
    def __init__(self, k, i, n=1):
        self.k, self.i, self.n = k, i, n
    def __getitem__(self, x):
        if isinstance(x, slice):
            a = x.start or 0
            b = self.n if x.stop is None else x.stop
            assert 0 <= a < b <= self.n, (self, x)
            return Reg(self.k, self.i + a, b - a)
        assert 0 <= x < self.n, (str(self), x)
        return Reg(self.k, self.i + x, 1)
    def __str__(self):
        return "%s%d" % (self.k, self.i) if self.n == 1 else "%s[%d:%d]" % (self.k, self.i, self.i + self.n - 1)
    __repr__ = __str__
    def regs(self):
        return [(self.k, self.i + j) for j in range(self.n)]
    def __len__(self): return self.n

def V(i, n=1): return Reg("v", i, n)
def A(i, n=1): return Reg("a", i, n)
def S(i, n=1): return Reg("s", i, n)

class Pool:
    def __init__(self, kind, lo, hi):
        self.kind, self.lo, self.hi = kind, lo, hi
        self.used = {}
        self.high = lo
    def alloc(self, n=1, align=None, name="?"):
        if align is None:
            align = 1 if n == 1 else (2 if self.kind != "s" else (2 if n == 2 else 4))
        i = (self.lo + align - 1) // align * align
        while i + n <= self.hi:
            if all((i + j) not in self.used for j in range(n)):
                for j in range(n): self.used[i + j] = name
                self.high = max(self.high, i + n)
                return Reg(self.kind, i, n)
            i += align
        raise RuntimeError("out of %s regs for %s (n=%d); used=%d" % (self.kind, name, n, len(self.used)))
    def free(self, *rs):
        for r in rs:
            if isinstance(r, (list, tuple)):
                self.free(*r); continue
            for (_, i) in r.regs():
                del self.used[i]

_SPECIAL = {"vcc": [("s", 106), ("s", 107)], "vcc_lo": [("s", 106)], "vcc_hi": [("s", 107)],
            "exec": [("s", 126), ("s", 127)], "m0": [("s", 124)], "scc": [("s", 200)]}
_RE = re.compile(r"^(-|\|)?([vas])(\d+|\[(\d+):(\d+)\])\|?$")
def regs_of(x):
    if isinstance(x, Reg): return x.regs()
    if isinstance(x, (int, float)): return []
    t = str(x).strip()
    if t.startswith("-"): t2 = t[1:]
    else: t2 = t
    if t2.startswith("abs(") : t2 = t2[4:-1]
    if t2 in _SPECIAL: return list(_SPECIAL[t2])
    m = _RE.match(t2)
    if m:
        k = m.group(2)
        if m.group(4) is not None: return [(k, j) for j in range(int(m.group(4)), int(m.group(5)) + 1)]
        return [(k, int(m.group(3)))]
    return []

TRANS = ("v_exp_f32", "v_log_f32", "v_rcp_f32", "v_rsq_f32", "v_sqrt_f32", "v_sin_f32", "v_cos_f32", "v_rcp_iflag_f32")
class Ins:
    __slots__ = ("op", "ops", "mods", "defs", "uses", "kind", "token", "cmt", "label", "target", "need")
    def __init__(self, op, ops=(), mods="", token=None, cmt=None):
        self.op, self.ops, self.mods, self.token, self.cmt = op, list(ops), mods, token, cmt
        self.label = None; self.target = None; self.need = None
        self.classify()
    def classify(self):
        op, o = self.op, self.ops
        d, u = [], []
        R = regs_of
        k = "other"
        if op == "label" or op == "need" or op == "raw":
            k = op
        elif op.startswith("v_mfma"):
            k = "mfma"; d = R(o[0]); u = R(o[1]) + R(o[2]) + R(o[3])
        elif op.startswith("v_"):
            k = "trans" if any(op.startswith(t) for t in TRANS) else "valu"
            if op.startswith("v_cmp"):
                d = R(o[0]); u = sum((R(x) for x in o[1:]), [])
                if op.startswith("v_cmpx"): d += R("exec")
            elif op.startswith("v_permlane16_swap") or op.startswith("v_permlane32_swap"):
                d = R(o[0]) + R(o[1]); u = list(d); k = "permlane"
            elif op.startswith(("v_add_co", "v_sub_co", "v_addc_co", "v_subb_co", "v_subrev_co")):
                d = R(o[0]) + R(o[1]); u = sum((R(x) for x in o[2:]), [])
            elif op.startswith(("v_fmac", "v_dot2c", "v_pk_fmac", "v_mac")):
                d = R(o[0]); u = sum((R(x) for x in o), [])
            elif op.startswith("v_cndmask") and len(o) == 3:
                d = R(o[0]); u = R(o[1]) + R(o[2]) + R("vcc")
            else:
                d = R(o[0]); u = sum((R(x) for x in o[1:]), [])
            if "_dpp" in op or "row_" in self.mods or "quad_perm" in self.mods:
                u += R(o[0]); k = "dpp"
            if op.startswith("v_readfirstlane") or op.startswith("v_readlane"): k = "readlane"
            u += R("exec")
        elif op.startswith("ds_"):
            k = "ds"
            if op.startswith(("ds_read", "ds_bpermute", "ds_permute", "ds_swizzle")):
                d = R(o[0]); u = sum((R(x) for x in o[1:]), [])
            else:
                u = sum((R(x) for x in o), [])
        elif op.startswith(("buffer_", "global_")):
            k = "vmem"
            lds = " lds" in (" " + self.mods) or "load_lds" in op
            if op in ("buffer_wbl2", "buffer_inv"):
                pass
            elif "load" in op and not lds:
                d = R(o[0]); u = sum((R(x) for x in o[1:]), [])
            elif "atomic" in op and "sc0" in self.mods:
                d = R(o[0]); u = sum((R(x) for x in o), [])
            else:
                u = sum((R(x) for x in o), [])
                if lds: u += R("m0")
        elif op.startswith("s_"):
            k = "salu"
            if op.startswith(("s_load", "s_buffer_load", "s_memtime", "s_memrealtime")):
                k = "smem"; d = R(o[0]); u = sum((R(x) for x in o[1:]), [])
            elif op.startswith(("s_cmp", "s_bitcmp")):
                d = R("scc"); u = sum((R(x) for x in o), [])
            elif op.startswith(("s_cbranch", "s_branch")):
                k = "branch"; self.target = o[0]
                if "scc" in op: u = R("scc")
                if "vcc" in op: u = R("vcc")
                if "exec" in op: u = R("exec")
            elif op in ("s_waitcnt", "s_barrier", "s_nop", "s_sleep", "s_setprio", "s_endpgm", "s_sethalt"):
                k = op
            elif op.startswith("s_cselect"):
                d = R(o[0]); u = R(o[1]) + R(o[2]) + R("scc")
            elif op.startswith(("s_addc", "s_subb")):
                d = R(o[0]) + R("scc"); u = R(o[1]) + R(o[2]) + R("scc")
            elif "saveexec" in op:
                d = R(o[0]) + R("exec") + R("scc"); u = R(o[1]) + R("exec")
            elif op.startswith(("s_mov", "s_movk", "s_getreg", "s_mul_i32", "s_mul_hi", "s_getpc")):
                d = R(o[0]); u = sum((R(x) for x in o[1:]), [])
            else:
                d = R(o[0]) + R("scc"); u = sum((R(x) for x in o[1:]), [])
        self.kind, self.defs, self.uses = k, d, u
    def text(self):
        if self.op == "label": return "%s:" % self.label
        if self.op == "raw": return self.ops[0]
        if self.op == "need": return "; need %s" % (self.need,)
        s = "  " + self.op
        if self.ops: s += " " + ", ".join(str(x) for x in self.ops)
        if self.mods: s += " " + self.mods
        if self.cmt: s += " ; " + self.cmt
        return s
    def is_store(self): return self.kind == "vmem" and ("store" in self.op or ("atomic" in self.op))
    def passes(self):
        if "16x16x32" in self.op or "16x16x16" in self.op: return 4
        if "32x32x16" in self.op or "32x32x8" in self.op: return 8
        raise ValueError(self.op)

class Prog:
    def __init__(self):
        self.ins = []
        self._lab = 0
    def __call__(self, op, *ops, mods="", token=None, cmt=None):
        i = Ins(op, ops, mods, token, cmt); self.ins.append(i); return i
    def label(self, name):
        i = Ins("label"); i.label = name; self.ins.append(i); return i
    def newlabel(self, base="L"):
        self._lab += 1; return "%s_%d" % (base, self._lab)
    def need(self, *tokens):
        i = Ins("need"); i.need = tokens; self.ins.append(i)
    def raw(self, t): self.ins.append(Ins("raw", [t]))
    def extend(self, lst): self.ins.extend(lst)
    def take(self):
        l = self.ins; self.ins = []; return l

class WState:
    def __init__(self):
        self.p = {}
        self.smem = False
    def copy(self):
        w = WState(); w.p = {k: list(v) for k, v in self.p.items()}; w.smem = self.smem; return w
    def merge(self, o):
        for k, v in o.p.items():
            if k in self.p: self.p[k][1] = min(self.p[k][1], v[1])
            else: self.p[k] = list(v)
        self.smem = self.smem or o.smem
    def issue(self, cnt, keys):
        for k, v in self.p.items():
            if v[0] == cnt: v[1] += 1
        for k in keys: self.p[k] = [cnt, 0]
    def retire(self, cnt, n):
        for k in [k for k, v in self.p.items() if v[0] == cnt and v[1] >= n]: del self.p[k]

def parse_wait(i):
    vm = lg = None
    t = " ".join(str(x) for x in i.ops) + " " + i.mods
    m = re.search(r"vmcnt\((\d+)\)", t);  vm = int(m.group(1)) if m else None
    m = re.search(r"lgkmcnt\((\d+)\)", t); lg = int(m.group(1)) if m else None
    return vm, lg

def insert_waits(ins, check_only=False, entry=None, capture=None):
    out = []
    captured = {}
    st = entry.copy() if entry else WState()
    pend_lab = {}
    dead = False
    errs = []
    for i in ins:
        if i.op == "label":
            if i.label in pend_lab:
                o = pend_lab.pop(i.label)
                if dead: st = o
                else: st.merge(o)
            dead = False
            out.append(i); continue
        if i.op == "raw":
            out.append(i); continue
        need_vm, need_lg = None, None
        keys = []
        if i.op == "need": keys = [("tok", t) for t in i.need]
        else: keys = list(i.uses) + list(i.defs)
        for k in keys:
            if k in st.p:
                c, a = st.p[k]
                if c == "vm": need_vm = a if need_vm is None else min(need_vm, a)
                elif c == "lg": need_lg = a if need_lg is None else min(need_lg, a)
                elif c == "sm": need_lg = 0
        if need_lg is not None and st.smem: need_lg = 0
        if need_vm is not None or need_lg is not None:
            if check_only:
                errs.append("missing wait before: %s (vm %s lg %s)" % (i.text(), need_vm, need_lg))
            parts = []
            if need_vm is not None:
                n = min(need_vm, 63); parts.append("vmcnt(%d)" % n); st.retire("vm", n)
            if need_lg is not None:
                n = min(need_lg, 15); parts.append("lgkmcnt(%d)" % n); st.retire("lg", n)
                if n == 0: st.retire("sm", 0); st.smem = False
            if not check_only: out.append(Ins("s_waitcnt", [" ".join(parts)]))
        if i.op == "need":
            out.append(i); continue
        if i.op == "s_waitcnt":
            vm, lg = parse_wait(i)
            if vm is not None: st.retire("vm", vm)
            if lg is not None:
                st.retire("lg", lg)
                if lg == 0: st.retire("sm", 0); st.smem = False
        elif i.kind == "vmem":
            if i.op not in ("buffer_wbl2x",):
                ks = list(i.defs)
                if i.token: ks.append(("tok", i.token))
                st.issue("vm", ks)
        elif i.kind == "ds":
            ks = list(i.defs)
            if i.token: ks.append(("tok", i.token))
            st.issue("lg", ks)
        elif i.kind == "smem":
            for k in i.defs: st.p[k] = ["sm", 0]
            st.smem = True
        out.append(i)
        if i.kind == "branch" and capture and i.target == capture: captured["st"] = st.copy()
        if i.kind == "branch":
            if i.target in pend_lab: pend_lab[i.target].merge(st)
            else: pend_lab[i.target] = st.copy()
            if i.op == "s_branch": dead = True
    if check_only: return errs, captured.get('st')
    return out

def insert_nops(ins, check_only=False):
    out = []
    errs = []
    hist = []
    pend = {}
    dead = False
    def required(i):
        need = 0
        us, ds = set(i.uses), set(i.defs)
        for dist, p in hist:
            pd = set(p.defs)
            r = 0
            vd = {x for x in pd if x[0] in "va"}
            sd = {x for x in pd if x[0] == "s"}
            pk = p.kind
            isvalu = pk in ("valu", "trans", "dpp", "permlane", "readlane")
            if isvalu:
                if i.kind == "mfma" and vd & us: r = max(r, 2)
                if i.kind == "permlane" and vd & us: r = max(r, 2)
                if i.kind == "dpp" and vd & us: r = max(r, 2)
                if i.kind == "readlane" and vd & us: r = max(r, 1)
                if pk == "trans" and i.kind in ("valu", "dpp", "permlane", "readlane", "mfma", "ds", "vmem") and vd & us: r = max(r, 1)
                if sd:
                    if i.kind == "vmem" and sd & us: r = max(r, 5)
                    if i.kind in ("valu", "trans", "dpp", "permlane", "readlane", "mfma") and (sd & us):
                        r = max(r, 4 if i.kind == "readlane" else 2)
                        if ("s", 126) in sd: r = max(r, 5 if i.kind == "dpp" else 4)
                    if i.kind in ("salu", "branch", "smem") and sd & us: r = max(r, 4)
                if p.op.startswith("v_dot") and vd & (us | ds):
                    if i.op == p.op:
                        if vd & (set(regs_of(i.ops[1])) | set(regs_of(i.ops[2]))): r = max(r, 3)
                    else: r = max(r, 3)
                if ("op_sel" in p.mods or "sdwa" in p.op) and vd & us and i.kind in ("valu", "trans", "dpp"): r = max(r, 1)
            if pk == "mfma":
                ps = p.passes()
                full = {4: 8, 8: 12}[ps]
                if vd & (us | ds):
                    if i.kind == "mfma":
                        c = set(regs_of(i.ops[3])); ab = set(regs_of(i.ops[1])) | set(regs_of(i.ops[2]))
                        if vd & ab: r = max(r, full)
                        if vd & c:
                            if c == vd and i.passes() == ps: pass
                            else: r = max(r, {4: 6, 8: 10}[ps])
                        if (vd & set(i.defs)) and not (c == vd): r = max(r, full)
                    else:
                        r = max(r, full)
                pc = set(regs_of(p.ops[3]))
                if i.kind in ("valu", "trans", "dpp", "permlane") and pc & ds: r = max(r, {4: 3, 8: 7}[ps])
            if pk == "salu" and ("s", 124) in sd and i.kind in ("vmem", "ds") and ("s", 124) in us: r = max(r, 1)
            if pk == "salu" and ("s", 126) in sd and i.kind == "dpp": r = max(r, 1)
            if pk == "vmem" and p.is_store() and ("x4" in p.op or "x3" in p.op):
                data = set(regs_of(p.ops[0])) if p.op.startswith("buffer") else set(regs_of(p.ops[1]))
                if data & ds and i.kind in ("valu", "trans", "dpp", "permlane", "mfma"): r = max(r, 2)
            if r > dist: need = max(need, r - dist)
        return need
    def age(n):
        for h in hist: h[0] += n
        while hist and hist[0][0] > 24: hist.pop(0)
    for i in ins:
        if i.op == "label":
            if i.label in pend:
                o = pend.pop(i.label)
                if dead: hist = o
                else:
                    hist = sorted(hist + o, key=lambda h: -h[0])
            dead = False
            out.append(i); continue
        if i.op in ("raw", "need"):
            out.append(i); continue
        n = required(i)
        if n > 0:
            if check_only: errs.append("hazard: need %d more states before %s" % (n, i.text()))
            else:
                m = n
                while m > 0:
                    c = min(m, 16); out.append(Ins("s_nop", [c - 1])); m -= c
            age(n)
        out.append(i)
        if i.op == "s_nop": age(int(i.ops[0]) + 1)
        else: age(1)
        if i.op != "s_nop": hist.append([0, i])
        if i.kind == "branch":
            snap = [list(h) for h in hist]
            if i.target in pend: pend[i.target] = sorted(pend[i.target] + snap, key=lambda h: -h[0])
            else: pend[i.target] = snap
            if i.op == "s_branch": dead = True
    if check_only: return errs
    return out

def finalize(ins):
    a = insert_waits(ins)
    b = insert_nops(a)
    return b
def to_text(ins): return "\n".join(i.text() for i in ins) + "\n"

def check_loop(ins, label):
    errs, st = insert_waits(ins, check_only=True, capture=label)
    assert not errs, errs[:5]
    if st is None: return []
    k = [n for n, i in enumerate(ins) if i.op == "label" and i.label == label][0]
    errs, _ = insert_waits(ins[k:], check_only=True, entry=st)
    return errs
```

```python
KB = 1024
WS_FLAG   = 0x0
WS_FLAG_W = 0x2000
WS_FLAG_H = 0x4000
WS_STAMP  = 0x8000
XSZ = 9 * 16 * KB
WS_X  = [0x100000 + i * 0x240000 for i in range(4)]
STSZ = 9 * 16 * 128
WS_ST = [0xA00000 + i * 0x48000 for i in range(4)]
OSZ = 8 * 16 * KB
WS_O  = [0xC00000 + i * 0x200000 for i in range(2)]
HSTEPS = 44
HSZ = 8 * HSTEPS * KB
WS_H  = [0x1000000 + i * 0x580000 for i in range(2)]
W3SZ = 16 * 11 * KB
WS_W3 = 0x1C00000
WS_W1 = 0x1F00000
WS_W3CS = 0x2100000
WS_END = 0x2200000
LDS_SIZE = 163840
L_MISC = 159744
L_CS1T = L_MISC
L_CS1V = L_MISC + 256
L_CS3  = L_MISC + 384
L_RMEAN = L_MISC + 1088
L_RRSTD = L_MISC + 1664
L_NONCE = L_MISC + 2240
def hspace_F(sigma, k):
    if sigma < 32:
        j = sigma >> 1
        return 88 * j + 32 * (sigma & 1) + k
    q = k >> 3
    lam = 4 * (sigma - 32) + q
    j = lam // 3
    return 88 * j + 64 + 8 * (lam % 3) + (k & 7)
```

```python
import sys, argparse
from fw import *
from layout import *

KNAME = "interleave_layers__sliding_local_dilated__glu_gated_glu__prompt_kernel"
NEG = 0xF149F2CA
LOG2E = 1.4426950408889634
import struct
def f2u(x): return struct.unpack("<I", struct.pack("<f", x))[0]
MFMA = "v_mfma_f32_16x16x32_bf16"
MFMA16 = "v_mfma_f32_16x16x16_bf16"
WT = "sc0 sc1"
SPIN_MAX = 200000

class G:
    def __init__(self, opt):
        self.o = opt
        self.p = Prog()
        self.vp = Pool("v", 1, 256)
        self.ap = Pool("a", 0, 256)
        self.sp = Pool("s", 44, 100)
        self.stamp_names = []
    def va(self, n=1, name="?", align=None): return self.vp.alloc(n, align, name)
    def aa(self, n=1, name="?"): return self.ap.alloc(n, 2 if n < 4 else 4, name)
    def sa(self, n=1, name="?"): return self.sp.alloc(n, None, name)
    def stamp(self, name):
        if not self.o.stamps: return
        p = self.p
        self.stamp_names.append(name)
        p("s_memrealtime", self.sT2)
        p("s_waitcnt", "lgkmcnt(0)")
        p("v_writelane_b32", self.vStamp, self.sT2[0], self.sStampIdx)
        p("s_add_u32", self.sStampIdx, self.sStampIdx, 1)
    def srd(self, dst, lo, nbytes):
        p = self.p
        p("s_mov_b32", dst[0], lo[0]); p("s_and_b32", dst[1], lo[1], 0xffff)
        p("s_mov_b32", dst[2], nbytes); p("s_mov_b32", dst[3], 0x20000)
    def if_wave(self, w, fn, eq=True):
        p = self.p; l = p.newlabel("Lw")
        p("s_cmp_lg_u32" if eq else "s_cmp_eq_u32", self.sW, w)
        p("s_cbranch_scc1", l); fn(); p.label(l)
    def by_wave(self, blocks):
        p = self.p; end = p.newlabel("Lwe"); items = list(blocks.items())
        for n, (w, fn) in enumerate(items):
            nxt = p.newlabel("Lw")
            p("s_cmp_lg_u32", self.sW, w); p("s_cbranch_scc1", nxt)
            fn()
            if n != len(items) - 1: p("s_branch", end)
            p.label(nxt)
        p.label(end)
    def if_scalar(self, cmp, a, b, fn):
        p = self.p; l = p.newlabel("Li")
        inv = {"eq": "lg", "lg": "eq", "lt": "ge", "ge": "lt"}[cmp]
        p("s_cmp_%s_u32" % inv, a, b); p("s_cbranch_scc1", l); fn(); p.label(l)
    def dual_store(self, emit):
        p = self.p; slow = p.newlabel("Lsl"); end = p.newlabel("Lse")
        p("s_cmp_eq_u32", self.sFast, 0); p("s_cbranch_scc1", slow)
        emit(""); p("s_branch", end); p.label(slow); emit(WT); p.label(end)
    def barrier(self): self.p("s_barrier")

    def prologue(self):
        p = self.p
        self.X0, self.WQKV, self.WO, self.WG, self.WU, self.WD, self.OUT, self.WS, self.DBG = [S(8 + 4 * i, 4) for i in range(9)]
        self.sT3 = S(3); self.sT = S(4); self.sT1 = S(5); self.sT2 = S(6, 2)
        p("s_cmp_ge_u32", S(2), 256)
        p("s_cbranch_scc1", "L_exit")
        ka = self.sp.alloc(16, 4, "ka"); kb = self.sp.alloc(4, 4, "kb")
        p("s_load_dwordx16", ka, S(0, 2), 0)
        p("s_load_dwordx4", kb, S(0, 2), 64)
        for n in "C J W XCC Nonce Fast Layer I JJ MH KH StampIdx Xb STb Ob Hb Own Spin".split():
            setattr(self, "s" + n, self.sp.alloc(1, None, n))
        self.vLane = self.va(1, "lane"); self.vM = self.va(1, "m"); self.vG = self.va(1, "g")
        self.vL16 = self.va(1, "l16"); self.vOnes = self.va(4, "ones"); self.vZero = self.va(1, "zero")
        t = self.va(1, "t")
        p("v_lshrrev_b32", t, 6, V(0))
        p("v_and_b32", self.vLane, 63, V(0))
        p("v_readfirstlane_b32", self.sW, t)
        p("v_and_b32", self.vM, 15, self.vLane)
        p("v_lshrrev_b32", self.vG, 4, self.vLane)
        p("v_lshlrev_b32", self.vL16, 4, self.vLane)
        p("v_mov_b32", self.vZero, 0)
        for i in range(4): p("v_mov_b32", self.vOnes[i], 0x3F803F80)
        p("s_getreg_b32", self.sXCC, "hwreg(HW_REG_XCC_ID, 0, 4)")
        p("s_and_b32", self.sT, S(2), 7); p("s_lshl_b32", self.sT, self.sT, 1)
        p("s_lshr_b32", self.sT1, S(2), 7); p("s_add_u32", self.sC, self.sT, self.sT1)
        p("s_lshr_b32", self.sJ, S(2), 3); p("s_and_b32", self.sJ, self.sJ, 15)
        p("s_lshr_b32", self.sI, self.sJ, 3); p("s_and_b32", self.sJJ, self.sJ, 7)
        p("s_lshr_b32", self.sMH, self.sW, 1); p("s_and_b32", self.sKH, self.sW, 1)
        p("s_mov_b32", self.sLayer, 0); p("s_mov_b32", self.sFast, 0); p("s_mov_b32", self.sStampIdx, 0)
        p("s_mul_i32", self.sXb, self.sC, XSZ); p("s_mul_i32", self.sSTb, self.sC, STSZ)
        p("s_mul_i32", self.sOb, self.sC, OSZ); p("s_mul_i32", self.sHb, self.sC, HSZ)
        p("s_lshl_b32", self.sT, self.sI, 2); p("s_lshl_b32", self.sT1, self.sMH, 1)
        p("s_add_u32", self.sT, self.sT, self.sT1); p("s_add_u32", self.sT, self.sT, self.sKH)
        p("s_add_u32", self.sOwn, self.sT, 1)
        if self.o.stamps:
            self.vStamp = self.va(1, "stamp"); p("v_mov_b32", self.vStamp, 0)
        p("s_waitcnt", "lgkmcnt(0)")
        self.srd(self.X0, ka[0:2], 2048 * 1024); self.srd(self.WQKV, ka[2:4], 512 * 3072)
        self.srd(self.WO, ka[4:6], 512 * 1024);  self.srd(self.WG, ka[8:10], 512 * 2752)
        self.srd(self.WU, ka[10:12], 512 * 2752); self.srd(self.WD, ka[12:14], 1376 * 1024)
        self.srd(self.OUT, ka[14:16], 2048 * 1024)
        self.srd(self.DBG, kb[0:2], 256); self.srd(self.WS, kb[2:4], WS_END)
        self.sp.free(ka, kb); self.vp.free(t)
        self.stamp("start")
        def wr():
            t2 = self.va(1, "t2")
            p("s_memrealtime", self.sT2); p("s_waitcnt", "lgkmcnt(0)")
            p("s_or_b32", self.sT, self.sT2[0], 1)
            p("v_mov_b32", t2, self.sT)
            p("buffer_store_dword", t2, self.vZero, self.DBG, 0, mods="offen " + WT)
            self.vp.free(t2)
        p("s_or_b32", self.sT, S(2), self.sW)
        self.if_scalar("eq", self.sT, 0, wr)

    def consts(self):
        p = self.p
        t = self.va(4, "t")
        self.vB1 = self.va(3, "vB1", 1)
        p("s_lshl_b32", self.sT, self.sJ, 6)
        for u in range(3):
            p("v_add_u32", t[0], 64 * u, self.vLane)
            p("v_mul_u32_u24", t[1], 0x5556, t[0]); p("v_lshrrev_b32", t[1], 18, t[1])
            p("v_mul_u32_u24", t[2], 12, t[1]); p("v_sub_u32", t[2], t[0], t[2])
            p("v_lshrrev_b32", t[3], 2, t[1]); p("v_and_b32", t[3], 1, t[3]); p("v_lshlrev_b32", t[3], 1, t[3])
            p("v_xor_b32", t[2], t[2], t[3])
            p("v_mul_u32_u24", t[1], 3072, t[1])
            p("v_lshrrev_b32", t[3], 2, t[2]); p("v_lshlrev_b32", t[3], 10, t[3]); p("v_add_u32", t[1], t[1], t[3])
            p("v_and_b32", t[2], 3, t[2]); p("v_lshlrev_b32", t[2], 4, t[2]); p("v_add_u32", t[1], t[1], t[2])
            p("v_add_u32", t[1], self.sT, t[1])
            if u: p("v_subrev_u32", self.vB1[u], 1024 * u, t[1])
            else: p("v_mov_b32", self.vB1[u], t[1])
        self.vB2 = self.va(4, "vB2", 1)
        p("v_lshrrev_b32", t[0], 3, self.vLane)
        p("v_lshrrev_b32", t[1], 1, t[0]); p("v_and_b32", t[1], 3, t[1]); p("v_lshlrev_b32", t[1], 1, t[1])
        p("v_and_b32", t[2], 7, self.vLane); p("v_xor_b32", t[2], t[2], t[1]); p("v_lshlrev_b32", t[2], 4, t[2])
        p("v_lshlrev_b32", t[0], 10, t[0]); p("v_add_u32", t[0], t[0], t[2])
        p("s_lshl_b32", self.sT, self.sJJ, 7)
        p("v_add_u32", self.vB2[0], self.sT, t[0])
        for q in range(1, 4): p("v_add_u32", self.vB2[q], 7168 * q, self.vB2[0])
        self.vRho = self.va(1, "rho"); self.vIn = self.va(1, "in")
        vr = t[0]
        p("v_lshrrev_b32", vr, 2, self.vM)
        p("v_and_b32", t[1], 3, self.vLane); p("v_lshlrev_b32", self.vIn, 3, t[1])
        p("v_lshlrev_b32", self.vRho, 2, self.vG); p("v_add_u32", self.vRho, self.vRho, vr)
        self.vT1 = self.va(4, "vT1", 1)
        self.vT1b = self.va(1, "vT1b")
        p("v_mul_u32_u24", self.vT1b, 192, self.vRho); p("v_add_u32", self.vT1b, self.vT1b, self.vIn)
        p("v_and_b32", t[1], 1, self.vG); p("v_lshlrev_b32", t[1], 5, t[1])
        p("v_add_u32", self.vT1[0], self.vT1b, t[1]); p("v_sub_u32", self.vT1[2], self.vT1b, t[1])
        p("v_add_u32", self.vT1[1], 49152, self.vT1[0]); p("v_add_u32", self.vT1[3], 49152, self.vT1[2])
        self.vT2 = self.va(4, "vT2", 1)
        p("v_and_b32", t[1], 1, self.vG); p("v_lshlrev_b32", t[1], 1, t[1]); p("v_lshrrev_b32", t[2], 1, vr)
        p("v_add_u32", t[1], t[1], t[2])
        p("v_lshlrev_b32", t[2], 7, self.vRho); p("v_add_u32", t[2], t[2], self.vIn)
        for nt in range(4):
            p("v_xor_b32", t[3], nt, t[1]); p("v_lshlrev_b32", t[3], 5, t[3]); p("v_add_u32", self.vT2[nt], t[2], t[3])
        self.vBiasP = self.va(4, "biasP"); self.vBiasC = self.va(4, "biasC"); self.vBiasP0 = self.va(4, "biasP0")
        p("v_mov_b32", t[2], NEG)
        for r in range(4):
            p("v_lshlrev_b32", t[0], 2, self.vG); p("v_add_u32", t[0], r, t[0])
            p("v_sub_u32", t[1], self.vM, t[0]); p("v_and_b32", t[1], 0x80000001, t[1])
            p("v_cmp_eq_u32", "vcc", 0, t[1]); p("v_cndmask_b32", self.vBiasC[r], t[2], self.vZero, "vcc")
            p("v_cmp_eq_u32", "vcc", 0x80000000, t[1]); p("v_cndmask_b32", self.vBiasP[r], t[2], self.vZero, "vcc")
        p("s_or_b32", self.sT, self.sC, self.sW); p("s_cmp_eq_u32", self.sT, 0)
        p("s_cselect_b64", "vcc", -1, 0)
        for r in range(4): p("v_cndmask_b32", self.vBiasP0[r], self.vBiasP[r], t[2], "vcc")
        self.vSt = self.va(1, "vSt")
        p("v_and_b32", t[0], 1, self.vG); p("v_lshlrev_b32", t[0], 7, t[0])
        p("v_lshrrev_b32", t[1], 1, self.vG); p("v_lshlrev_b32", t[1], 6, t[1])
        p("v_lshlrev_b32", self.vSt, 2, self.vM); p("v_add3_u32", self.vSt, self.vSt, t[0], t[1])
        self.vResF = self.va(16, "residF")
        self.vp.free(t)

    def dma(self, srd, voff, soff, off, token, extra=""):
        self.p("buffer_load_dwordx4", voff, srd, soff, mods=("offen offset:%d %s lds" % (off, extra)).replace("  ", " "), token=token)
    def job_b1_natural(self, steps, token, sOff, sLds):
        p = self.p
        for st in steps:
            for half in range(2):
                p("s_add_u32", "m0", sLds, st * 6144 + half * 3072)
                p("s_add_u32", self.sT, sOff, (32 * st + 16 * half) * 3072)
                for u in range(3): self.dma(self.WQKV, self.vB1[u], self.sT, 1024 * u, token)
    def job_rows128(self, srd, row0, lds, token, sExtra=None, sLdsExtra=None):
        p = self.p
        if sLdsExtra is None: p("s_mov_b32", "m0", lds)
        else: p("s_add_u32", "m0", sLdsExtra, lds)
        if sExtra is None: p("s_mov_b32", self.sT, row0 * 1024)
        else: p("s_add_u32", self.sT, sExtra, row0 * 1024)
        for q in range(4): self.dma(srd, self.vB2[q], self.sT, 1024 * q, token)
    def job_b4_step(self, sigma, lds, token):
        p = self.p
        if sigma < 32:
            self.job_rows128(self.WD, hspace_F(sigma, 0), lds, token)
        else:
            p("s_mov_b32", "m0", lds)
            for q in range(4):
                F0 = hspace_F(sigma, 8 * q)
                p("s_mov_b32", self.sT, F0 * 1024 - 1024 * q)
                self.dma(self.WD, self.vB2[0], self.sT, 1024 * q, token)
    def job_linear(self, sG, goff, lds, n, token, extra="sc1"):
        p = self.p
        i = 0
        while i < n:
            p("s_mov_b32", "m0", lds + i * 1024)
            p("s_add_u32", self.sT, sG, goff + i * 1024)
            for q in range(min(4, n - i)): self.dma(self.WS, self.vL16, self.sT, 1024 * q, token, extra)
            i += 4

    def flag_addr(self, dst, base, sIdx, sSub):
        p = self.p
        p("s_lshl_b32", self.sT, sIdx, 8); p("s_lshl_b32", self.sT1, sSub, 2); p("s_add_u32", self.sT, self.sT, self.sT1)
        p("s_add_u32", self.sT, self.sT, base); p("v_mov_b32", dst, self.sT)
    def publish(self, phase_expr, base=WS_FLAG, sIdx=None, sSub=None, force_wt=False):
        p = self.p
        t = self.va(2, "pub")
        self.flag_addr(t[0], base, sIdx or self.sC, sSub or self.sJ)
        if isinstance(phase_expr, int): p("s_add_u32", self.sT, self.sNonce, phase_expr * 16)
        else:
            p("s_lshl_b32", self.sT, phase_expr, 4); p("s_add_u32", self.sT, self.sT, self.sNonce)
        p("s_add_u32", self.sT, self.sT, self.sXCC)
        p("v_mov_b32", t[1], self.sT)
        p("s_mov_b64", "exec", 1)
        if force_wt: p("buffer_store_dword", t[1], t[0], self.WS, 0, mods="offen " + WT)
        else: self.dual_store(lambda m: p("buffer_store_dword", t[1], t[0], self.WS, 0, mods=("offen " + m).strip()))
        p("s_mov_b64", "exec", -1)
        self.vp.free(t)
    def poll(self, phase_expr, base=WS_FLAG, sIdx=None, n=16, keep=None):
        p = self.p
        t = self.va(3, "poll")
        p("s_lshl_b32", self.sT, sIdx or self.sC, 8); p("s_add_u32", self.sT, self.sT, base)
        p("v_and_b32", t[0], n - 1, self.vLane); p("v_lshlrev_b32", t[0], 2, t[0]); p("v_add_u32", t[0], self.sT, t[0])
        if isinstance(phase_expr, int):
            p("s_add_u32", self.sT, self.sNonce, phase_expr * 16); p("s_mov_b32", self.sT1, 256 - phase_expr * 16)
        else:
            p("s_lshl_b32", self.sT1, phase_expr, 4); p("s_add_u32", self.sT, self.sT1, self.sNonce); p("s_sub_u32", self.sT1, 256, self.sT1)
        l = p.newlabel("Lpoll")
        p("s_mov_b32", self.sSpin, 0)
        p.label(l)
        p("s_add_u32", self.sSpin, self.sSpin, 1); p("s_cmp_gt_u32", self.sSpin, SPIN_MAX); p("s_cbranch_scc1", "L_exit")
        p("buffer_load_dword", t[1], t[0], self.WS, 0, mods="offen sc1")
        p("v_subrev_u32", t[2], self.sT, t[1])
        p("v_cmp_gt_u32", "vcc", self.sT1, t[2])
        p("s_cmp_eq_u64", "vcc", "exec")
        p("s_cbranch_scc0", l)
        if keep is not None: p("v_mov_b32", keep, t[2])
        self.vp.free(t)

    def swap_add(self, op, a, b):
        self.p("v_permlane%d_swap_b32" % op, a, b)
    def stats_load(self, dst8, sBase, tau_off):
        p = self.p
        for i in range(8):
            p("buffer_load_dword", dst8[i], self.vSt, self.WS, sBase, mods="offen offset:%d sc1" % (tau_off + i * 256))
    def stats_finish(self, src8, pair, tmp):
        p = self.p
        p("v_add_f32", src8[0], src8[0], src8[1]); p("v_add_f32", src8[2], src8[2], src8[3])
        p("v_add_f32", src8[4], src8[4], src8[5]); p("v_add_f32", src8[6], src8[6], src8[7])
        p("v_add_f32", src8[0], src8[0], src8[2]); p("v_add_f32", src8[4], src8[4], src8[6])
        p("v_add_f32", src8[0], src8[0], src8[4])
        p("v_mov_b32", tmp, src8[0])
        p("v_permlane16_swap_b32", src8[0], tmp)
        p("v_add_f32", src8[0], src8[0], tmp)
        p("v_mov_b32", tmp, src8[0])
        p("v_permlane32_swap_b32", src8[0], tmp)
        p("v_mul_f32", pair[0], 1.0 / 512, src8[0]) if False else p("v_mul_f32", pair[0], f2u(1.0 / 512), src8[0])
        p("v_mul_f32", tmp, f2u(1.0 / 512), tmp)
        p("v_fma_f32", tmp, "-" + str(pair[0]), pair[0], tmp)
        p("v_max_f32", tmp, 0, tmp)
        p("v_add_f32", tmp, f2u(1e-5), tmp)
        p("v_rsq_f32", pair[1], tmp)
    def stats_of_frags(self, frags, out, tmp):
        p = self.p
        n = len(frags)
        for b, f in enumerate(frags):
            s, q = tmp[2 * b], tmp[2 * b + 1]
            p("v_dot2_f32_bf16", s, f[0], self.vOnes[0], 0 if False else self.vZero)
            p("v_dot2_f32_bf16", q, f[0], f[0], self.vZero)
            for i in range(1, 4):
                p("v_dot2_f32_bf16", s, f[i], self.vOnes[0], s)
                p("v_dot2_f32_bf16", q, f[i], f[i], q)
            p("v_permlane32_swap_b32", s, q)
            p("v_add_f32", s, s, q)
        if n == 2:
            p("v_permlane16_swap_b32", tmp[0], tmp[2])
            p("v_add_f32", out, tmp[0], tmp[2])
        else:
            p("v_mov_b32", tmp[1], tmp[0])
            p("v_permlane16_swap_b32", tmp[0], tmp[1])
            p("v_add_f32", out, tmp[0], tmp[1])

    def startup(self):
        p = self.p
        self.L_RG = 98304; self.L_RU = 98304 + 6144
        x = [self.va(4, "p0x%d" % i) for i in range(3)]
        vo = self.va(1, "p0off")
        def getnonce():
            t = self.va(2, "n")
            l = p.newlabel("Lnonce")
            p("s_mov_b32", self.sSpin, 0)
            p.label(l)
            p("s_add_u32", self.sSpin, self.sSpin, 1); p("s_cmp_gt_u32", self.sSpin, SPIN_MAX); p("s_cbranch_scc1", "L_exit")
            p("buffer_load_dword", t[0], self.vZero, self.DBG, 0, mods="offen sc1")
            p("v_readfirstlane_b32", self.sT, t[0])
            p("s_cmp_eq_u32", self.sT, 0)
            p("s_cbranch_scc1", l)
            p("v_mov_b32", t[1], L_NONCE)
            p("ds_write_b32", t[1], t[0])
            self.vp.free(t)
        def p0_loads():
            p("s_lshl_b32", self.sT, self.sC, 7); p("s_mul_i32", self.sT1, self.sW, 48)
            p("s_add_u32", self.sT, self.sT, self.sT1); p("s_sub_u32", self.sT, self.sT, 16)
            p("v_add_u32", vo, self.sT, self.vM); p("v_lshlrev_b32", vo, 10, vo)
            p("v_lshlrev_b32", x[0][0], 4, self.vG); p("v_add_u32", vo, vo, x[0][0])
            p("s_lshl_b32", self.sT, self.sJ, 6); p("v_add_u32", vo, self.sT, vo)
            for n in range(3):
                p("buffer_load_dwordx4", x[n], vo, self.X0, 0, mods="offen")
                if n < 2: p("v_add_u32", vo, 16384, vo)
        l3 = p.newlabel("Ls3"); le = p.newlabel("Lse")
        p("s_cmp_eq_u32", self.sW, 3); p("s_cbranch_scc1", l3)
        p0_loads(); p("s_branch", le); p.label(l3); getnonce(); p.label(le)
        vq = self.va(6, "w3off", 1); t = self.va(4, "t")
        p("s_mul_i32", self.sT, self.sJ, 176)
        for u in range(6):
            p("v_add_u32", t[0], 64 * u, self.vLane)
            p("v_mul_u32_u24", t[1], 5958, t[0]); p("v_lshrrev_b32", t[1], 16, t[1])
            p("v_mul_u32_u24", t[2], 11, t[1]); p("v_sub_u32", t[2], t[0], t[2])
            p("v_and_b32", t[3], 16, t[1]); p("v_and_b32", t[0], 1, t[1]); p("v_lshlrev_b32", t[0], 3, t[0])
            p("v_add_u32", t[3], t[3], t[0]); p("v_and_b32", t[0], 15, t[1]); p("v_lshrrev_b32", t[0], 1, t[0])
            p("v_add_u32", t[3], t[3], t[0])
            p("v_mul_u32_u24", t[3], 2752, t[3]); p("v_lshlrev_b32", t[2], 4, t[2]); p("v_add_u32", t[3], t[3], t[2])
            p("v_add_u32", vq[u], self.sT, t[3])
            if u == 5:
                p("v_cmp_gt_u32", "vcc", 32, self.vLane); p("v_mov_b32", t[0], 0x7ffffff0)
                p("v_cndmask_b32", vq[u], t[0], vq[u], "vcc")
        self.vp.free(t)
        sRow = self.sa(1, "w3row")
        p("s_mul_i32", sRow, self.sC, 32 * 2752)
        sOff = self.sa(1, "b1off"); sLds = self.sa(1, "b1lds")
        p("s_mul_i32", sOff, self.sW, 32 * 3072); p("s_mul_i32", sLds, self.sW, 6144)
        self.sB1off, self.sB1lds = sOff, sLds
        self.job_b1_natural([0, 4, 8], "B1", sOff, sLds)
        def w3_dma(srd, lds):
            def f():
                for u in range(6):
                    p("s_mov_b32", "m0", lds + 1024 * u)
                    self.dma(srd, vq[u], sRow, 0, "w3src")
            return f
        self.by_wave({1: w3_dma(self.WG, self.L_RG), 2: w3_dma(self.WU, self.L_RU)})
        tmp = self.va(4, "tmp"); so = self.va(1, "so"); sv = self.va(1, "sv")
        sXo = self.sa(1, "xo"); sSo = self.sa(1, "so")
        def p0_all():
            p("v_and_b32", tmp[0], 1, self.vG); p("v_cmp_eq_u32", "vcc", 0, tmp[0])
            p("v_mov_b32", tmp[1], 0x7ffffff0); p("v_cndmask_b32", so, tmp[1], self.vSt, "vcc")
            for n in range(3):
                f = x[n]
                p("v_permlane16_swap_b32", f[0], f[2]); p("v_permlane16_swap_b32", f[1], f[3])
                p("v_permlane32_swap_b32", f[0], f[2]); p("v_permlane32_swap_b32", f[1], f[3])
                p("s_mul_i32", self.sT, self.sW, 3); p("s_add_u32", self.sT, self.sT, n)
                p("s_lshl_b32", self.sT1, self.sT, 14)
                p("s_add_u32", sXo, self.sT1, self.sXb); p("s_lshl_b32", self.sT1, self.sJ, 10)
                p("s_add_u32", sXo, sXo, self.sT1); p("s_add_u32", sXo, sXo, WS_X[0])
                p("buffer_store_dwordx4", f, self.vL16, self.WS, sXo, mods="offen " + WT, token="p0st")
                p("s_lshl_b32", self.sT1, self.sT, 11); p("s_add_u32", sSo, self.sT1, self.sSTb)
                p("s_lshl_b32", self.sT1, self.sJ, 7); p("s_add_u32", sSo, sSo, self.sT1); p("s_add_u32", sSo, sSo, WS_ST[0])
                self.stats_of_frags([f], sv, tmp)
                p("buffer_store_dword", sv, so, self.WS, sSo, mods="offen " + WT, token="p0st")
        self.if_wave(3, p0_all, eq=False)
        self.vp.free(x, vo, tmp, so, sv); self.sp.free(sXo, sSo)
        self.job_b1_natural([12], "B1", sOff, sLds)
        p.need("p0st", "w3src")
        p("s_waitcnt", "lgkmcnt(0)")
        self.barrier()
        self.stamp("p0done")
        t = self.va(1, "t"); p("v_mov_b32", t, L_NONCE); p("ds_read_b32", t, t); p("v_readfirstlane_b32", self.sNonce, t); self.vp.free(t)
        self.if_wave(0, lambda: self.publish(1, force_wt=True))
        self.w3_repack()
        self.vp.free(vq); self.sp.free(sRow)

    def w3_repack(self):
        p = self.p
        t = self.va(4, "t"); base = self.va(1, "rb")
        p("v_and_b32", t[0], 1, self.vG); p("v_lshlrev_b32", t[0], 2, t[0])
        p("v_lshrrev_b32", t[1], 2, self.vM); p("v_add_u32", t[0], t[0], t[1]); p("v_lshlrev_b32", t[0], 1, t[0])
        p("v_lshrrev_b32", t[1], 1, self.vG); p("v_add_u32", t[0], t[0], t[1])
        p("v_mul_u32_u24", base, 176, t[0]); p("v_add_u32", base, self.L_RG, base)
        frag = self.va(4, "frag"); ad = self.va(1, "ad")
        sO = self.sa(1, "w3o")
        p("s_mul_i32", sO, self.sJ, W3SZ); p("s_mul_i32", self.sT, self.sC, 11 * 1024)
        p("s_add_u32", sO, sO, self.sT); p("s_add_u32", sO, sO, WS_W3)
        cacc = self.va(4, "cacc"); cad = self.va(1, "cad"); sCs = self.sa(1, "cs")
        p("s_lshl_b32", sCs, self.sJ, 4); p("s_add_u32", sCs, sCs, self.sC); p("s_lshl_b32", sCs, sCs, 10); p("s_add_u32", sCs, sCs, WS_W3CS)
        p("v_lshlrev_b32", cad, 4, self.vG); p("v_mov_b32", t[0], 0x7ffffff0)
        p("v_cmp_eq_u32", "vcc", 0, self.vM); p("v_cndmask_b32", cad, t[0], cad, "vcc")
        def tile(nt):
            if nt < 10:
                reg = self.L_RG if nt % 2 == 0 else self.L_RU
                off = reg - self.L_RG + 32 * (nt // 2)
                p("v_add_u32", ad, base, self.vIn)
                p("ds_read_b64_tr_b16", frag[0:2], ad, mods="offset:%d" % off)
                p("ds_read_b64_tr_b16", frag[2:4], ad, mods="offset:%d" % (off + 16 * 176))
            else:
                p("v_and_b32", t[0], 1, self.vLane); p("v_lshlrev_b32", t[0], 3, t[0])
                p("v_and_b32", t[1], 2, self.vLane); p("v_mul_u32_u24", t[1], (self.L_RU - self.L_RG) // 2, t[1])
                p("v_add3_u32", ad, base, t[0], t[1])
                p("ds_read_b64_tr_b16", frag[0:2], ad, mods="offset:%d" % 160)
                p("ds_read_b64_tr_b16", frag[2:4], ad, mods="offset:%d" % (160 + 16 * 176))
            p("s_add_u32", self.sT, sO, nt * 1024)
            p("buffer_store_dwordx4", frag, self.vL16, self.WS, self.sT, mods="offen " + WT, token="w3st")
            p(MFMA, cacc, frag, self.vOnes, 0)
            p("buffer_store_dwordx4", cacc, cad, self.WS, sCs, mods="offen offset:%d %s" % (nt * 64, WT), token="w3st")
        self.by_wave({w: (lambda w=w: [tile(nt) for nt in range(w, 11, 4)]) for w in range(4)})
        self.vp.free(t, base, frag, ad, cacc, cad); self.sp.free(sO, sCs)
        p("s_waitcnt", "vmcnt(0)")
        self.barrier()
        self.if_wave(0, lambda: self.publish(1, base=WS_FLAG_W, sIdx=self.sJ, sSub=self.sC, force_wt=True))

    L_HA = 98304
    L_EX = 114688
    def wave_tile_base(self, dst, add):
        p = self.p; t = self.va(1, "t")
        p("s_add_u32", self.sT, self.sW, add)
        p("v_and_b32", t, 1, self.vG); p("v_xor_b32", t, self.sT, t); p("v_lshlrev_b32", t, 5, t)
        p("v_add_u32", dst, self.vT1b, t); self.vp.free(t)
    def csum1(self):
        p = self.p
        bT = self.va(2, "bT", 1); bV = self.va(2, "bV", 1)
        self.wave_tile_base(bT[0], 0); p("v_add_u32", bT[1], 49152, bT[0])
        t = self.va(1, "t")
        p("s_and_b32", self.sT, self.sW, 1); p("s_add_u32", self.sT, self.sT, 4)
        p("v_and_b32", t, 1, self.vG); p("v_xor_b32", t, self.sT, t); p("v_lshlrev_b32", t, 5, t)
        p("v_add_u32", bV[0], self.vT1b, t); p("v_add_u32", bV[1], 49152, bV[0])
        accT = self.va(4, "cT"); accV = self.va(4, "cV")
        fT = [self.aa(4, "fT") for _ in range(2)]; fV = [self.aa(4, "fV") for _ in range(2)]
        def rd(s):
            hi, so = s // 8, (s % 8) * 6144
            p("ds_read_b64_tr_b16", fT[s % 2][0:2], bT[hi], mods="offset:%d" % so)
            p("ds_read_b64_tr_b16", fT[s % 2][2:4], bT[hi], mods="offset:%d" % (so + 3072))
            p("ds_read_b64_tr_b16", fV[s % 2][0:2], bV[hi], mods="offset:%d" % so)
            p("ds_read_b64_tr_b16", fV[s % 2][2:4], bV[hi], mods="offset:%d" % (so + 3072))
        rd(0)
        for s in range(16):
            if s + 1 < 16: rd(s + 1)
            p(MFMA, accT, fT[s % 2], self.vOnes, accT if s else 0)
            p(MFMA, accV, self.vOnes, fV[s % 2], accV if s else 0)
        ad = self.va(1, "ad")
        p("s_lshl_b32", self.sT, self.sW, 6); p("s_add_u32", self.sT, self.sT, L_CS1T)
        p("v_lshlrev_b32", ad, 4, self.vG); p("v_add_u32", ad, self.sT, ad)
        p("s_mov_b32", "exec_lo", 0x00010001); p("s_mov_b32", "exec_hi", 0x00010001)
        p("ds_write_b128", ad, accT)
        p("s_and_b32", self.sT, self.sW, 1); p("s_lshl_b32", self.sT, self.sT, 6); p("s_add_u32", self.sT, self.sT, L_CS1V)
        p("s_mov_b64", "exec", -1)
        p("v_lshlrev_b32", ad, 2, self.vM); p("v_add_u32", ad, self.sT, ad)
        p("s_mov_b64", "exec", 0xFFFF)
        p("ds_write_b32", ad, accV[0])
        p("s_mov_b64", "exec", -1)
        self.vp.free(bT, bV, t, accT, accV, ad); self.ap.free(fT, fV)
    def entry(self):
        p = self.p
        p.need("B1"); self.barrier()
        self.stamp("b1ready")
        self.csum1()
        def first_poll():
            k = self.va(2, "k")
            self.poll(1, keep=k[0])
            p("v_and_b32", k[0], 15, k[0]); p("v_cmp_eq_u32", "vcc", self.sXCC, k[0])
            p("s_cmp_eq_u64", "vcc", "exec"); p("s_cselect_b32", self.sT, 0 if self.o.slow else 1, 0)
            p("v_mov_b32", k[0], self.sT); p("v_mov_b32", k[1], L_NONCE + 4); p("ds_write_b32", k[1], k[0])
            self.vp.free(k)
        self.if_wave(0, first_poll)
        p("s_waitcnt", "lgkmcnt(0)")
        self.barrier()
        t = self.va(1, "t"); p("v_mov_b32", t, L_NONCE + 4); p("ds_read_b32", t, t); p("v_readfirstlane_b32", self.sFast, t); self.vp.free(t)
        self.stamp("x0ready")

    def layer_bases(self):
        p = self.p
        for n in "Xin Xmid Xout STin STmid STout Oc Hc Ph".split():
            if not hasattr(self, "s" + n): setattr(self, "s" + n, self.sa(1, n))
        L = self.sLayer
        p("s_mul_i32", self.sT, L, 2 * 0x240000); p("s_add_u32", self.sT, self.sT, self.sXb)
        p("s_add_u32", self.sXin, self.sT, WS_X[0]); p("s_add_u32", self.sXmid, self.sT, WS_X[1]); p("s_add_u32", self.sXout, self.sT, WS_X[2])
        p("s_mul_i32", self.sT, L, 2 * 0x48000); p("s_add_u32", self.sT, self.sT, self.sSTb)
        p("s_add_u32", self.sSTin, self.sT, WS_ST[0]); p("s_add_u32", self.sSTmid, self.sT, WS_ST[1]); p("s_add_u32", self.sSTout, self.sT, WS_ST[2])
        p("s_mul_i32", self.sT, L, 0x200000); p("s_add_u32", self.sT, self.sT, self.sOb); p("s_add_u32", self.sOc, self.sT, WS_O[0])
        p("s_mul_i32", self.sT, L, 0x580000); p("s_add_u32", self.sT, self.sT, self.sHb); p("s_add_u32", self.sHc, self.sT, WS_H[0])
        p("s_lshl_b32", self.sPh, L, 2)

    def a_loads(self, aX, sO, nsteps):
        p = self.p
        nt = len(aX)
        for s in range(nsteps):
            if s and s % 4 == 0:
                for t in range(nt): p("s_add_u32", sO[t], sO[t], 4096)
            for t in range(nt):
                p("buffer_load_dwordx4", aX[t][s], self.vL16, self.WS, sO[t], mods="offen offset:%d sc1" % ((s % 4) * 1024))
    def p1(self):
        p, o = self.p, self.o
        aX = [[self.aa(4, "aX") for s in range(16)] for t in range(2)]
        aB = [self.aa(4, "aB") for nt in range(6)]
        acc = [[self.va(4, "acc") for nt in range(6)] for t in range(2)]
        sA = self.sa(1, "p1a"); sA2 = self.sa(1, "p1a2")
        p("s_lshl_b32", self.sT, self.sW, 15); p("s_add_u32", sA, self.sT, self.sXin); p("s_add_u32", sA, sA, 16384)
        p("s_add_u32", sA2, sA, 16384)
        def rdB(s, nt):
            b = self.vT1[(nt & 1) * 2 + s // 8]; so = (s % 8) * 6144 + nt * 32
            p("ds_read_b64_tr_b16", aB[nt][0:2], b, mods="offset:%d" % so)
            p("ds_read_b64_tr_b16", aB[nt][2:4], b, mods="offset:%d" % (so + 3072))
        self.a_loads(aX, [sA, sA2], 16)
        st8 = [self.va(8, "st8", 1) for t in range(2)]
        p("s_lshl_b32", self.sT, self.sW, 12); p("s_add_u32", sA, self.sT, self.sSTin); p("s_add_u32", sA, sA, 2048)
        for t in range(2): self.stats_load(st8[t], sA, t * 2048)
        rp = self.va(8, "rp")
        def ld_res():
            p("s_lshl_b32", self.sT, self.sOwn, 14); p("s_add_u32", self.sT, self.sT, self.sXin)
            p("s_lshl_b32", self.sT1, self.sJJ, 11); p("s_add_u32", self.sT, self.sT, self.sT1)
            p("buffer_load_dwordx4", rp[0:4], self.vL16, self.WS, self.sT, mods="offen sc1")
            p("buffer_load_dwordx4", rp[4:8], self.vL16, self.WS, self.sT, mods="offen offset:1024 sc1")
        self.if_scalar("eq", self.sLayer, 0, ld_res)
        for nt in range(6): rdB(0, nt)
        for s in range(16):
            for nt in range(6):
                for t in range(2):
                    c = acc[t][nt] if s else 0
                    if nt < 4: p(MFMA, acc[t][nt], aB[nt], aX[t][s], c)
                    else: p(MFMA, acc[t][nt], aX[t][s], aB[nt], c)
                if s + 1 < 16: rdB(s + 1, nt)
        self.stamp("p1main")
        for t in range(2): self.ap.free(aX[t])
        self.ap.free(aB); self.sp.free(sA, sA2)
        def unpack_res():
            for i in range(8):
                p("v_lshlrev_b32", self.vResF[2 * i], 16, rp[i]); p("v_and_b32", self.vResF[2 * i + 1], 0xffff0000, rp[i])
        self.if_scalar("eq", self.sLayer, 0, unpack_res)
        self.vp.free(rp)
        def halo_poll():
            p("s_sub_u32", self.sT3, self.sC, 0)
            self.poll(5, base=WS_FLAG_H, sIdx=self.sC, n=8)
        def hp0():
            p("s_min_u32", self.sT3, self.sC, self.sLayer)
            self.if_scalar("lg", self.sT3, 0, halo_poll)
            self.if_scalar("eq", self.sLayer, 0, lambda: self.poll(1, base=WS_FLAG_W, sIdx=self.sJ, n=16))
        self.if_wave(0, hp0)
        self.barrier()
        sHX = self.sa(1, "hx"); sHS = self.sa(1, "hs")
        p("s_cmp_eq_u32", self.sC, 0)
        p("s_cselect_b32", sHX, WS_X[0], self.sXin); p("s_cselect_b32", sHS, WS_ST[0], self.sSTin)
        p("s_lshl_b32", self.sT1, self.sW, 12)
        p("s_add_u32", "m0", self.sT1, self.L_HA); p("s_add_u32", self.sT, sHX, self.sT1)
        for q in range(4): self.dma(self.WS, self.vL16, self.sT, 1024 * q, "HA", "sc1")
        sth = self.va(8, "sth", 1); self.stats_load(sth, sHS, 0)
        self.sp.free(sHX, sHS)
        tmp = self.va(1, "tmp")
        st = [self.va(4, "st") for t in range(2)]
        ad = self.va(2, "ad", 1)
        for t in range(2):
            self.stats_finish(st8[t], st[t], tmp)
            p("v_mul_f32", st[t][2], 0.25 if False else f2u(0.25), st[t][1])
        self.vp.free(st8[0]); self.vp.free(st8[1])
        p("s_lshl_b32", self.sT, self.sW, 7); p("s_add_u32", self.sT, self.sT, 64 + L_MISC)
        p("v_lshlrev_b32", ad[0], 2, self.vM); p("v_add_u32", ad[0], self.sT, ad[0])
        p("v_lshlrev_b32", ad[1], 4, self.vG); p("v_add_u32", ad[1], self.sT, ad[1])
        p("s_mov_b64", "exec", 0xFFFF)
        for t in range(2):
            p("ds_write_b32", ad[0], st[t][0], mods="offset:%d" % (L_RMEAN - L_MISC + 64 * t))
            p("ds_write_b32", ad[0], st[t][1], mods="offset:%d" % (L_RRSTD - L_MISC + 64 * t))
        p("s_mov_b64", "exec", -1)
        mN = [self.va(4, "mN") for t in range(2)]; rN = [self.va(4, "rN") for t in range(2)]
        for t in range(2):
            p("ds_read_b128", mN[t], ad[1], mods="offset:%d" % (L_RMEAN - L_MISC + 64 * t))
            p("ds_read_b128", rN[t], ad[1], mods="offset:%d" % (L_RRSTD - L_MISC + 64 * t))
        cs = [self.va(4, "cs") for nt in range(4)]; csV = [self.va(2, "csV") for h in range(2)]
        p("v_lshlrev_b32", ad[0], 4, self.vG); p("v_lshlrev_b32", ad[1], 2, self.vM)
        p("v_add_u32", ad[0], L_MISC, ad[0]); p("v_add_u32", ad[1], L_MISC, ad[1])
        for nt in range(4): p("ds_read_b128", cs[nt], ad[0], mods="offset:%d" % (L_CS1T - L_MISC + 64 * nt))
        for h in range(2): p("ds_read_b32", csV[h][0], ad[1], mods="offset:%d" % (L_CS1V - L_MISC + 64 * h))
        Q = [[self.va(2, "Q") for h in range(2)] for t in range(2)]
        K = [[self.va(2, "K") for h in range(2)] for t in range(2)]
        KV = [self.va(8, "KV") for h in range(2)]
        def lnT(dst2, a4, c4, pm, pr, prsel):
            for i in range(2):
                p("v_pk_fma_f32", a4[2 * i:2 * i + 2], c4[2 * i:2 * i + 2], pm, a4[2 * i:2 * i + 2], mods="op_sel_hi:[1,0,1] neg_lo:[0,1,0] neg_hi:[0,1,0]")
            for i in range(2):
                p("v_pk_mul_f32", a4[2 * i:2 * i + 2], a4[2 * i:2 * i + 2], pr, mods=("op_sel:[0,1] op_sel_hi:[1,1]" if prsel else "op_sel_hi:[1,0]"))
            for i in range(2): p("v_cvt_pk_bf16_f32", dst2[i], a4[2 * i], a4[2 * i + 1])
        def lnN(dst2, a4, cv, m4, r4):
            for i in range(2):
                p("v_pk_fma_f32", a4[2 * i:2 * i + 2], m4[2 * i:2 * i + 2], cv, a4[2 * i:2 * i + 2], mods="op_sel_hi:[1,0,1] neg_lo:[0,1,0] neg_hi:[0,1,0]")
            for i in range(2): p("v_pk_mul_f32", a4[2 * i:2 * i + 2], a4[2 * i:2 * i + 2], r4[2 * i:2 * i + 2])
            for i in range(2): p("v_cvt_pk_bf16_f32", dst2[i], a4[2 * i], a4[2 * i + 1])
        self.lnT, self.lnN = lnT, lnN
        for t in range(2):
            for h in range(2):
                lnT(Q[t][h], acc[t][h], cs[h], st[t][0:2], st[t][2:4], 0)
                lnT(K[t][h], acc[t][2 + h], cs[2 + h], st[t][0:2], st[t][0:2], 1)
                lnN(KV[h][4 + 2 * t:6 + 2 * t], acc[t][4 + h], csV[h], mN[t], rN[t])
        for t in range(2): self.vp.free(acc[t])
        self.vp.free(mN, rN, st)
        p("s_lshl_b32", self.sT, self.sW, 11); p("s_add_u32", self.sT, self.sT, self.L_EX + 2048)
        p("v_add_u32", ad[0], self.sT, self.vL16)
        for h in range(2):
            p("ds_write_b64", ad[0], K[1][h], mods="offset:%d" % (1024 * h))
            p("ds_write_b64", ad[0], KV[h][6:8], mods="offset:%d" % (1024 * h + 8))
        o4 = [self.va(4, "o4") for t in range(2)]
        self.attention([(Q[1][h], K[0][h], K[1][h], KV[h][4:8], self.vBiasP, o4[1][2 * h:2 * h + 2]) for h in range(2)])
        p.need("HA"); self.barrier()
        hst = self.va(4, "hst")
        self.stats_finish(sth, hst, tmp); self.vp.free(sth)
        p("v_lshlrev_b32", ad[0], 2, self.vM); p("v_lshlrev_b32", ad[1], 4, self.vG)
        p("v_add_u32", ad[0], L_MISC, ad[0]); p("v_add_u32", ad[1], L_MISC, ad[1])
        p("s_mov_b64", "exec", 0xFFFF)
        p("ds_write_b32", ad[0], hst[0], mods="offset:%d" % (L_RMEAN - L_MISC)); p("ds_write_b32", ad[0], hst[1], mods="offset:%d" % (L_RRSTD - L_MISC))
        p("s_mov_b64", "exec", -1)
        hb = self.va(2, "hb", 1); self.wave_tile_base(hb[0], 2); p("v_add_u32", hb[1], 49152, hb[0])
        hacc = self.va(4, "hacc"); fW = [self.aa(4, "fW") for _ in range(2)]; fX = [self.aa(4, "fX") for _ in range(2)]
        hp = self.va(2, "hp")
        xa = self.va(1, "xa"); p("v_add_u32", xa, self.L_HA, self.vL16)
        def mini(torient):
            def rd(s):
                hi, so = s // 8, (s % 8) * 6144
                p("ds_read_b64_tr_b16", fW[s % 2][0:2], hb[hi], mods="offset:%d" % so)
                p("ds_read_b64_tr_b16", fW[s % 2][2:4], hb[hi], mods="offset:%d" % (so + 3072))
                p("ds_read_b128", fX[s % 2], xa, mods="offset:%d" % (s * 1024))
            rd(0)
            for s in range(16):
                if s + 1 < 16: rd(s + 1)
                if torient: p(MFMA, hacc, fW[s % 2], fX[s % 2], hacc if s else 0)
                else: p(MFMA, hacc, fX[s % 2], fW[s % 2], hacc if s else 0)
            c4 = self.va(4, "c4")
            if torient:
                p("s_add_u32", self.sT, self.sW, 2); p("s_lshl_b32", self.sT, self.sT, 6)
                p("v_add_u32", xa, self.sT, ad[1]); p("ds_read_b128", c4, xa, mods="offset:%d" % (L_CS1T - L_MISC))
                lnT(hp, hacc, c4, hst[0:2], hst[0:2], 1)
            else:
                m4 = self.va(4, "m4"); r4 = self.va(4, "r4")
                p("ds_read_b128", m4, ad[1], mods="offset:%d" % (L_RMEAN - L_MISC)); p("ds_read_b128", r4, ad[1], mods="offset:%d" % (L_RRSTD - L_MISC))
                p("s_and_b32", self.sT, self.sW, 1); p("s_lshl_b32", self.sT, self.sT, 6)
                p("v_add_u32", xa, self.sT, ad[0]); p("ds_read_b32", c4[0], xa, mods="offset:%d" % (L_CS1V - L_MISC))
                lnN(hp, hacc, c4[0:2], m4, r4)
                self.vp.free(m4, r4)
            self.vp.free(c4)
        lN = p.newlabel("LhN"); lE = p.newlabel("LhE")
        p("s_cmp_ge_u32", self.sW, 2); p("s_cbranch_scc1", lN)
        mini(True); p("s_branch", lE); p.label(lN); mini(False); p.label(lE)
        p("s_and_b32", self.sT, self.sW, 1); p("s_lshl_b32", self.sT, self.sT, 10)
        p("s_lshr_b32", self.sT1, self.sW, 1); p("s_lshl_b32", self.sT1, self.sT1, 3)
        p("s_add_u32", self.sT, self.sT, self.sT1); p("s_add_u32", self.sT, self.sT, self.L_EX)
        p("v_add_u32", xa, self.sT, self.vL16)
        p("ds_write_b64", xa, hp)
        self.vp.free(hb, hacc, hp, hst, cs, csV); self.ap.free(fW, fX)
        p("s_waitcnt", "lgkmcnt(0)"); self.barrier()
        p("s_lshl_b32", self.sT, self.sW, 11); p("s_add_u32", self.sT, self.sT, self.L_EX)
        p("v_add_u32", xa, self.sT, self.vL16)
        for h in range(2): p("ds_read_b128", KV[h][0:4], xa, mods="offset:%d" % (1024 * h))
        sB = self.sa(1, "b2o"); sL = self.sa(1, "b2l")
        p("s_lshl_b32", sB, self.sW, 17); p("s_lshl_b32", sL, self.sW, 14)
        for i in range(4): self.job_rows128(self.WO, 32 * i, 4096 * i, "B2", sExtra=sB, sLdsExtra=sL)
        self.sp.free(sB, sL)
        self.attention([(Q[0][h], KV[h][0:2], K[0][h], KV[h][2:6], self.vBiasP0, o4[0][2 * h:2 * h + 2]) for h in range(2)])
        p("s_lshl_b32", self.sT, self.sW, 15); p("s_add_u32", self.sT, self.sT, self.sOc)
        p("s_lshl_b32", self.sT1, self.sJ, 10); p("s_add_u32", self.sT3, self.sT, self.sT1)
        p("s_add_u32", self.sT1, self.sT3, 16384)
        def st_o(m):
            p("buffer_store_dwordx4", o4[0], self.vL16, self.WS, self.sT3, mods=("offen " + m).strip(), token="ost")
            p("buffer_store_dwordx4", o4[1], self.vL16, self.WS, self.sT1, mods=("offen " + m).strip(), token="ost")
        self.dual_store(st_o)
        self.vp.free(Q, K, KV, o4, tmp, ad, xa)
        p.need("ost", "B2"); self.barrier()
        self.stamp("p1done")

    def attention(self, units):
        p = self.p
        if not hasattr(self, "sL2E"):
            raise RuntimeError
        streams = []; frees = []
        for (Q, Kp, Kc, V4, bP, out) in units:
            q = Prog()
            Sp = self.va(4, "Sp"); Sc = self.va(4, "Sc"); m = self.va(2, "m"); t = self.va(1, "t"); P = self.va(4, "P"); O = self.va(4, "O"); Sm = self.va(4, "Sm")
            q(MFMA16, Sp, Kp, Q, bP); q(MFMA16, Sc, Kc, Q, self.vBiasC)
            q("v_max3_f32", m[0], Sp[0], Sp[1], Sp[2]); q("v_max3_f32", m[0], m[0], Sp[3], Sc[0])
            q("v_max3_f32", m[0], m[0], Sc[1], Sc[2]); q("v_max_f32", m[0], m[0], Sc[3])
            q("v_mov_b32", t, m[0]); q("v_permlane16_swap_b32", m[0], t); q("v_max_f32", m[0], m[0], t)
            q("v_mov_b32", t, m[0]); q("v_permlane32_swap_b32", m[0], t); q("v_max_f32", m[0], m[0], t)
            q("v_mul_f32", m[0], self.sL2E[1], m[0])
            for Sx in (Sp, Sc):
                for i in range(2):
                    q("v_pk_fma_f32", Sx[2 * i:2 * i + 2], Sx[2 * i:2 * i + 2], self.sL2E, m, mods="op_sel_hi:[1,0,0]")
            for Sx in (Sp, Sc):
                for i in range(4): q("v_exp_f32", Sx[i], Sx[i])
            q("v_cvt_pk_bf16_f32", P[0], Sp[0], Sp[1]); q("v_cvt_pk_bf16_f32", P[1], Sp[2], Sp[3])
            q("v_cvt_pk_bf16_f32", P[2], Sc[0], Sc[1]); q("v_cvt_pk_bf16_f32", P[3], Sc[2], Sc[3])
            q(MFMA, Sm, self.vOnes, P, 0); q(MFMA, O, V4, P, 0)
            q("v_rcp_f32", m[0], Sm[0])
            for i in range(2): q("v_pk_mul_f32", O[2 * i:2 * i + 2], O[2 * i:2 * i + 2], m, mods="op_sel_hi:[1,0]")
            for i in range(2): q("v_cvt_pk_bf16_f32", out[i], O[2 * i], O[2 * i + 1])
            streams.append(q.take()); frees.append([Sp, Sc, m, t, P, O, Sm])
        n = max(len(s) for s in streams)
        for i in range(n):
            for s in streams:
                if i < len(s): p.ins.append(s[i])
        for f in frees: self.vp.free(f)

    def handoff(self, pub_off, between=None, need=()):
        p = self.p
        p("s_add_u32", self.sT3, self.sPh, pub_off)
        l1 = p.newlabel("Lh"); le = p.newlabel("Lhe")
        p("s_cmp_lg_u32", self.sW, 0); p("s_cbranch_scc1", l1)
        self.publish(self.sT3); self.poll(self.sT3)
        p("s_branch", le); p.label(l1)
        if between: between()
        p.label(le)
        if need: p.need(*need)
        self.barrier()
    def split3(self, items):
        n = len(items); cut = [0, (n + 2) // 3, (2 * n + 2) // 3, n]
        self.by_wave({w: (lambda w=w: [f() for f in items[cut[w - 1]:cut[w]]]) for w in (1, 2, 3)})

    def gemm64(self, nsteps, sAbase, a_tile_stride, lds_of, mid=None):
        p = self.p
        aX = [[self.aa(4, "aX") for s in range(nsteps)] for t in range(2)]
        aB = [self.aa(4, "aB") for nt in range(4)]
        acc = [[self.va(4, "acc") for nt in range(4)] for t in range(2)]
        sO = [self.sa(1, "ao") for _ in range(2)]
        p("s_lshl_b32", self.sT, self.sMH, 1); p("s_add_u32", self.sT1, self.sT, self.sKH)
        p("s_mul_i32", self.sT1, self.sT1, a_tile_stride); p("s_add_u32", sO[0], sAbase, self.sT1)
        p("s_add_u32", self.sT, self.sT, 1); p("s_sub_u32", self.sT, self.sT, self.sKH)
        p("s_mul_i32", self.sT1, self.sT, a_tile_stride); p("s_add_u32", sO[1], sAbase, self.sT1)
        self.a_loads(aX, sO, nsteps)
        self.sp.free(sO)
        def rdB(s, nt):
            b, so = lds_of(s, nt)
            p("ds_read_b64_tr_b16", aB[nt][0:2], b, mods="offset:%d" % so)
            p("ds_read_b64_tr_b16", aB[nt][2:4], b, mods="offset:%d" % (so + 2048))
        for nt in range(4): rdB(0, nt)
        for s in range(nsteps):
            for nt in range(4):
                for t in range(2): p(MFMA, acc[t][nt], aB[nt], aX[t][s], acc[t][nt] if s else 0)
                if s + 1 < nsteps:
                    if nt == 0 and mid: mid(s)
                    rdB(s + 1, nt)
        for t in range(2): self.ap.free(aX[t])
        self.ap.free(aB)
        return acc
    def reduce64(self, acc, scratch):
        p = self.p
        ad = self.va(1, "ad")
        p("s_lshl_b32", self.sT, self.sW, 12); p("s_add_u32", self.sT, self.sT, scratch)
        p("v_add_u32", ad, self.sT, self.vL16)
        for nt in range(4): p("ds_write_b128", ad, acc[1][nt], mods="offset:%d" % (1024 * nt))
        for nt in range(4):
            for i in range(2): p("v_pk_add_f32", acc[0][nt][2 * i:2 * i + 2], acc[0][nt][2 * i:2 * i + 2], self.vResF[4 * nt + 2 * i:4 * nt + 2 * i + 2])
        p("s_xor_b32", self.sT, self.sW, 1); p("s_lshl_b32", self.sT, self.sT, 12); p("s_add_u32", self.sT, self.sT, scratch)
        p("v_add_u32", ad, self.sT, self.vL16)
        p("s_waitcnt", "lgkmcnt(0)"); self.barrier()
        for nt in range(4): p("ds_read_b128", acc[1][nt], ad, mods="offset:%d" % (1024 * nt))
        xp = self.va(8, "xp")
        for nt in range(4):
            for i in range(2): p("v_pk_add_f32", acc[0][nt][2 * i:2 * i + 2], acc[0][nt][2 * i:2 * i + 2], acc[1][nt][2 * i:2 * i + 2])
            for i in range(2): p("v_cvt_pk_bf16_f32", xp[2 * nt + i], acc[0][nt][2 * i], acc[0][nt][2 * i + 1])
        self.vp.free(ad, acc[0], acc[1])
        return xp
    def unpack_resid(self, xp):
        for i in range(8):
            self.p("v_lshlrev_b32", self.vResF[2 * i], 16, xp[i]); self.p("v_and_b32", self.vResF[2 * i + 1], 0xffff0000, xp[i])
    def store_x(self, xp, sX, sST, token):
        p = self.p
        tmp = self.va(4, "tmp"); sv = self.va(1, "sv")
        sa_ = self.sa(1, "xa"); sb_ = self.sa(1, "xb")
        p("s_lshl_b32", self.sT, self.sOwn, 14); p("s_add_u32", sa_, self.sT, sX); p("s_lshl_b32", self.sT1, self.sJJ, 11); p("s_add_u32", sa_, sa_, self.sT1)
        p("s_lshl_b32", self.sT, self.sOwn, 11); p("s_add_u32", sb_, self.sT, sST); p("s_lshl_b32", self.sT1, self.sJJ, 8); p("s_add_u32", sb_, sb_, self.sT1)
        self.stats_of_frags([xp[0:4], xp[4:8]], sv, tmp)
        def st(m):
            p("buffer_store_dwordx4", xp[0:4], self.vL16, self.WS, sa_, mods=("offen " + m).strip(), token=token)
            p("buffer_store_dwordx4", xp[4:8], self.vL16, self.WS, sa_, mods=("offen offset:1024 " + m).strip(), token=token)
            p("buffer_store_dword", sv, self.vSt, self.WS, sb_, mods=("offen " + m).strip(), token=token)
        self.dual_store(st)
        self.vp.free(tmp); self.sp.free(sa_, sb_)
        return sv

    L_B3 = {}
    def b3_slot(self, s):
        if s < 6: return 81920 + 11264 * s
        if s < 11: return 11264 * (s - 6)
        if s < 13: return 56320 + 11264 * (s - 11)
        return 81920 + 11264 * (s - 13)
    def b3_items(self, steps):
        items = []
        for s in steps:
            for i0 in range(0, 11, 4):
                n = min(4, 11 - i0)
                def f(s=s, i0=i0, n=n):
                    self.job_linear(self.sW3, s * 11264 + i0 * 1024, self.b3_slot(s) + i0 * 1024, n, "B3")
                items.append(f)
        return items

    def p2(self):
        p = self.p
        vb = self.va(4, "vb", 1)
        p("s_lshl_b32", self.sT, self.sKH, 15)
        for nt in range(4): p("v_add_u32", vb[nt], self.sT, self.vT2[nt])
        sA = self.sa(1, "p2a")
        p("s_lshl_b32", self.sT, self.sI, 16); p("s_add_u32", sA, self.sT, self.sOc)
        p("s_lshl_b32", self.sT, self.sKH, 13); p("s_add_u32", sA, sA, self.sT)
        acc = self.gemm64(8, sA, 16384, lambda s, nt: (vb[nt], s * 4096))
        self.sp.free(sA); self.vp.free(vb)
        self.stamp("p2main")
        xp = self.reduce64(acc, 65536)
        sv = self.store_x(xp, self.sXmid, self.sSTmid, "xst")
        p.need("xst"); self.barrier()
        self.vp.free(sv)
        self.unpack_resid(xp); self.vp.free(xp)
        self.stamp("p2done")

    def csum3(self):
        p = self.p
        ad = self.va(1, "ad"); v = [self.va(4, "c3") for _ in range(4)]; la = self.va(1, "la")
        p("v_lshlrev_b32", ad, 10, self.vM); p("v_lshlrev_b32", la, 4, self.vG); p("v_add_u32", ad, ad, la)
        p("s_lshl_b32", self.sT3, self.sJ, 14); p("s_add_u32", self.sT3, self.sT3, WS_W3CS)
        p("s_sub_u32", self.sT, self.sW, 1); p("s_lshl_b32", self.sT, self.sT, 6); p("s_add_u32", self.sT3, self.sT3, self.sT)
        for n in range(4):
            p("buffer_load_dwordx4", v[n], ad, self.WS, self.sT3, mods="offen offset:%d sc1" % (192 * n))
        for rot in (8, 4, 2, 1):
            for n in range(4):
                for r in range(4):
                    p("v_add_f32_dpp", v[n][r], v[n][r], v[n][r], mods="row_ror:%d row_mask:0xf bank_mask:0xf" % rot)
        p("s_add_u32", self.sT, self.sT, L_MISC); p("v_add_u32", la, self.sT, la)
        p("s_mov_b32", "exec_lo", 0x00010001); p("s_mov_b32", "exec_hi", 0x00010001)
        for n in range(3): p("ds_write_b128", la, v[n], mods="offset:%d" % (L_CS3 - L_MISC + 192 * n))
        def last(): p("ds_write_b128", la, v[3], mods="offset:%d" % (L_CS3 - L_MISC + 576))
        self.if_wave(3, last, eq=False)
        p("s_mov_b64", "exec", -1)
        p("s_waitcnt", "lgkmcnt(0)")
        self.vp.free(ad, v, la)
    def h_offsets(self):
        p = self.p
        self.vH4 = self.va(1, "vH4"); self.vHm = self.va(1, "vHm")
        t = self.va(4, "t")
        def pos(dst, lam):
            p("v_lshrrev_b32", t[1], 2, lam); p("v_add_u32", t[1], 32, t[1]); p("v_lshlrev_b32", t[1], 10, t[1])
            p("v_and_b32", t[2], 1, lam); p("v_lshlrev_b32", t[2], 1, t[2]); p("v_and_b32", t[3], 1, self.vG)
            p("v_add_u32", t[2], t[2], t[3]); p("v_lshlrev_b32", t[2], 4, t[2]); p("v_add_u32", t[2], t[2], self.vM)
            p("v_lshlrev_b32", t[2], 4, t[2]); p("v_add_u32", t[1], t[1], t[2])
            p("v_and_b32", t[2], 2, lam); p("v_lshlrev_b32", t[2], 2, t[2]); p("v_add_u32", dst, t[1], t[2])
        p("s_mul_i32", self.sT, self.sJ, 3)
        p("v_lshrrev_b32", t[0], 1, self.vG); p("v_add_u32", t[0], self.sT, t[0]); pos(self.vH4, t[0])
        p("s_add_u32", self.sT, self.sT, 2); p("v_mov_b32", t[0], self.sT); pos(self.vHm, t[0])
        p("v_lshrrev_b32", t[0], 5, self.vLane); p("v_mul_u32_u24", t[0], HSTEPS * 1024, t[0]); p("v_add_u32", self.vHm, self.vHm, t[0])
        self.vp.free(t)
    def p3(self):
        p = self.p
        aX = [[self.aa(4, "aX") for s in range(16)] for t in range(2)]
        aB = [self.aa(4, "aB") for nt in range(11)]
        acc = [[self.va(4, "acc") for nt in range(11)] for t in range(2)]
        sA = [self.sa(1, "p3a") for _ in range(2)]
        p("s_lshl_b32", self.sT, self.sW, 15); p("s_add_u32", sA[0], self.sT, self.sXmid); p("s_add_u32", sA[0], sA[0], 16384)
        p("s_add_u32", sA[1], sA[0], 16384)
        self.a_loads(aX, sA, 16)
        st8 = [self.va(8, "st8", 1) for t in range(2)]
        p("s_lshl_b32", self.sT, self.sW, 12); p("s_add_u32", sA[0], self.sT, self.sSTmid); p("s_add_u32", sA[0], sA[0], 2048)
        for t in range(2): self.stats_load(st8[t], sA[0], t * 2048)
        self.sp.free(sA)
        lb = self.va(2, "lb", 1)
        p("v_add_u32", lb[0], 65536, self.vL16); p("v_add_u32", lb[1], 131072, self.vL16)
        def rdB(s, nt):
            a = self.b3_slot(s) + nt * 1024
            b = (self.vL16, lb[0], lb[1])[a >> 16]
            p("ds_read_b128", aB[nt], b, mods="offset:%d" % (a & 0xffff))
        for nt in range(11): rdB(0, nt)
        for s in range(16):
            if s == 4:
                self.barrier()
                items = self.b3_items([13, 14, 15])
                self.by_wave({w: (lambda w=w: [f() for f in items[w::4]]) for w in range(4)})
            if s == 12:
                p.need("B3"); self.barrier()
            for nt in range(11):
                for t in range(2): p(MFMA, acc[t][nt], aB[nt], aX[t][s], acc[t][nt] if s else 0)
                if s + 1 < 16: rdB(s + 1, nt)
        self.stamp("p3main")
        for t in range(2): self.ap.free(aX[t])
        self.ap.free(aB); self.vp.free(lb)
        self.barrier()
        items = []
        for i in range(19):
            for kh in range(2):
                items.append(lambda i=i, kh=kh: self.job_b4_step(22 * kh + i, kh * 77824 + i * 4096, "B4"))
        self.b4_items = items
        n_early = 16
        self.by_wave({w: (lambda w=w: [f() for f in items[:n_early][w::4]]) for w in range(4)})
        self.b4_rest = items[n_early:]
        tmp = self.va(1, "tmp"); st = [self.va(4, "st") for t in range(2)]
        for t in range(2):
            self.stats_finish(st8[t], st[t], tmp)
            p("v_mul_f32", st[t][3], tmp, st[t][1])
            p("v_mul_f32", st[t][2], self.sL2E[1], st[t][1])
        self.vp.free(st8[0], st8[1])
        ad = self.va(1, "ad"); p("v_lshlrev_b32", ad, 4, self.vG); p("v_add_u32", ad, L_MISC, ad)
        hp = [self.va(4, "hp") for _ in range(2)]
        sH = [self.sa(1, "h") for _ in range(2)]
        p("s_lshl_b32", self.sT, self.sW, 1); p("s_mul_i32", self.sT, self.sT, HSTEPS * 1024); p("s_add_u32", sH[0], self.sT, self.sHc)
        p("s_add_u32", sH[1], sH[0], HSTEPS * 1024)
        sHf = [self.sa(1, "hf") for _ in range(2)]
        p("s_lshl_b32", self.sT, self.sJ, 11)
        for t in range(2): p("s_add_u32", sHf[t], sH[t], self.sT)
        NEGM = "op_sel_hi:[1,0,1] neg_lo:[0,1,0] neg_hi:[0,1,0]"
        def glu(t, i, dst2, cg, cu):
            Gt, U = acc[t][2 * i], acc[t][2 * i + 1]
            for a in range(2): p("v_pk_fma_f32", Gt[2 * a:2 * a + 2], cg[2 * a:2 * a + 2], st[t][0:2], Gt[2 * a:2 * a + 2], mods=NEGM)
            for a in range(2): p("v_pk_mul_f32", Gt[2 * a:2 * a + 2], Gt[2 * a:2 * a + 2], st[t][2:4], mods="op_sel_hi:[1,0]")
            for a in range(4): p("v_exp_f32", Gt[a], Gt[a])
            for a in range(2): p("v_pk_fma_f32", U[2 * a:2 * a + 2], cu[2 * a:2 * a + 2], st[t][0:2], U[2 * a:2 * a + 2], mods=NEGM)
            for a in range(2): p("v_pk_fma_f32", Gt[2 * a:2 * a + 2], Gt[2 * a:2 * a + 2], st[t][2:4], st[t][2:4], mods="op_sel:[0,1,1] op_sel_hi:[1,1,1]")
            for a in range(4): p("v_rcp_f32", Gt[a], Gt[a])
            for a in range(2): p("v_pk_mul_f32", U[2 * a:2 * a + 2], U[2 * a:2 * a + 2], Gt[2 * a:2 * a + 2])
            for a in range(2): p("v_cvt_pk_bf16_f32", dst2[a], U[2 * a], U[2 * a + 1])
        cg = self.va(4, "cg"); cu = self.va(4, "cu")
        stores = []
        for i in range(5):
            p("ds_read_b128", cg, ad, mods="offset:%d" % (L_CS3 - L_MISC + 128 * i)); p("ds_read_b128", cu, ad, mods="offset:%d" % (L_CS3 - L_MISC + 128 * i + 64))
            for t in range(2):
                if i < 4: dst = hp[t][2 * (i & 1):2 * (i & 1) + 2]
                else: dst = hp[t][0:2]
                glu(t, i, dst, cg, cu)
                if i in (1, 3):
                    def stf(m, t=t, i=i): p("buffer_store_dwordx4", hp[t], self.vL16, self.WS, sHf[t], mods=("offen offset:%d " % (1024 * (i >> 1)) + m).strip(), token="hst")
                    self.dual_store(stf)
                elif i == 4:
                    def stf(m, t=t): p("buffer_store_dwordx2", hp[t][0:2], self.vH4, self.WS, sH[t], mods=("offen " + m).strip(), token="hst")
                    self.dual_store(stf)
        p("ds_read_b128", cg, ad, mods="offset:%d" % (L_CS3 - L_MISC + 640))
        for t in range(2):
            M = acc[t][10]
            for a in range(2): p("v_pk_fma_f32", M[2 * a:2 * a + 2], cg[2 * a:2 * a + 2], st[t][0:2], M[2 * a:2 * a + 2], mods=NEGM)
            for a in range(2): p("v_pk_mul_f32", M[2 * a:2 * a + 2], M[2 * a:2 * a + 2], st[t][0:2], mods="op_sel:[0,1] op_sel_hi:[1,1]")
        X, Y = acc[0][10], acc[1][10]
        for a in range(4): p("v_permlane32_swap_b32", X[a], Y[a])
        for a in range(4): p("v_mul_f32", X[a], self.sL2E[1], X[a])
        for a in range(4): p("v_exp_f32", X[a], X[a])
        for a in range(2): p("v_pk_add_f32", X[2 * a:2 * a + 2], X[2 * a:2 * a + 2], 1.0, mods="op_sel_hi:[1,0]")
        for a in range(4): p("v_rcp_f32", X[a], X[a])
        for a in range(2): p("v_pk_mul_f32", Y[2 * a:2 * a + 2], Y[2 * a:2 * a + 2], X[2 * a:2 * a + 2])
        hm = self.va(2, "hm")
        for a in range(2): p("v_cvt_pk_bf16_f32", hm[a], Y[2 * a], Y[2 * a + 1])
        def stm(m): p("buffer_store_dwordx2", hm, self.vHm, self.WS, sH[0], mods=("offen " + m).strip(), token="hst")
        self.dual_store(stm)
        p.need("hst"); self.barrier()
        for t in range(2): self.vp.free(acc[t])
        self.vp.free(tmp, st, ad, hp, cg, cu, hm); self.sp.free(sH, sHf)
        self.stamp("p3done")

    def p4(self):
        p = self.p
        vb = self.va(8, "vb", 1)
        p("s_mul_i32", self.sT, self.sKH, 77824)
        for nt in range(4):
            p("v_add_u32", vb[nt], self.sT, self.vT2[nt]); p("v_add_u32", vb[4 + nt], 65536, vb[nt])
        sA = self.sa(1, "p4a")
        p("s_lshl_b32", self.sT, self.sI, 2); p("s_mul_i32", self.sT, self.sT, HSTEPS * 1024); p("s_add_u32", sA, self.sT, self.sHc)
        p("s_mul_i32", self.sT, self.sKH, 22 * 1024); p("s_add_u32", sA, sA, self.sT)
        def lds_of(s, nt):
            a = (s % 19) * 4096
            return (vb[nt], a) if a + 2048 < 65536 else (vb[4 + nt], a - 65536)
        def mid(s):
            if s == 4:
                self.barrier()
                its = [(lambda i=i, kh=kh: self.job_b4_step(22 * kh + i, kh * 77824 + (i - 19) * 4096, "B4b")) for i in range(19, 22) for kh in range(2)]
                self.by_wave({w: (lambda w=w: [f() for f in its[w::4]]) for w in range(4)})
            if s == 17:
                p.need("B4b"); self.barrier()
        acc = self.gemm64(22, sA, HSTEPS * 1024, lds_of, mid)
        self.sp.free(sA); self.vp.free(vb)
        self.stamp("p4main")
        self.barrier()
        xp = self.reduce64(acc, 0)
        return xp

    def store_out(self, xp):
        p = self.p
        for b in range(2):
            p("v_permlane16_swap_b32", xp[4 * b], xp[4 * b + 2]); p("v_permlane16_swap_b32", xp[4 * b + 1], xp[4 * b + 3])
        ad = self.va(2, "ad", 1)
        p("s_lshl_b32", self.sT, self.sC, 7); p("s_lshl_b32", self.sT1, self.sOwn, 4); p("s_add_u32", self.sT, self.sT, self.sT1); p("s_sub_u32", self.sT, self.sT, 16)
        p("v_add_u32", ad[0], self.sT, self.vM); p("v_lshlrev_b32", ad[0], 10, ad[0])
        p("v_and_b32", ad[1], 1, self.vG); p("v_lshlrev_b32", ad[1], 5, ad[1]); p("v_add_u32", ad[0], ad[0], ad[1])
        p("v_lshrrev_b32", ad[1], 1, self.vG); p("v_lshlrev_b32", ad[1], 4, ad[1]); p("v_add_u32", ad[0], ad[0], ad[1])
        p("s_lshl_b32", self.sT, self.sJJ, 7)
        for b in range(2):
            p("buffer_store_dwordx4", xp[4 * b:4 * b + 4], ad[0], self.OUT, self.sT, mods="offen offset:%d" % (64 * b))
        self.vp.free(ad)
    def halo_export(self, xp, sv):
        p = self.p
        def f():
            p("s_add_u32", self.sT, self.sXout, XSZ); p("s_lshl_b32", self.sT1, self.sJJ, 11); p("s_add_u32", self.sT3, self.sT, self.sT1)
            p("buffer_store_dwordx4", xp[0:4], self.vL16, self.WS, self.sT3, mods="offen " + WT, token="xst")
            p("buffer_store_dwordx4", xp[4:8], self.vL16, self.WS, self.sT3, mods="offen offset:1024 " + WT, token="xst")
            p("s_add_u32", self.sT, self.sSTout, STSZ); p("s_lshl_b32", self.sT1, self.sJJ, 8); p("s_add_u32", self.sT3, self.sT, self.sT1)
            p("buffer_store_dword", sv, self.vSt, self.WS, self.sT3, mods="offen " + WT, token="xst")
        def g():
            self.if_scalar("lt", self.sC, 15, f)
        self.if_scalar("eq", self.sOwn, 8, g)
    def dump_stamps(self):
        if not self.o.stamps: return
        p = self.p
        def f():
            t = self.va(1, "t")
            p("s_lshl_b32", self.sT, S(2), 8); p("s_add_u32", self.sT, self.sT, WS_STAMP)
            p("v_lshlrev_b32", t, 2, self.vLane)
            p("buffer_store_dword", self.vStamp, t, self.WS, self.sT, mods="offen")
            self.vp.free(t)
        self.if_wave(0, f)
    def build(self):
        p, o = self.p, self.o
        self.prologue()
        self.consts()
        self.h_offsets()
        self.sL2E = self.sp.alloc(2, 2, "l2e"); p("s_mov_b32", self.sL2E[0], f2u(LOG2E)); p("s_mov_b32", self.sL2E[1], f2u(-LOG2E))
        self.sW3 = self.sa(1, "w3"); p("s_mul_i32", self.sW3, self.sJ, W3SZ); p("s_add_u32", self.sW3, self.sW3, WS_W3)
        self.startup()
        self.entry()
        def stop(n):
            if o.upto == n:
                p("s_branch", "L_fin"); return True
            return False
        p.label("L_layer")
        self.layer_bases()
        self.p1()
        def w1():
            self.split3(self.b3_items(range(6)))
            self.if_scalar("eq", self.sLayer, 0, self.csum3)
        self.handoff(2, w1)
        self.stamp("h12")
        if not stop(1):
            self.p2()
            self.handoff(3, lambda: self.split3(self.b3_items(range(6, 13))), need=("B3",))
            self.stamp("h23")
        if o.upto not in (1,) and not stop(2):
            self.p3()
            self.handoff(4, lambda: self.split3(self.b4_rest), need=("B4",))
            self.stamp("h34")
        if o.upto not in (1, 2) and not stop(3):
            xp = self.p4()
            lout = p.newlabel("Lout")
            p("s_cmp_eq_u32", self.sLayer, 1); p("s_cbranch_scc1", lout)
            sv = self.store_x(xp, self.sXout, self.sSTout, "xst")
            self.halo_export(xp, sv)
            p.need("xst"); self.barrier()
            self.vp.free(sv)
            self.stamp("p4done")
            def hpub():
                p("s_add_u32", self.sT3, self.sC, 1)
                sN = self.sa(1, "cn"); p("s_mov_b32", sN, self.sT3)
                self.publish(5, base=WS_FLAG_H, sIdx=sN, sSub=self.sJJ, force_wt=True)
                self.sp.free(sN)
            def hp():
                self.if_scalar("eq", self.sI, 1, lambda: self.if_scalar("lt", self.sC, 15, hpub))
            self.if_wave(0, hp)
            self.unpack_resid(xp)
            self.handoff(5, lambda: self.split3([(lambda st=st: self.job_b1_abs(st)) for st in range(16)]), need=("B1",))
            self.stamp("h41")
            if o.upto == 4: p("s_branch", "L_fin")
            p("s_mov_b32", self.sLayer, 1)
            p("s_branch", "L_layer")
            p.label(lout)
            self.store_out(xp)
            self.vp.free(xp)
        p.label("L_fin")
        self.stamp("end")
        self.dump_stamps()
        p.label("L_exit")
        p("s_endpgm")
    def job_b1_abs(self, st):
        p = self.p
        for half in range(2):
            p("s_mov_b32", "m0", st * 6144 + half * 3072)
            p("s_mov_b32", self.sT, (32 * st + 16 * half) * 3072)
            for u in range(3): self.dma(self.WQKV, self.vB1[u], self.sT, 1024 * u, "B1")

def emit(opt):
    g = G(opt); g.build()
    ins = finalize(g.p.ins)
    errs = check_loop(ins, "L_layer")
    if errs:
        print("LOOP CHECK:", len(errs)); print("\n".join(errs[:20]))
    hdr = open(opt.header).read() if opt.header else ""
    body = to_text(ins)
    txt = hdr
    txt += '.amdgcn_target "amdgcn-amd-amdhsa--gfx950"\n.text\n.globl %s\n.p2align 8\n.type %s,@function\n%s:\n' % (KNAME, KNAME, KNAME)
    txt += body
    txt += '''.section .rodata,"a"
.p2align 6
.amdhsa_kernel %s
  .amdhsa_next_free_vgpr 512
  .amdhsa_next_free_sgpr 102
  .amdhsa_accum_offset 256
  .amdhsa_group_segment_fixed_size 0
  .amdhsa_kernarg_size 80
  .amdhsa_user_sgpr_count 2
  .amdhsa_user_sgpr_kernarg_segment_ptr 1
  .amdhsa_system_sgpr_workgroup_id_x 1
  .amdhsa_float_denorm_mode_32 3
.end_amdhsa_kernel
''' % KNAME
    return txt, g, ins

if __name__ == "__main__":
    ap = argparse.ArgumentParser()
    ap.add_argument("-o", default="out.s"); ap.add_argument("--upto", type=int, default=99)
    ap.add_argument("--stamps", action="store_true"); ap.add_argument("--slow", action="store_true")
    ap.add_argument("--header", default="header.txt")
    opt = ap.parse_args()
    txt, g, ins = emit(opt)
    open(opt.o, "w").write(txt)
    nb = sum(1 for i in ins if i.op not in ("label", "raw", "need"))
    print("instructions:", nb, "vgpr high", g.vp.high, "agpr high", g.ap.high, "sgpr high", g.sp.high)
    if opt.stamps: open(opt.o + ".stamps", "w").write("\n".join(g.stamp_names))
```

```python
import sys, argparse
from fw import *
from layout import *

KNAME = "interleave_layers__sliding_local_dilated__glu_gated_glu__prompt_kernel"
NEG = 0xF149F2CA
LOG2E = 1.4426950408889634
import struct
def f2u(x): return struct.unpack("<I", struct.pack("<f", x))[0]
MFMA = "v_mfma_f32_16x16x32_bf16"
MFMA16 = "v_mfma_f32_16x16x16_bf16"
WT = "sc0 sc1"
SPIN_MAX = 200000

class G:
    def __init__(self, opt):
        self.o = opt
        self.p = Prog()
        self.vp = Pool("v", 1, 256)
        self.ap = Pool("a", 0, 256)
        self.sp = Pool("s", 44, 100)
        self.stamp_names = []
    def va(self, n=1, name="?", align=None): return self.vp.alloc(n, align, name)
    def aa(self, n=1, name="?"): return self.ap.alloc(n, 2 if n < 4 else 4, name)
    def sa(self, n=1, name="?"): return self.sp.alloc(n, None, name)
    def stamp(self, name):
        if not self.o.stamps: return
        p = self.p
        self.stamp_names.append(name)
        p("s_memrealtime", self.sT2)
        p("s_waitcnt", "lgkmcnt(0)")
        p("s_mov_b32", "m0", self.sStampIdx); p("s_nop", 3); p("v_writelane_b32", self.vStamp, self.sT2[0], "m0")
        p("s_add_u32", self.sStampIdx, self.sStampIdx, 1)
        if name in ("start", "end", "p3s", "p3main"):
            p("s_memtime", self.sT2); p("s_waitcnt", "lgkmcnt(0)")
            p("v_writelane_b32", self.vStamp, self.sT2[0], {"start": 60, "end": 61, "p3s": 62, "p3main": 63}[name])
    def srd(self, dst, lo, nbytes):
        p = self.p
        p("s_mov_b32", dst[0], lo[0]); p("s_and_b32", dst[1], lo[1], 0xffff)
        p("s_mov_b32", dst[2], nbytes); p("s_mov_b32", dst[3], 0x20000)
    def if_wave(self, w, fn, eq=True):
        p = self.p; l = p.newlabel("Lw")
        p("s_cmp_lg_u32" if eq else "s_cmp_eq_u32", self.sW, w)
        p("s_cbranch_scc1", l); fn(); p.label(l)
    def by_wave(self, blocks):
        p = self.p; end = p.newlabel("Lwe"); items = list(blocks.items())
        for n, (w, fn) in enumerate(items):
            nxt = p.newlabel("Lw")
            p("s_cmp_lg_u32", self.sW, w); p("s_cbranch_scc1", nxt)
            fn()
            if n != len(items) - 1: p("s_branch", end)
            p.label(nxt)
        p.label(end)
    def if_scalar(self, cmp, a, b, fn):
        p = self.p; l = p.newlabel("Li")
        inv = {"eq": "lg", "lg": "eq", "lt": "ge", "ge": "lt"}[cmp]
        p("s_cmp_%s_u32" % inv, a, b); p("s_cbranch_scc1", l); fn(); p.label(l)
    def dual_store(self, emit):
        p = self.p; slow = p.newlabel("Lsl"); end = p.newlabel("Lse")
        p("s_cmp_eq_u32", self.sFast, 0); p("s_cbranch_scc1", slow)
        emit(""); p("s_branch", end); p.label(slow); emit(WT); p.label(end)
    def barrier(self): self.p("s_barrier")

    def prologue(self):
        p = self.p
        self.X0, self.WQKV, self.WO, self.WG, self.WU, self.WD, self.OUT, self.WS, self.DBG = [S(8 + 4 * i, 4) for i in range(9)]
        self.sT3 = S(3); self.sT = S(4); self.sT1 = S(5); self.sT2 = S(6, 2)
        p("s_cmp_ge_u32", S(2), 256)
        p("s_cbranch_scc1", "L_exit")
        ka = self.sp.alloc(16, 4, "ka"); kb = self.sp.alloc(4, 4, "kb")
        p("s_load_dwordx16", ka, S(0, 2), 0)
        p("s_load_dwordx4", kb, S(0, 2), 64)
        for n in "C J W XCC Nonce Fast Layer I JJ MH KH StampIdx Xb STb Ob Hb Own Spin".split():
            setattr(self, "s" + n, self.sp.alloc(1, None, n))
        self.vLane = self.va(1, "lane"); self.vM = self.va(1, "m"); self.vG = self.va(1, "g")
        self.vL16 = self.va(1, "l16"); self.vOnes = self.va(4, "ones"); self.vZero = self.va(1, "zero")
        t = self.va(1, "t")
        p("v_lshrrev_b32", t, 6, V(0))
        p("v_and_b32", self.vLane, 63, V(0))
        p("v_readfirstlane_b32", self.sW, t)
        p("v_and_b32", self.vM, 15, self.vLane)
        p("v_lshrrev_b32", self.vG, 4, self.vLane)
        p("v_lshlrev_b32", self.vL16, 4, self.vLane)
        p("v_mov_b32", self.vZero, 0)
        for i in range(4): p("v_mov_b32", self.vOnes[i], 0x3F803F80)
        p("s_getreg_b32", self.sXCC, "hwreg(HW_REG_XCC_ID, 0, 4)")
        p("s_and_b32", self.sT, S(2), 7); p("s_lshl_b32", self.sT, self.sT, 1)
        p("s_lshr_b32", self.sT1, S(2), 7); p("s_add_u32", self.sC, self.sT, self.sT1)
        p("s_lshr_b32", self.sJ, S(2), 3); p("s_and_b32", self.sJ, self.sJ, 15)
        p("s_lshr_b32", self.sI, self.sJ, 3); p("s_and_b32", self.sJJ, self.sJ, 7)
        p("s_lshr_b32", self.sMH, self.sW, 1); p("s_and_b32", self.sKH, self.sW, 1)
        p("s_mov_b32", self.sLayer, 0); p("s_mov_b32", self.sFast, 0); p("s_mov_b32", self.sStampIdx, 0)
        p("s_mul_i32", self.sXb, self.sC, XSZ); p("s_mul_i32", self.sSTb, self.sC, STSZ)
        p("s_mul_i32", self.sOb, self.sC, OSZ); p("s_mul_i32", self.sHb, self.sC, HSZ)
        p("s_lshl_b32", self.sT, self.sI, 2); p("s_lshl_b32", self.sT1, self.sMH, 1)
        p("s_add_u32", self.sT, self.sT, self.sT1); p("s_add_u32", self.sT, self.sT, self.sKH)
        p("s_add_u32", self.sOwn, self.sT, 1)
        if self.o.stamps:
            self.vStamp = self.va(1, "stamp"); p("v_mov_b32", self.vStamp, 0)
        p("s_waitcnt", "lgkmcnt(0)")
        self.srd(self.X0, ka[0:2], 2048 * 1024); self.srd(self.WQKV, ka[2:4], 512 * 3072)
        self.srd(self.WO, ka[4:6], 512 * 1024);  self.srd(self.WG, ka[8:10], 512 * 2752)
        self.srd(self.WU, ka[10:12], 512 * 2752); self.srd(self.WD, ka[12:14], 1376 * 1024)
        self.srd(self.OUT, ka[14:16], 2048 * 1024)
        self.srd(self.DBG, kb[0:2], 256); self.srd(self.WS, kb[2:4], WS_END)
        self.sp.free(ka, kb); self.vp.free(t)
        self.stamp("start")
        def wr():
            t2 = self.va(1, "t2")
            p("s_memrealtime", self.sT2); p("s_waitcnt", "lgkmcnt(0)")
            p("s_or_b32", self.sT, self.sT2[0], 1)
            p("v_mov_b32", t2, self.sT)
            p("buffer_store_dword", t2, self.vZero, self.DBG, 0, mods="offen " + WT)
            self.vp.free(t2)
        p("s_or_b32", self.sT, S(2), self.sW)
        self.if_scalar("eq", self.sT, 0, wr)

    def consts(self):
        p = self.p
        t = self.va(4, "t")
        self.vB1 = self.va(3, "vB1", 1)
        p("s_lshl_b32", self.sT, self.sJ, 6)
        for u in range(3):
            p("v_add_u32", t[0], 64 * u, self.vLane)
            p("v_mul_u32_u24", t[1], 0x5556, t[0]); p("v_lshrrev_b32", t[1], 18, t[1])
            p("v_mul_u32_u24", t[2], 12, t[1]); p("v_sub_u32", t[2], t[0], t[2])
            p("v_lshrrev_b32", t[3], 2, t[1]); p("v_and_b32", t[3], 1, t[3]); p("v_lshlrev_b32", t[3], 1, t[3])
            p("v_xor_b32", t[2], t[2], t[3])
            p("v_mul_u32_u24", t[1], 3072, t[1])
            p("v_lshrrev_b32", t[3], 2, t[2]); p("v_lshlrev_b32", t[3], 10, t[3]); p("v_add_u32", t[1], t[1], t[3])
            p("v_and_b32", t[2], 3, t[2]); p("v_lshlrev_b32", t[2], 4, t[2]); p("v_add_u32", t[1], t[1], t[2])
            p("v_add_u32", t[1], self.sT, t[1])
            if u: p("v_subrev_u32", self.vB1[u], 1024 * u, t[1])
            else: p("v_mov_b32", self.vB1[u], t[1])
        self.vB2 = self.va(4, "vB2", 1)
        p("v_lshrrev_b32", t[0], 3, self.vLane)
        p("v_lshrrev_b32", t[1], 1, t[0]); p("v_and_b32", t[1], 3, t[1]); p("v_lshlrev_b32", t[1], 1, t[1])
        p("v_and_b32", t[2], 7, self.vLane); p("v_xor_b32", t[2], t[2], t[1]); p("v_lshlrev_b32", t[2], 4, t[2])
        p("v_lshlrev_b32", t[0], 10, t[0]); p("v_add_u32", t[0], t[0], t[2])
        p("s_lshl_b32", self.sT, self.sJJ, 7)
        p("v_add_u32", self.vB2[0], self.sT, t[0])
        for q in range(1, 4): p("v_add_u32", self.vB2[q], 7168 * q, self.vB2[0])
        self.vRho = self.va(1, "rho"); self.vIn = self.va(1, "in")
        vr = t[0]
        p("v_lshrrev_b32", vr, 2, self.vM)
        p("v_and_b32", t[1], 3, self.vLane); p("v_lshlrev_b32", self.vIn, 3, t[1])
        p("v_lshlrev_b32", self.vRho, 2, self.vG); p("v_add_u32", self.vRho, self.vRho, vr)
        self.vT1 = self.va(4, "vT1", 1)
        self.vT1b = self.va(1, "vT1b")
        p("v_mul_u32_u24", self.vT1b, 192, self.vRho); p("v_add_u32", self.vT1b, self.vT1b, self.vIn)
        p("v_and_b32", t[1], 1, self.vG); p("v_lshlrev_b32", t[1], 5, t[1])
        p("v_add_u32", self.vT1[0], self.vT1b, t[1]); p("v_sub_u32", self.vT1[2], self.vT1b, t[1])
        p("v_add_u32", self.vT1[1], 49152, self.vT1[0]); p("v_add_u32", self.vT1[3], 49152, self.vT1[2])
        self.vT2 = self.va(4, "vT2", 1)
        p("v_and_b32", t[1], 1, self.vG); p("v_lshlrev_b32", t[1], 1, t[1]); p("v_lshrrev_b32", t[2], 1, vr)
        p("v_add_u32", t[1], t[1], t[2])
        p("v_lshlrev_b32", t[2], 7, self.vRho); p("v_add_u32", t[2], t[2], self.vIn)
        for nt in range(4):
            p("v_xor_b32", t[3], nt, t[1]); p("v_lshlrev_b32", t[3], 5, t[3]); p("v_add_u32", self.vT2[nt], t[2], t[3])
        self.vBiasP = self.va(4, "biasP"); self.vBiasC = self.va(4, "biasC"); self.vBiasP0 = self.va(4, "biasP0")
        p("v_mov_b32", t[2], NEG)
        for r in range(4):
            p("v_lshlrev_b32", t[0], 2, self.vG); p("v_add_u32", t[0], r, t[0])
            p("v_sub_u32", t[1], self.vM, t[0]); p("v_and_b32", t[1], 0x80000001, t[1])
            p("v_cmp_eq_u32", "vcc", 0, t[1]); p("v_cndmask_b32", self.vBiasC[r], t[2], self.vZero, "vcc")
            p("v_cmp_eq_u32", "vcc", 0x80000000, t[1]); p("v_cndmask_b32", self.vBiasP[r], t[2], self.vZero, "vcc")
        p("s_or_b32", self.sT, self.sC, self.sW); p("s_cmp_eq_u32", self.sT, 0)
        p("s_cselect_b64", "vcc", -1, 0)
        for r in range(4): p("v_cndmask_b32", self.vBiasP0[r], self.vBiasP[r], t[2], "vcc")
        self.vSt = self.va(1, "vSt")
        p("v_and_b32", t[0], 1, self.vG); p("v_lshlrev_b32", t[0], 7, t[0])
        p("v_lshrrev_b32", t[1], 1, self.vG); p("v_lshlrev_b32", t[1], 6, t[1])
        p("v_lshlrev_b32", self.vSt, 2, self.vM); p("v_add3_u32", self.vSt, self.vSt, t[0], t[1])
        self.vResF = self.va(16, "residF")
        self.vp.free(t)

    def dma(self, srd, voff, soff, off, token, extra=""):
        self.p("buffer_load_dwordx4", voff, srd, soff, mods=("offen offset:%d %s lds" % (off, extra)).replace("  ", " "), token=token)
    def job_b1_natural(self, steps, token, sOff, sLds):
        p = self.p
        for st in steps:
            for half in range(2):
                p("s_add_u32", "m0", sLds, st * 6144 + half * 3072)
                p("s_add_u32", self.sT, sOff, (32 * st + 16 * half) * 3072)
                for u in range(3): self.dma(self.WQKV, self.vB1[u], self.sT, 1024 * u, token)
    def job_rows128(self, srd, row0, lds, token, sExtra=None, sLdsExtra=None):
        p = self.p
        if sLdsExtra is None: p("s_mov_b32", "m0", lds)
        else: p("s_add_u32", "m0", sLdsExtra, lds)
        if sExtra is None: p("s_mov_b32", self.sT, row0 * 1024)
        else: p("s_add_u32", self.sT, sExtra, row0 * 1024)
        for q in range(4): self.dma(srd, self.vB2[q], self.sT, 1024 * q, token)
    def job_b4_step(self, sigma, lds, token):
        p = self.p
        if sigma < 32:
            self.job_rows128(self.WD, hspace_F(sigma, 0), lds, token)
        else:
            p("s_mov_b32", "m0", lds)
            for q in range(4):
                F0 = hspace_F(sigma, 8 * q)
                p("s_mov_b32", self.sT, F0 * 1024 - 1024 * q)
                self.dma(self.WD, self.vB2[0], self.sT, 1024 * q, token)
    def job_linear(self, sG, goff, lds, n, token, extra="sc1"):
        p = self.p
        i = 0
        while i < n:
            p("s_mov_b32", "m0", lds + i * 1024)
            p("s_add_u32", self.sT, sG, goff + i * 1024)
            for q in range(min(4, n - i)): self.dma(self.WS, self.vL16, self.sT, 1024 * q, token, extra)
            i += 4

    def flag_addr(self, dst, base, sIdx, sSub):
        p = self.p
        p("s_lshl_b32", self.sT, sIdx, 8); p("s_lshl_b32", self.sT1, sSub, 2); p("s_add_u32", self.sT, self.sT, self.sT1)
        p("s_add_u32", self.sT, self.sT, base); p("v_mov_b32", dst, self.sT)
    def publish(self, phase_expr, base=WS_FLAG, sIdx=None, sSub=None, force_wt=False):
        p = self.p
        t = self.va(2, "pub")
        self.flag_addr(t[0], base, sIdx or self.sC, sSub or self.sJ)
        if isinstance(phase_expr, int): p("s_add_u32", self.sT, self.sNonce, phase_expr * 16)
        else:
            p("s_lshl_b32", self.sT, phase_expr, 4); p("s_add_u32", self.sT, self.sT, self.sNonce)
        p("s_add_u32", self.sT, self.sT, self.sXCC)
        p("v_mov_b32", t[1], self.sT)
        p("s_mov_b64", "exec", 1)
        if force_wt: p("buffer_store_dword", t[1], t[0], self.WS, 0, mods="offen " + WT)
        else: self.dual_store(lambda m: p("buffer_store_dword", t[1], t[0], self.WS, 0, mods=("offen " + m).strip()))
        p("s_mov_b64", "exec", -1)
        self.vp.free(t)
    def poll(self, phase_expr, base=WS_FLAG, sIdx=None, n=16, keep=None):
        p = self.p
        t = self.va(3, "poll")
        p("s_lshl_b32", self.sT, sIdx or self.sC, 8); p("s_add_u32", self.sT, self.sT, base)
        p("v_and_b32", t[0], n - 1, self.vLane); p("v_lshlrev_b32", t[0], 2, t[0]); p("v_add_u32", t[0], self.sT, t[0])
        if isinstance(phase_expr, int):
            p("s_add_u32", self.sT, self.sNonce, phase_expr * 16); p("s_mov_b32", self.sT1, 256 - phase_expr * 16)
        else:
            p("s_lshl_b32", self.sT1, phase_expr, 4); p("s_add_u32", self.sT, self.sT1, self.sNonce); p("s_sub_u32", self.sT1, 256, self.sT1)
        l = p.newlabel("Lpoll")
        p("s_mov_b32", self.sSpin, 0)
        p.label(l)
        p("s_add_u32", self.sSpin, self.sSpin, 1); p("s_cmp_gt_u32", self.sSpin, SPIN_MAX); p("s_cbranch_scc1", "L_exit")
        p("buffer_load_dword", t[1], t[0], self.WS, 0, mods="offen sc1")
        p("v_subrev_u32", t[2], self.sT, t[1])
        p("v_cmp_gt_u32", "vcc", self.sT1, t[2])
        p("s_cmp_eq_u64", "vcc", "exec")
        p("s_cbranch_scc0", l)
        if keep is not None: p("v_mov_b32", keep, t[2])
        self.vp.free(t)

    def swap_add(self, op, a, b):
        self.p("v_permlane%d_swap_b32" % op, a, b)
    def stats_load(self, dst8, sBase, tau_off):
        p = self.p
        for i in range(8):
            p("buffer_load_dword", dst8[i], self.vSt, self.WS, sBase, mods="offen offset:%d sc1" % (tau_off + i * 256))
    def stats_finish(self, src8, pair, tmp):
        p = self.p
        p("v_add_f32", src8[0], src8[0], src8[1]); p("v_add_f32", src8[2], src8[2], src8[3])
        p("v_add_f32", src8[4], src8[4], src8[5]); p("v_add_f32", src8[6], src8[6], src8[7])
        p("v_add_f32", src8[0], src8[0], src8[2]); p("v_add_f32", src8[4], src8[4], src8[6])
        p("v_add_f32", src8[0], src8[0], src8[4])
        p("v_mov_b32", tmp, src8[0])
        p("v_permlane16_swap_b32", src8[0], tmp)
        p("v_add_f32", src8[0], src8[0], tmp)
        p("v_mov_b32", tmp, src8[0])
        p("v_permlane32_swap_b32", src8[0], tmp)
        p("v_mul_f32", pair[0], 1.0 / 512, src8[0]) if False else p("v_mul_f32", pair[0], f2u(1.0 / 512), src8[0])
        p("v_mul_f32", tmp, f2u(1.0 / 512), tmp)
        p("v_fma_f32", tmp, "-" + str(pair[0]), pair[0], tmp)
        p("v_max_f32", tmp, 0, tmp)
        p("v_add_f32", tmp, f2u(1e-5), tmp)
        p("v_rsq_f32", pair[1], tmp)
    def stats_of_frags(self, frags, out, tmp):
        p = self.p
        n = len(frags)
        for b, f in enumerate(frags):
            s, q = tmp[2 * b], tmp[2 * b + 1]
            p("v_dot2_f32_bf16", s, f[0], self.vOnes[0], 0 if False else self.vZero)
            p("v_dot2_f32_bf16", q, f[0], f[0], self.vZero)
            for i in range(1, 4):
                p("v_dot2_f32_bf16", s, f[i], self.vOnes[0], s)
                p("v_dot2_f32_bf16", q, f[i], f[i], q)
            p("v_permlane32_swap_b32", s, q)
            p("v_add_f32", s, s, q)
        if n == 2:
            p("v_permlane16_swap_b32", tmp[0], tmp[2])
            p("v_add_f32", out, tmp[0], tmp[2])
        else:
            p("v_mov_b32", tmp[1], tmp[0])
            p("v_permlane16_swap_b32", tmp[0], tmp[1])
            p("v_add_f32", out, tmp[0], tmp[1])

    def startup(self):
        p = self.p
        self.L_RG = 98304; self.L_RU = 98304 + 6144
        x = [self.va(4, "p0x%d" % i) for i in range(3)]
        vo = self.va(1, "p0off")
        def getnonce():
            t = self.va(2, "n")
            l = p.newlabel("Lnonce")
            p("s_mov_b32", self.sSpin, 0)
            p.label(l)
            p("s_add_u32", self.sSpin, self.sSpin, 1); p("s_cmp_gt_u32", self.sSpin, SPIN_MAX); p("s_cbranch_scc1", "L_exit")
            p("buffer_load_dword", t[0], self.vZero, self.DBG, 0, mods="offen sc1")
            p("v_readfirstlane_b32", self.sT, t[0])
            p("s_cmp_eq_u32", self.sT, 0)
            p("s_cbranch_scc1", l)
            p("v_mov_b32", t[1], L_NONCE)
            p("ds_write_b32", t[1], t[0])
            self.vp.free(t)
        def p0_loads():
            p("s_lshl_b32", self.sT, self.sC, 7); p("s_mul_i32", self.sT1, self.sW, 48)
            p("s_add_u32", self.sT, self.sT, self.sT1); p("s_sub_u32", self.sT, self.sT, 16)
            p("v_add_u32", vo, self.sT, self.vM); p("v_lshlrev_b32", vo, 10, vo)
            p("v_lshlrev_b32", x[0][0], 4, self.vG); p("v_add_u32", vo, vo, x[0][0])
            p("s_lshl_b32", self.sT, self.sJ, 6); p("v_add_u32", vo, self.sT, vo)
            for n in range(3):
                p("buffer_load_dwordx4", x[n], vo, self.X0, 0, mods="offen")
                if n < 2: p("v_add_u32", vo, 16384, vo)
        l3 = p.newlabel("Ls3"); le = p.newlabel("Lse")
        p("s_cmp_eq_u32", self.sW, 3); p("s_cbranch_scc1", l3)
        p0_loads(); p("s_branch", le); p.label(l3); getnonce(); p.label(le)
        vq = self.va(6, "w3off", 1); t = self.va(4, "t")
        p("s_mul_i32", self.sT, self.sJ, 176)
        for u in range(6):
            p("v_add_u32", t[0], 64 * u, self.vLane)
            p("v_mul_u32_u24", t[1], 5958, t[0]); p("v_lshrrev_b32", t[1], 16, t[1])
            p("v_mul_u32_u24", t[2], 11, t[1]); p("v_sub_u32", t[2], t[0], t[2])
            p("v_and_b32", t[3], 16, t[1]); p("v_and_b32", t[0], 1, t[1]); p("v_lshlrev_b32", t[0], 3, t[0])
            p("v_add_u32", t[3], t[3], t[0]); p("v_and_b32", t[0], 15, t[1]); p("v_lshrrev_b32", t[0], 1, t[0])
            p("v_add_u32", t[3], t[3], t[0])
            p("v_mul_u32_u24", t[3], 2752, t[3]); p("v_lshlrev_b32", t[2], 4, t[2]); p("v_add_u32", t[3], t[3], t[2])
            p("v_add_u32", vq[u], self.sT, t[3])
            if u == 5:
                p("v_cmp_gt_u32", "vcc", 32, self.vLane); p("v_mov_b32", t[0], 0x7ffffff0)
                p("v_cndmask_b32", vq[u], t[0], vq[u], "vcc")
        self.vp.free(t)
        sRow = self.sa(1, "w3row")
        p("s_mul_i32", sRow, self.sC, 32 * 2752)
        sOff = self.sa(1, "b1off"); sLds = self.sa(1, "b1lds")
        p("s_mul_i32", sOff, self.sW, 32 * 3072); p("s_mul_i32", sLds, self.sW, 6144)
        self.sB1off, self.sB1lds = sOff, sLds
        self.job_b1_natural([0, 4, 8], "B1", sOff, sLds)
        def w3_dma(srd, lds):
            def f():
                for u in range(6):
                    p("s_mov_b32", "m0", lds + 1024 * u)
                    self.dma(srd, vq[u], sRow, 0, "w3src")
            return f
        self.by_wave({1: w3_dma(self.WG, self.L_RG), 2: w3_dma(self.WU, self.L_RU)})
        tmp = self.va(4, "tmp"); so = self.va(1, "so"); sv = self.va(1, "sv")
        sXo = self.sa(1, "xo"); sSo = self.sa(1, "so")
        def p0_all():
            p("v_and_b32", tmp[0], 1, self.vG); p("v_cmp_eq_u32", "vcc", 0, tmp[0])
            p("v_mov_b32", tmp[1], 0x7ffffff0); p("v_cndmask_b32", so, tmp[1], self.vSt, "vcc")
            for n in range(3):
                f = x[n]
                p("v_permlane16_swap_b32", f[0], f[2]); p("v_permlane16_swap_b32", f[1], f[3])
                p("v_permlane32_swap_b32", f[0], f[2]); p("v_permlane32_swap_b32", f[1], f[3])
                p("s_mul_i32", self.sT, self.sW, 3); p("s_add_u32", self.sT, self.sT, n)
                p("s_lshl_b32", self.sT1, self.sT, 14)
                p("s_add_u32", sXo, self.sT1, self.sXb); p("s_lshl_b32", self.sT1, self.sJ, 10)
                p("s_add_u32", sXo, sXo, self.sT1); p("s_add_u32", sXo, sXo, WS_X[0])
                p("buffer_store_dwordx4", f, self.vL16, self.WS, sXo, mods="offen " + WT, token="p0st")
                p("s_lshl_b32", self.sT1, self.sT, 11); p("s_add_u32", sSo, self.sT1, self.sSTb)
                p("s_lshl_b32", self.sT1, self.sJ, 7); p("s_add_u32", sSo, sSo, self.sT1); p("s_add_u32", sSo, sSo, WS_ST[0])
                self.stats_of_frags([f], sv, tmp)
                p("buffer_store_dword", sv, so, self.WS, sSo, mods="offen " + WT, token="p0st")
        self.if_wave(3, p0_all, eq=False)
        self.vp.free(x, vo, tmp, so, sv); self.sp.free(sXo, sSo)
        self.job_b1_natural([12], "B1", sOff, sLds)
        p.need("p0st", "w3src")
        p("s_waitcnt", "lgkmcnt(0)")
        self.barrier()
        self.stamp("p0done")
        t = self.va(1, "t"); p("v_mov_b32", t, L_NONCE); p("ds_read_b32", t, t); p("v_readfirstlane_b32", self.sNonce, t); self.vp.free(t)
        self.if_wave(0, lambda: self.publish(1, force_wt=True))
        self.w3_repack()
        self.vp.free(vq); self.sp.free(sRow)

    def w3_repack(self):
        p = self.p
        t = self.va(4, "t"); base = self.va(1, "rb")
        p("v_and_b32", t[0], 1, self.vG); p("v_lshlrev_b32", t[0], 2, t[0])
        p("v_lshrrev_b32", t[1], 2, self.vM); p("v_add_u32", t[0], t[0], t[1]); p("v_lshlrev_b32", t[0], 1, t[0])
        p("v_lshrrev_b32", t[1], 1, self.vG); p("v_add_u32", t[0], t[0], t[1])
        p("v_mul_u32_u24", base, 176, t[0]); p("v_add_u32", base, self.L_RG, base)
        frag = self.va(4, "frag"); ad = self.va(1, "ad")
        sO = self.sa(1, "w3o")
        p("s_mul_i32", sO, self.sJ, W3SZ); p("s_mul_i32", self.sT, self.sC, 11 * 1024)
        p("s_add_u32", sO, sO, self.sT); p("s_add_u32", sO, sO, WS_W3)
        cacc = self.va(4, "cacc"); cad = self.va(1, "cad"); sCs = self.sa(1, "cs")
        p("s_lshl_b32", sCs, self.sJ, 4); p("s_add_u32", sCs, sCs, self.sC); p("s_lshl_b32", sCs, sCs, 10); p("s_add_u32", sCs, sCs, WS_W3CS)
        p("v_lshlrev_b32", cad, 4, self.vG); p("v_mov_b32", t[0], 0x7ffffff0)
        p("v_cmp_eq_u32", "vcc", 0, self.vM); p("v_cndmask_b32", cad, t[0], cad, "vcc")
        def tile(nt):
            if nt < 10:
                reg = self.L_RG if nt % 2 == 0 else self.L_RU
                off = reg - self.L_RG + 32 * (nt // 2)
                p("v_add_u32", ad, base, self.vIn)
                p("ds_read_b64_tr_b16", frag[0:2], ad, mods="offset:%d" % off)
                p("ds_read_b64_tr_b16", frag[2:4], ad, mods="offset:%d" % (off + 16 * 176))
            else:
                p("v_and_b32", t[0], 1, self.vLane); p("v_lshlrev_b32", t[0], 3, t[0])
                p("v_and_b32", t[1], 2, self.vLane); p("v_mul_u32_u24", t[1], (self.L_RU - self.L_RG) // 2, t[1])
                p("v_add3_u32", ad, base, t[0], t[1])
                p("ds_read_b64_tr_b16", frag[0:2], ad, mods="offset:%d" % 160)
                p("ds_read_b64_tr_b16", frag[2:4], ad, mods="offset:%d" % (160 + 16 * 176))
            p("s_add_u32", self.sT, sO, nt * 1024)
            p("buffer_store_dwordx4", frag, self.vL16, self.WS, self.sT, mods="offen " + WT, token="w3st")
            p(MFMA, cacc, frag, self.vOnes, 0)
            p("buffer_store_dwordx4", cacc, cad, self.WS, sCs, mods="offen offset:%d %s" % (nt * 64, WT), token="w3st")
        self.by_wave({w: (lambda w=w: [tile(nt) for nt in range(w, 11, 4)]) for w in range(4)})
        self.vp.free(t, base, frag, ad, cacc, cad); self.sp.free(sO, sCs)
        p("s_waitcnt", "vmcnt(0)")
        self.barrier()
        self.if_wave(0, lambda: self.publish(1, base=WS_FLAG_W, sIdx=self.sJ, sSub=self.sC, force_wt=True))

    L_HA = 98304
    L_EX = 114688
    def wave_tile_base(self, dst, add):
        p = self.p; t = self.va(1, "t")
        p("s_add_u32", self.sT, self.sW, add)
        p("v_and_b32", t, 1, self.vG); p("v_xor_b32", t, self.sT, t); p("v_lshlrev_b32", t, 5, t)
        p("v_add_u32", dst, self.vT1b, t); self.vp.free(t)
    def csum1(self):
        p = self.p
        bT = self.va(2, "bT", 1); bV = self.va(2, "bV", 1)
        self.wave_tile_base(bT[0], 0); p("v_add_u32", bT[1], 49152, bT[0])
        t = self.va(1, "t")
        p("s_and_b32", self.sT, self.sW, 1); p("s_add_u32", self.sT, self.sT, 4)
        p("v_and_b32", t, 1, self.vG); p("v_xor_b32", t, self.sT, t); p("v_lshlrev_b32", t, 5, t)
        p("v_add_u32", bV[0], self.vT1b, t); p("v_add_u32", bV[1], 49152, bV[0])
        accT = self.va(4, "cT"); accV = self.va(4, "cV")
        fT = [self.aa(4, "fT") for _ in range(2)]; fV = [self.aa(4, "fV") for _ in range(2)]
        def rd(s):
            hi, so = s // 8, (s % 8) * 6144
            p("ds_read_b64_tr_b16", fT[s % 2][0:2], bT[hi], mods="offset:%d" % so)
            p("ds_read_b64_tr_b16", fT[s % 2][2:4], bT[hi], mods="offset:%d" % (so + 3072))
            p("ds_read_b64_tr_b16", fV[s % 2][0:2], bV[hi], mods="offset:%d" % so)
            p("ds_read_b64_tr_b16", fV[s % 2][2:4], bV[hi], mods="offset:%d" % (so + 3072))
        rd(0)
        for s in range(16):
            if s + 1 < 16: rd(s + 1)
            p(MFMA, accT, fT[s % 2], self.vOnes, accT if s else 0)
            p(MFMA, accV, self.vOnes, fV[s % 2], accV if s else 0)
        ad = self.va(1, "ad")
        p("s_lshl_b32", self.sT, self.sW, 6); p("s_add_u32", self.sT, self.sT, L_CS1T)
        p("v_lshlrev_b32", ad, 4, self.vG); p("v_add_u32", ad, self.sT, ad)
        p("s_mov_b32", "exec_lo", 0x00010001); p("s_mov_b32", "exec_hi", 0x00010001)
        p("ds_write_b128", ad, accT)
        p("s_and_b32", self.sT, self.sW, 1); p("s_lshl_b32", self.sT, self.sT, 6); p("s_add_u32", self.sT, self.sT, L_CS1V)
        p("s_mov_b64", "exec", -1)
        p("v_lshlrev_b32", ad, 2, self.vM); p("v_add_u32", ad, self.sT, ad)
        p("s_mov_b64", "exec", 0xFFFF)
        p("ds_write_b32", ad, accV[0])
        p("s_mov_b64", "exec", -1)
        self.vp.free(bT, bV, t, accT, accV, ad); self.ap.free(fT, fV)
    def entry(self):
        p = self.p
        p.need("B1"); self.barrier()
        self.stamp("b1ready")
        self.csum1()
        def first_poll():
            k = self.va(2, "k")
            self.poll(1, keep=k[0])
            p("v_and_b32", k[0], 15, k[0]); p("v_cmp_eq_u32", "vcc", self.sXCC, k[0])
            p("s_cmp_eq_u64", "vcc", "exec"); p("s_cselect_b32", self.sT, 0 if self.o.slow else 1, 0)
            p("v_mov_b32", k[0], self.sT); p("v_mov_b32", k[1], L_NONCE + 4); p("ds_write_b32", k[1], k[0])
            self.vp.free(k)
        self.if_wave(0, first_poll)
        p("s_waitcnt", "lgkmcnt(0)")
        self.barrier()
        t = self.va(1, "t"); p("v_mov_b32", t, L_NONCE + 4); p("ds_read_b32", t, t); p("v_readfirstlane_b32", self.sFast, t); self.vp.free(t)
        self.stamp("x0ready")

    def layer_bases(self):
        p = self.p
        for n in "Xin Xmid Xout STin STmid STout Oc Hc Ph".split():
            if not hasattr(self, "s" + n): setattr(self, "s" + n, self.sa(1, n))
        L = self.sLayer
        p("s_mul_i32", self.sT, L, 2 * 0x240000); p("s_add_u32", self.sT, self.sT, self.sXb)
        p("s_add_u32", self.sXin, self.sT, WS_X[0]); p("s_add_u32", self.sXmid, self.sT, WS_X[1]); p("s_add_u32", self.sXout, self.sT, WS_X[2])
        p("s_mul_i32", self.sT, L, 2 * 0x48000); p("s_add_u32", self.sT, self.sT, self.sSTb)
        p("s_add_u32", self.sSTin, self.sT, WS_ST[0]); p("s_add_u32", self.sSTmid, self.sT, WS_ST[1]); p("s_add_u32", self.sSTout, self.sT, WS_ST[2])
        p("s_mul_i32", self.sT, L, 0x200000); p("s_add_u32", self.sT, self.sT, self.sOb); p("s_add_u32", self.sOc, self.sT, WS_O[0])
        p("s_mul_i32", self.sT, L, 0x580000); p("s_add_u32", self.sT, self.sT, self.sHb); p("s_add_u32", self.sHc, self.sT, WS_H[0])
        p("s_lshl_b32", self.sPh, L, 2)

    def a_loads(self, aX, sO, nsteps):
        p = self.p
        nt = len(aX)
        for s in range(nsteps):
            if s and s % 4 == 0:
                for t in range(nt): p("s_add_u32", sO[t], sO[t], 4096)
            for t in range(nt):
                p("buffer_load_dwordx4", aX[t][s], self.vL16, self.WS, sO[t], mods="offen offset:%d sc1" % ((s % 4) * 1024))
    def p1(self):
        p, o = self.p, self.o
        aX = [[self.aa(4, "aX") for s in range(16)] for t in range(2)]
        aB = [self.aa(4, "aB") for nt in range(6)]
        acc = [[self.va(4, "acc") for nt in range(6)] for t in range(2)]
        sA = self.sa(1, "p1a"); sA2 = self.sa(1, "p1a2")
        p("s_lshl_b32", self.sT, self.sW, 15); p("s_add_u32", sA, self.sT, self.sXin); p("s_add_u32", sA, sA, 16384)
        p("s_add_u32", sA2, sA, 16384)
        def rdB(s, nt):
            b = self.vT1[(nt & 1) * 2 + s // 8]; so = (s % 8) * 6144 + nt * 32
            p("ds_read_b64_tr_b16", aB[nt][0:2], b, mods="offset:%d" % so)
            p("ds_read_b64_tr_b16", aB[nt][2:4], b, mods="offset:%d" % (so + 3072))
        self.a_loads(aX, [sA, sA2], 16)
        st8 = [self.va(8, "st8", 1) for t in range(2)]
        p("s_lshl_b32", self.sT, self.sW, 12); p("s_add_u32", sA, self.sT, self.sSTin); p("s_add_u32", sA, sA, 2048)
        for t in range(2): self.stats_load(st8[t], sA, t * 2048)
        rp = self.va(8, "rp")
        def ld_res():
            p("s_lshl_b32", self.sT, self.sOwn, 14); p("s_add_u32", self.sT, self.sT, self.sXin)
            p("s_lshl_b32", self.sT1, self.sJJ, 11); p("s_add_u32", self.sT, self.sT, self.sT1)
            p("buffer_load_dwordx4", rp[0:4], self.vL16, self.WS, self.sT, mods="offen sc1")
            p("buffer_load_dwordx4", rp[4:8], self.vL16, self.WS, self.sT, mods="offen offset:1024 sc1")
        self.if_scalar("eq", self.sLayer, 0, ld_res)
        for nt in range(6): rdB(0, nt)
        for s in range(16):
            for nt in range(6):
                for t in range(2):
                    c = acc[t][nt] if s else 0
                    if nt < 4: p(MFMA, acc[t][nt], aB[nt], aX[t][s], c)
                    else: p(MFMA, acc[t][nt], aX[t][s], aB[nt], c)
                if s + 1 < 16: rdB(s + 1, nt)
        self.stamp("p1main")
        for t in range(2): self.ap.free(aX[t])
        self.ap.free(aB); self.sp.free(sA, sA2)
        def unpack_res():
            for i in range(8):
                p("v_lshlrev_b32", self.vResF[2 * i], 16, rp[i]); p("v_and_b32", self.vResF[2 * i + 1], 0xffff0000, rp[i])
        self.if_scalar("eq", self.sLayer, 0, unpack_res)
        self.vp.free(rp)
        def halo_poll():
            p("s_sub_u32", self.sT3, self.sC, 0)
            self.poll(5, base=WS_FLAG_H, sIdx=self.sC, n=8)
        def hp0():
            p("s_min_u32", self.sT3, self.sC, self.sLayer)
            self.if_scalar("lg", self.sT3, 0, halo_poll)
            self.if_scalar("eq", self.sLayer, 0, lambda: self.poll(1, base=WS_FLAG_W, sIdx=self.sJ, n=16))
        self.if_wave(0, hp0)
        self.barrier()
        sHX = self.sa(1, "hx"); sHS = self.sa(1, "hs")
        p("s_cmp_eq_u32", self.sC, 0)
        p("s_cselect_b32", sHX, WS_X[0], self.sXin); p("s_cselect_b32", sHS, WS_ST[0], self.sSTin)
        p("s_lshl_b32", self.sT1, self.sW, 12)
        p("s_add_u32", "m0", self.sT1, self.L_HA); p("s_add_u32", self.sT, sHX, self.sT1)
        for q in range(4): self.dma(self.WS, self.vL16, self.sT, 1024 * q, "HA", "sc1")
        sth = self.va(8, "sth", 1); self.stats_load(sth, sHS, 0)
        self.sp.free(sHX, sHS)
        tmp = self.va(1, "tmp")
        st = [self.va(4, "st") for t in range(2)]
        ad = self.va(2, "ad", 1)
        for t in range(2):
            self.stats_finish(st8[t], st[t], tmp)
            p("v_mul_f32", st[t][2], 0.25 if False else f2u(0.25), st[t][1])
        self.vp.free(st8[0]); self.vp.free(st8[1])
        p("s_lshl_b32", self.sT, self.sW, 7); p("s_add_u32", self.sT, self.sT, 64 + L_MISC)
        p("v_lshlrev_b32", ad[0], 2, self.vM); p("v_add_u32", ad[0], self.sT, ad[0])
        p("v_lshlrev_b32", ad[1], 4, self.vG); p("v_add_u32", ad[1], self.sT, ad[1])
        p("s_mov_b64", "exec", 0xFFFF)
        for t in range(2):
            p("ds_write_b32", ad[0], st[t][0], mods="offset:%d" % (L_RMEAN - L_MISC + 64 * t))
            p("ds_write_b32", ad[0], st[t][1], mods="offset:%d" % (L_RRSTD - L_MISC + 64 * t))
        p("s_mov_b64", "exec", -1)
        mN = [self.va(4, "mN") for t in range(2)]; rN = [self.va(4, "rN") for t in range(2)]
        for t in range(2):
            p("ds_read_b128", mN[t], ad[1], mods="offset:%d" % (L_RMEAN - L_MISC + 64 * t))
            p("ds_read_b128", rN[t], ad[1], mods="offset:%d" % (L_RRSTD - L_MISC + 64 * t))
        cs = [self.va(4, "cs") for nt in range(4)]; csV = [self.va(2, "csV") for h in range(2)]
        p("v_lshlrev_b32", ad[0], 4, self.vG); p("v_lshlrev_b32", ad[1], 2, self.vM)
        p("v_add_u32", ad[0], L_MISC, ad[0]); p("v_add_u32", ad[1], L_MISC, ad[1])
        for nt in range(4): p("ds_read_b128", cs[nt], ad[0], mods="offset:%d" % (L_CS1T - L_MISC + 64 * nt))
        for h in range(2): p("ds_read_b32", csV[h][0], ad[1], mods="offset:%d" % (L_CS1V - L_MISC + 64 * h))
        Q = [[self.va(2, "Q") for h in range(2)] for t in range(2)]
        K = [[self.va(2, "K") for h in range(2)] for t in range(2)]
        KV = [self.va(8, "KV") for h in range(2)]
        def lnT(dst2, a4, c4, pm, pr, prsel):
            for i in range(2):
                p("v_pk_fma_f32", a4[2 * i:2 * i + 2], c4[2 * i:2 * i + 2], pm, a4[2 * i:2 * i + 2], mods="op_sel_hi:[1,0,1] neg_lo:[0,1,0] neg_hi:[0,1,0]")
            for i in range(2):
                p("v_pk_mul_f32", a4[2 * i:2 * i + 2], a4[2 * i:2 * i + 2], pr, mods=("op_sel:[0,1] op_sel_hi:[1,1]" if prsel else "op_sel_hi:[1,0]"))
            for i in range(2): p("v_cvt_pk_bf16_f32", dst2[i], a4[2 * i], a4[2 * i + 1])
        def lnN(dst2, a4, cv, m4, r4):
            for i in range(2):
                p("v_pk_fma_f32", a4[2 * i:2 * i + 2], m4[2 * i:2 * i + 2], cv, a4[2 * i:2 * i + 2], mods="op_sel_hi:[1,0,1] neg_lo:[0,1,0] neg_hi:[0,1,0]")
            for i in range(2): p("v_pk_mul_f32", a4[2 * i:2 * i + 2], a4[2 * i:2 * i + 2], r4[2 * i:2 * i + 2])
            for i in range(2): p("v_cvt_pk_bf16_f32", dst2[i], a4[2 * i], a4[2 * i + 1])
        self.lnT, self.lnN = lnT, lnN
        for t in range(2):
            for h in range(2):
                lnT(Q[t][h], acc[t][h], cs[h], st[t][0:2], st[t][2:4], 0)
                lnT(K[t][h], acc[t][2 + h], cs[2 + h], st[t][0:2], st[t][0:2], 1)
                lnN(KV[h][4 + 2 * t:6 + 2 * t], acc[t][4 + h], csV[h], mN[t], rN[t])
        for t in range(2): self.vp.free(acc[t])
        self.vp.free(mN, rN, st)
        p("s_lshl_b32", self.sT, self.sW, 11); p("s_add_u32", self.sT, self.sT, self.L_EX + 2048)
        p("v_add_u32", ad[0], self.sT, self.vL16)
        for h in range(2):
            p("ds_write_b64", ad[0], K[1][h], mods="offset:%d" % (1024 * h))
            p("ds_write_b64", ad[0], KV[h][6:8], mods="offset:%d" % (1024 * h + 8))
        o4 = [self.va(4, "o4") for t in range(2)]
        self.attention([(Q[1][h], K[0][h], K[1][h], KV[h][4:8], self.vBiasP, o4[1][2 * h:2 * h + 2]) for h in range(2)])
        p.need("HA"); self.barrier()
        hst = self.va(4, "hst")
        self.stats_finish(sth, hst, tmp); self.vp.free(sth)
        p("v_lshlrev_b32", ad[0], 2, self.vM); p("v_lshlrev_b32", ad[1], 4, self.vG)
        p("v_add_u32", ad[0], L_MISC, ad[0]); p("v_add_u32", ad[1], L_MISC, ad[1])
        p("s_mov_b64", "exec", 0xFFFF)
        p("ds_write_b32", ad[0], hst[0], mods="offset:%d" % (L_RMEAN - L_MISC)); p("ds_write_b32", ad[0], hst[1], mods="offset:%d" % (L_RRSTD - L_MISC))
        p("s_mov_b64", "exec", -1)
        hb = self.va(2, "hb", 1); self.wave_tile_base(hb[0], 2); p("v_add_u32", hb[1], 49152, hb[0])
        hacc = self.va(4, "hacc"); fW = [self.aa(4, "fW") for _ in range(2)]; fX = [self.aa(4, "fX") for _ in range(2)]
        hp = self.va(2, "hp")
        xa = self.va(1, "xa"); p("v_add_u32", xa, self.L_HA, self.vL16)
        def mini(torient):
            def rd(s):
                hi, so = s // 8, (s % 8) * 6144
                p("ds_read_b64_tr_b16", fW[s % 2][0:2], hb[hi], mods="offset:%d" % so)
                p("ds_read_b64_tr_b16", fW[s % 2][2:4], hb[hi], mods="offset:%d" % (so + 3072))
                p("ds_read_b128", fX[s % 2], xa, mods="offset:%d" % (s * 1024))
            rd(0)
            for s in range(16):
                if s + 1 < 16: rd(s + 1)
                if torient: p(MFMA, hacc, fW[s % 2], fX[s % 2], hacc if s else 0)
                else: p(MFMA, hacc, fX[s % 2], fW[s % 2], hacc if s else 0)
            c4 = self.va(4, "c4")
            if torient:
                p("s_add_u32", self.sT, self.sW, 2); p("s_lshl_b32", self.sT, self.sT, 6)
                p("v_add_u32", xa, self.sT, ad[1]); p("ds_read_b128", c4, xa, mods="offset:%d" % (L_CS1T - L_MISC))
                lnT(hp, hacc, c4, hst[0:2], hst[0:2], 1)
            else:
                m4 = self.va(4, "m4"); r4 = self.va(4, "r4")
                p("ds_read_b128", m4, ad[1], mods="offset:%d" % (L_RMEAN - L_MISC)); p("ds_read_b128", r4, ad[1], mods="offset:%d" % (L_RRSTD - L_MISC))
                p("s_and_b32", self.sT, self.sW, 1); p("s_lshl_b32", self.sT, self.sT, 6)
                p("v_add_u32", xa, self.sT, ad[0]); p("ds_read_b32", c4[0], xa, mods="offset:%d" % (L_CS1V - L_MISC))
                lnN(hp, hacc, c4[0:2], m4, r4)
                self.vp.free(m4, r4)
            self.vp.free(c4)
        lN = p.newlabel("LhN"); lE = p.newlabel("LhE")
        p("s_cmp_ge_u32", self.sW, 2); p("s_cbranch_scc1", lN)
        mini(True); p("s_branch", lE); p.label(lN); mini(False); p.label(lE)
        p("s_and_b32", self.sT, self.sW, 1); p("s_lshl_b32", self.sT, self.sT, 10)
        p("s_lshr_b32", self.sT1, self.sW, 1); p("s_lshl_b32", self.sT1, self.sT1, 3)
        p("s_add_u32", self.sT, self.sT, self.sT1); p("s_add_u32", self.sT, self.sT, self.L_EX)
        p("v_add_u32", xa, self.sT, self.vL16)
        p("ds_write_b64", xa, hp)
        self.vp.free(hb, hacc, hp, hst, cs, csV); self.ap.free(fW, fX)
        p("s_waitcnt", "lgkmcnt(0)"); self.barrier()
        p("s_lshl_b32", self.sT, self.sW, 11); p("s_add_u32", self.sT, self.sT, self.L_EX)
        p("v_add_u32", xa, self.sT, self.vL16)
        for h in range(2): p("ds_read_b128", KV[h][0:4], xa, mods="offset:%d" % (1024 * h))
        sB = self.sa(1, "b2o"); sL = self.sa(1, "b2l")
        p("s_lshl_b32", sB, self.sW, 17); p("s_lshl_b32", sL, self.sW, 14)
        for i in range(4): self.job_rows128(self.WO, 32 * i, 4096 * i, "B2", sExtra=sB, sLdsExtra=sL)
        self.sp.free(sB, sL)
        self.attention([(Q[0][h], KV[h][0:2], K[0][h], KV[h][2:6], self.vBiasP0, o4[0][2 * h:2 * h + 2]) for h in range(2)])
        p("s_lshl_b32", self.sT, self.sW, 15); p("s_add_u32", self.sT, self.sT, self.sOc)
        p("s_lshl_b32", self.sT1, self.sJ, 10); p("s_add_u32", self.sT3, self.sT, self.sT1)
        p("s_add_u32", self.sT1, self.sT3, 16384)
        def st_o(m):
            p("buffer_store_dwordx4", o4[0], self.vL16, self.WS, self.sT3, mods=("offen " + m).strip(), token="ost")
            p("buffer_store_dwordx4", o4[1], self.vL16, self.WS, self.sT1, mods=("offen " + m).strip(), token="ost")
        self.dual_store(st_o)
        self.vp.free(Q, K, KV, o4, tmp, ad, xa)
        p.need("ost", "B2"); self.barrier()
        self.stamp("p1done")

    def attention(self, units):
        p = self.p
        if not hasattr(self, "sL2E"):
            raise RuntimeError
        streams = []; frees = []
        for (Q, Kp, Kc, V4, bP, out) in units:
            q = Prog()
            Sp = self.va(4, "Sp"); Sc = self.va(4, "Sc"); m = self.va(2, "m"); t = self.va(1, "t"); P = self.va(4, "P"); O = self.va(4, "O"); Sm = self.va(4, "Sm")
            q(MFMA16, Sp, Kp, Q, bP); q(MFMA16, Sc, Kc, Q, self.vBiasC)
            q("v_max3_f32", m[0], Sp[0], Sp[1], Sp[2]); q("v_max3_f32", m[0], m[0], Sp[3], Sc[0])
            q("v_max3_f32", m[0], m[0], Sc[1], Sc[2]); q("v_max_f32", m[0], m[0], Sc[3])
            q("v_mov_b32", t, m[0]); q("v_permlane16_swap_b32", m[0], t); q("v_max_f32", m[0], m[0], t)
            q("v_mov_b32", t, m[0]); q("v_permlane32_swap_b32", m[0], t); q("v_max_f32", m[0], m[0], t)
            q("v_mul_f32", m[0], self.sL2E[1], m[0])
            for Sx in (Sp, Sc):
                for i in range(2):
                    q("v_pk_fma_f32", Sx[2 * i:2 * i + 2], Sx[2 * i:2 * i + 2], self.sL2E, m, mods="op_sel_hi:[1,0,0]")
            for Sx in (Sp, Sc):
                for i in range(4): q("v_exp_f32", Sx[i], Sx[i])
            q("v_cvt_pk_bf16_f32", P[0], Sp[0], Sp[1]); q("v_cvt_pk_bf16_f32", P[1], Sp[2], Sp[3])
            q("v_cvt_pk_bf16_f32", P[2], Sc[0], Sc[1]); q("v_cvt_pk_bf16_f32", P[3], Sc[2], Sc[3])
            q(MFMA, Sm, self.vOnes, P, 0); q(MFMA, O, V4, P, 0)
            q("v_rcp_f32", m[0], Sm[0])
            for i in range(2): q("v_pk_mul_f32", O[2 * i:2 * i + 2], O[2 * i:2 * i + 2], m, mods="op_sel_hi:[1,0]")
            for i in range(2): q("v_cvt_pk_bf16_f32", out[i], O[2 * i], O[2 * i + 1])
            streams.append(q.take()); frees.append([Sp, Sc, m, t, P, O, Sm])
        n = max(len(s) for s in streams)
        for i in range(n):
            for s in streams:
                if i < len(s): p.ins.append(s[i])
        for f in frees: self.vp.free(f)

    def handoff(self, pub_off, between=None, need=()):
        p = self.p
        p("s_add_u32", self.sT3, self.sPh, pub_off)
        l1 = p.newlabel("Lh"); le = p.newlabel("Lhe")
        p("s_cmp_lg_u32", self.sW, 0); p("s_cbranch_scc1", l1)
        self.publish(self.sT3); self.poll(self.sT3)
        p("s_branch", le); p.label(l1)
        if between: between()
        p.label(le)
        if need: p.need(*need)
        self.barrier()
    def split3(self, items):
        n = len(items); cut = [0, (n + 2) // 3, (2 * n + 2) // 3, n]
        self.by_wave({w: (lambda w=w: [f() for f in items[cut[w - 1]:cut[w]]]) for w in (1, 2, 3)})

    def gemm64(self, nsteps, sAbase, a_tile_stride, lds_of, mid=None):
        p = self.p
        aX = [[self.aa(4, "aX") for s in range(nsteps)] for t in range(2)]
        aB = [self.aa(4, "aB") for nt in range(4)]
        acc = [[self.va(4, "acc") for nt in range(4)] for t in range(2)]
        sO = [self.sa(1, "ao") for _ in range(2)]
        p("s_lshl_b32", self.sT, self.sMH, 1); p("s_add_u32", self.sT1, self.sT, self.sKH)
        p("s_mul_i32", self.sT1, self.sT1, a_tile_stride); p("s_add_u32", sO[0], sAbase, self.sT1)
        p("s_add_u32", self.sT, self.sT, 1); p("s_sub_u32", self.sT, self.sT, self.sKH)
        p("s_mul_i32", self.sT1, self.sT, a_tile_stride); p("s_add_u32", sO[1], sAbase, self.sT1)
        self.a_loads(aX, sO, nsteps)
        self.sp.free(sO)
        def rdB(s, nt):
            b, so = lds_of(s, nt)
            p("ds_read_b64_tr_b16", aB[nt][0:2], b, mods="offset:%d" % so)
            p("ds_read_b64_tr_b16", aB[nt][2:4], b, mods="offset:%d" % (so + 2048))
        for nt in range(4): rdB(0, nt)
        for s in range(nsteps):
            for nt in range(4):
                for t in range(2): p(MFMA, acc[t][nt], aB[nt], aX[t][s], acc[t][nt] if s else 0)
                if s + 1 < nsteps:
                    if nt == 0 and mid: mid(s)
                    rdB(s + 1, nt)
        for t in range(2): self.ap.free(aX[t])
        self.ap.free(aB)
        return acc
    def reduce64(self, acc, scratch):
        p = self.p
        ad = self.va(1, "ad")
        p("s_lshl_b32", self.sT, self.sW, 12); p("s_add_u32", self.sT, self.sT, scratch)
        p("v_add_u32", ad, self.sT, self.vL16)
        for nt in range(4): p("ds_write_b128", ad, acc[1][nt], mods="offset:%d" % (1024 * nt))
        for nt in range(4):
            for i in range(2): p("v_pk_add_f32", acc[0][nt][2 * i:2 * i + 2], acc[0][nt][2 * i:2 * i + 2], self.vResF[4 * nt + 2 * i:4 * nt + 2 * i + 2])
        p("s_xor_b32", self.sT, self.sW, 1); p("s_lshl_b32", self.sT, self.sT, 12); p("s_add_u32", self.sT, self.sT, scratch)
        p("v_add_u32", ad, self.sT, self.vL16)
        p("s_waitcnt", "lgkmcnt(0)"); self.barrier()
        for nt in range(4): p("ds_read_b128", acc[1][nt], ad, mods="offset:%d" % (1024 * nt))
        xp = self.va(8, "xp")
        for nt in range(4):
            for i in range(2): p("v_pk_add_f32", acc[0][nt][2 * i:2 * i + 2], acc[0][nt][2 * i:2 * i + 2], acc[1][nt][2 * i:2 * i + 2])
            for i in range(2): p("v_cvt_pk_bf16_f32", xp[2 * nt + i], acc[0][nt][2 * i], acc[0][nt][2 * i + 1])
        self.vp.free(ad, acc[0], acc[1])
        return xp
    def unpack_resid(self, xp):
        for i in range(8):
            self.p("v_lshlrev_b32", self.vResF[2 * i], 16, xp[i]); self.p("v_and_b32", self.vResF[2 * i + 1], 0xffff0000, xp[i])
    def store_x(self, xp, sX, sST, token):
        p = self.p
        tmp = self.va(4, "tmp"); sv = self.va(1, "sv")
        sa_ = self.sa(1, "xa"); sb_ = self.sa(1, "xb")
        p("s_lshl_b32", self.sT, self.sOwn, 14); p("s_add_u32", sa_, self.sT, sX); p("s_lshl_b32", self.sT1, self.sJJ, 11); p("s_add_u32", sa_, sa_, self.sT1)
        p("s_lshl_b32", self.sT, self.sOwn, 11); p("s_add_u32", sb_, self.sT, sST); p("s_lshl_b32", self.sT1, self.sJJ, 8); p("s_add_u32", sb_, sb_, self.sT1)
        self.stats_of_frags([xp[0:4], xp[4:8]], sv, tmp)
        def st(m):
            p("buffer_store_dwordx4", xp[0:4], self.vL16, self.WS, sa_, mods=("offen " + m).strip(), token=token)
            p("buffer_store_dwordx4", xp[4:8], self.vL16, self.WS, sa_, mods=("offen offset:1024 " + m).strip(), token=token)
            p("buffer_store_dword", sv, self.vSt, self.WS, sb_, mods=("offen " + m).strip(), token=token)
        self.dual_store(st)
        self.vp.free(tmp); self.sp.free(sa_, sb_)
        return sv

    L_B3 = {}
    def b3_slot(self, s):
        if s < 6: return 81920 + 11264 * s
        if s < 11: return 11264 * (s - 6)
        if s < 13: return 56320 + 11264 * (s - 11)
        return 81920 + 11264 * (s - 13)
    def b3_items(self, steps):
        items = []
        for s in steps:
            for i0 in range(0, 11, 4):
                n = min(4, 11 - i0)
                def f(s=s, i0=i0, n=n):
                    self.job_linear(self.sW3, s * 11264 + i0 * 1024, self.b3_slot(s) + i0 * 1024, n, "B3")
                items.append(f)
        return items

    def p2(self):
        p = self.p
        vb = self.va(4, "vb", 1)
        p("s_lshl_b32", self.sT, self.sKH, 15)
        for nt in range(4): p("v_add_u32", vb[nt], self.sT, self.vT2[nt])
        sA = self.sa(1, "p2a")
        p("s_lshl_b32", self.sT, self.sI, 16); p("s_add_u32", sA, self.sT, self.sOc)
        p("s_lshl_b32", self.sT, self.sKH, 13); p("s_add_u32", sA, sA, self.sT)
        acc = self.gemm64(8, sA, 16384, lambda s, nt: (vb[nt], s * 4096))
        self.sp.free(sA); self.vp.free(vb)
        self.stamp("p2main")
        xp = self.reduce64(acc, 65536)
        sv = self.store_x(xp, self.sXmid, self.sSTmid, "xst")
        p.need("xst"); self.barrier()
        self.vp.free(sv)
        self.unpack_resid(xp); self.vp.free(xp)
        self.stamp("p2done")

    def csum3(self):
        p = self.p
        ad = self.va(1, "ad"); v = [self.va(4, "c3") for _ in range(4)]; la = self.va(1, "la")
        p("v_lshlrev_b32", ad, 10, self.vM); p("v_lshlrev_b32", la, 4, self.vG); p("v_add_u32", ad, ad, la)
        p("s_lshl_b32", self.sT3, self.sJ, 14); p("s_add_u32", self.sT3, self.sT3, WS_W3CS)
        p("s_sub_u32", self.sT, self.sW, 1); p("s_lshl_b32", self.sT, self.sT, 6); p("s_add_u32", self.sT3, self.sT3, self.sT)
        for n in range(4):
            p("buffer_load_dwordx4", v[n], ad, self.WS, self.sT3, mods="offen offset:%d sc1" % (192 * n))
        for rot in (8, 4, 2, 1):
            for n in range(4):
                for r in range(4):
                    p("v_add_f32_dpp", v[n][r], v[n][r], v[n][r], mods="row_ror:%d row_mask:0xf bank_mask:0xf" % rot)
        p("s_add_u32", self.sT, self.sT, L_MISC); p("v_add_u32", la, self.sT, la)
        p("s_mov_b32", "exec_lo", 0x00010001); p("s_mov_b32", "exec_hi", 0x00010001)
        for n in range(3): p("ds_write_b128", la, v[n], mods="offset:%d" % (L_CS3 - L_MISC + 192 * n))
        def last(): p("ds_write_b128", la, v[3], mods="offset:%d" % (L_CS3 - L_MISC + 576))
        self.if_wave(3, last, eq=False)
        p("s_mov_b64", "exec", -1)
        p("s_waitcnt", "lgkmcnt(0)")
        self.vp.free(ad, v, la)
    def h_offsets(self):
        p = self.p
        self.vH4 = self.va(1, "vH4"); self.vHm = self.va(1, "vHm")
        t = self.va(4, "t")
        def pos(dst, lam):
            p("v_lshrrev_b32", t[1], 2, lam); p("v_add_u32", t[1], 32, t[1]); p("v_lshlrev_b32", t[1], 10, t[1])
            p("v_and_b32", t[2], 1, lam); p("v_lshlrev_b32", t[2], 1, t[2]); p("v_and_b32", t[3], 1, self.vG)
            p("v_add_u32", t[2], t[2], t[3]); p("v_lshlrev_b32", t[2], 4, t[2]); p("v_add_u32", t[2], t[2], self.vM)
            p("v_lshlrev_b32", t[2], 4, t[2]); p("v_add_u32", t[1], t[1], t[2])
            p("v_and_b32", t[2], 2, lam); p("v_lshlrev_b32", t[2], 2, t[2]); p("v_add_u32", dst, t[1], t[2])
        p("s_mul_i32", self.sT, self.sJ, 3)
        p("v_lshrrev_b32", t[0], 1, self.vG); p("v_add_u32", t[0], self.sT, t[0]); pos(self.vH4, t[0])
        p("s_add_u32", self.sT, self.sT, 2); p("v_mov_b32", t[0], self.sT); pos(self.vHm, t[0])
        p("v_lshrrev_b32", t[0], 5, self.vLane); p("v_mul_u32_u24", t[0], HSTEPS * 1024, t[0]); p("v_add_u32", self.vHm, self.vHm, t[0])
        self.vp.free(t)
    def p3(self):
        p = self.p
        aX = [[self.aa(4, "aX") for s in range(16)] for t in range(2)]
        aB = [self.aa(4, "aB") for nt in range(11)]
        acc = [[self.va(4, "acc") for nt in range(11)] for t in range(2)]
        sA = [self.sa(1, "p3a") for _ in range(2)]
        p("s_lshl_b32", self.sT, self.sW, 15); p("s_add_u32", sA[0], self.sT, self.sXmid); p("s_add_u32", sA[0], sA[0], 16384)
        p("s_add_u32", sA[1], sA[0], 16384)
        self.a_loads(aX, sA, 16)
        st8 = [self.va(8, "st8", 1) for t in range(2)]
        p("s_lshl_b32", self.sT, self.sW, 12); p("s_add_u32", sA[0], self.sT, self.sSTmid); p("s_add_u32", sA[0], sA[0], 2048)
        for t in range(2): self.stats_load(st8[t], sA[0], t * 2048)
        self.sp.free(sA)
        lb = self.va(2, "lb", 1)
        p("v_add_u32", lb[0], 65536, self.vL16); p("v_add_u32", lb[1], 131072, self.vL16)
        def rdB(s, nt):
            a = self.b3_slot(s) + nt * 1024
            b = (self.vL16, lb[0], lb[1])[a >> 16]
            p("ds_read_b128", aB[nt], b, mods="offset:%d" % (a & 0xffff))
        for nt in range(11): rdB(0, nt)
        self.stamp("p3s")
        for s in range(16):
            if s == 4:
                self.barrier()
                items = self.b3_items([13, 14, 15])
                self.by_wave({w: (lambda w=w: [f() for f in items[w::4]]) for w in range(4)})
            if s == 12:
                p.need("B3"); self.barrier()
            for nt in range(11):
                for t in range(2): p(MFMA, acc[t][nt], aB[nt], aX[t][s], acc[t][nt] if s else 0)
                if s + 1 < 16: rdB(s + 1, nt)
        self.stamp("p3main")
        for t in range(2): self.ap.free(aX[t])
        self.ap.free(aB); self.vp.free(lb)
        self.barrier()
        items = []
        for i in range(19):
            for kh in range(2):
                items.append(lambda i=i, kh=kh: self.job_b4_step(22 * kh + i, kh * 77824 + i * 4096, "B4"))
        self.b4_items = items
        n_early = 16
        self.by_wave({w: (lambda w=w: [f() for f in items[:n_early][w::4]]) for w in range(4)})
        self.b4_rest = items[n_early:]
        tmp = self.va(1, "tmp"); st = [self.va(4, "st") for t in range(2)]
        for t in range(2):
            self.stats_finish(st8[t], st[t], tmp)
            p("v_mul_f32", st[t][3], tmp, st[t][1])
            p("v_mul_f32", st[t][2], self.sL2E[1], st[t][1])
        self.vp.free(st8[0], st8[1])
        ad = self.va(1, "ad"); p("v_lshlrev_b32", ad, 4, self.vG); p("v_add_u32", ad, L_MISC, ad)
        hp = [self.va(4, "hp") for _ in range(2)]
        sH = [self.sa(1, "h") for _ in range(2)]
        p("s_lshl_b32", self.sT, self.sW, 1); p("s_mul_i32", self.sT, self.sT, HSTEPS * 1024); p("s_add_u32", sH[0], self.sT, self.sHc)
        p("s_add_u32", sH[1], sH[0], HSTEPS * 1024)
        sHf = [self.sa(1, "hf") for _ in range(2)]
        p("s_lshl_b32", self.sT, self.sJ, 11)
        for t in range(2): p("s_add_u32", sHf[t], sH[t], self.sT)
        NEGM = "op_sel_hi:[1,0,1] neg_lo:[0,1,0] neg_hi:[0,1,0]"
        def glu(t, i, dst2, cg, cu):
            Gt, U = acc[t][2 * i], acc[t][2 * i + 1]
            for a in range(2): p("v_pk_fma_f32", Gt[2 * a:2 * a + 2], cg[2 * a:2 * a + 2], st[t][0:2], Gt[2 * a:2 * a + 2], mods=NEGM)
            for a in range(2): p("v_pk_mul_f32", Gt[2 * a:2 * a + 2], Gt[2 * a:2 * a + 2], st[t][2:4], mods="op_sel_hi:[1,0]")
            for a in range(4): p("v_exp_f32", Gt[a], Gt[a])
            for a in range(2): p("v_pk_fma_f32", U[2 * a:2 * a + 2], cu[2 * a:2 * a + 2], st[t][0:2], U[2 * a:2 * a + 2], mods=NEGM)
            for a in range(2): p("v_pk_fma_f32", Gt[2 * a:2 * a + 2], Gt[2 * a:2 * a + 2], st[t][2:4], st[t][2:4], mods="op_sel:[0,1,1] op_sel_hi:[1,1,1]")
            for a in range(4): p("v_rcp_f32", Gt[a], Gt[a])
            for a in range(2): p("v_pk_mul_f32", U[2 * a:2 * a + 2], U[2 * a:2 * a + 2], Gt[2 * a:2 * a + 2])
            for a in range(2): p("v_cvt_pk_bf16_f32", dst2[a], U[2 * a], U[2 * a + 1])
        cg = self.va(4, "cg"); cu = self.va(4, "cu")
        stores = []
        for i in range(5):
            p("ds_read_b128", cg, ad, mods="offset:%d" % (L_CS3 - L_MISC + 128 * i)); p("ds_read_b128", cu, ad, mods="offset:%d" % (L_CS3 - L_MISC + 128 * i + 64))
            for t in range(2):
                if i < 4: dst = hp[t][2 * (i & 1):2 * (i & 1) + 2]
                else: dst = hp[t][0:2]
                glu(t, i, dst, cg, cu)
                if i in (1, 3):
                    def stf(m, t=t, i=i): p("buffer_store_dwordx4", hp[t], self.vL16, self.WS, sHf[t], mods=("offen offset:%d " % (1024 * (i >> 1)) + m).strip(), token="hst")
                    self.dual_store(stf)
                elif i == 4:
                    def stf(m, t=t): p("buffer_store_dwordx2", hp[t][0:2], self.vH4, self.WS, sH[t], mods=("offen " + m).strip(), token="hst")
                    self.dual_store(stf)
        p("ds_read_b128", cg, ad, mods="offset:%d" % (L_CS3 - L_MISC + 640))
        for t in range(2):
            M = acc[t][10]
            for a in range(2): p("v_pk_fma_f32", M[2 * a:2 * a + 2], cg[2 * a:2 * a + 2], st[t][0:2], M[2 * a:2 * a + 2], mods=NEGM)
            for a in range(2): p("v_pk_mul_f32", M[2 * a:2 * a + 2], M[2 * a:2 * a + 2], st[t][0:2], mods="op_sel:[0,1] op_sel_hi:[1,1]")
        X, Y = acc[0][10], acc[1][10]
        for a in range(4): p("v_permlane32_swap_b32", X[a], Y[a])
        for a in range(4): p("v_mul_f32", X[a], self.sL2E[1], X[a])
        for a in range(4): p("v_exp_f32", X[a], X[a])
        for a in range(2): p("v_pk_add_f32", X[2 * a:2 * a + 2], X[2 * a:2 * a + 2], 1.0, mods="op_sel_hi:[1,0]")
        for a in range(4): p("v_rcp_f32", X[a], X[a])
        for a in range(2): p("v_pk_mul_f32", Y[2 * a:2 * a + 2], Y[2 * a:2 * a + 2], X[2 * a:2 * a + 2])
        hm = self.va(2, "hm")
        for a in range(2): p("v_cvt_pk_bf16_f32", hm[a], Y[2 * a], Y[2 * a + 1])
        def stm(m): p("buffer_store_dwordx2", hm, self.vHm, self.WS, sH[0], mods=("offen " + m).strip(), token="hst")
        self.dual_store(stm)
        p.need("hst"); self.barrier()
        for t in range(2): self.vp.free(acc[t])
        self.vp.free(tmp, st, ad, hp, cg, cu, hm); self.sp.free(sH, sHf)
        self.stamp("p3done")

    def p4(self):
        p = self.p
        vb = self.va(8, "vb", 1)
        p("s_mul_i32", self.sT, self.sKH, 77824)
        for nt in range(4):
            p("v_add_u32", vb[nt], self.sT, self.vT2[nt]); p("v_add_u32", vb[4 + nt], 65536, vb[nt])
        sA = self.sa(1, "p4a")
        p("s_lshl_b32", self.sT, self.sI, 2); p("s_mul_i32", self.sT, self.sT, HSTEPS * 1024); p("s_add_u32", sA, self.sT, self.sHc)
        p("s_mul_i32", self.sT, self.sKH, 22 * 1024); p("s_add_u32", sA, sA, self.sT)
        def lds_of(s, nt):
            a = (s % 19) * 4096
            return (vb[nt], a) if a + 2048 < 65536 else (vb[4 + nt], a - 65536)
        def mid(s):
            if s == 4:
                self.barrier()
                its = [(lambda i=i, kh=kh: self.job_b4_step(22 * kh + i, kh * 77824 + (i - 19) * 4096, "B4b")) for i in range(19, 22) for kh in range(2)]
                self.by_wave({w: (lambda w=w: [f() for f in its[w::4]]) for w in range(4)})
            if s == 17:
                p.need("B4b"); self.barrier()
        acc = self.gemm64(22, sA, HSTEPS * 1024, lds_of, mid)
        self.sp.free(sA); self.vp.free(vb)
        self.stamp("p4main")
        self.barrier()
        xp = self.reduce64(acc, 0)
        return xp

    def store_out(self, xp):
        p = self.p
        for b in range(2):
            p("v_permlane16_swap_b32", xp[4 * b], xp[4 * b + 2]); p("v_permlane16_swap_b32", xp[4 * b + 1], xp[4 * b + 3])
        ad = self.va(2, "ad", 1)
        p("s_lshl_b32", self.sT, self.sC, 7); p("s_lshl_b32", self.sT1, self.sOwn, 4); p("s_add_u32", self.sT, self.sT, self.sT1); p("s_sub_u32", self.sT, self.sT, 16)
        p("v_add_u32", ad[0], self.sT, self.vM); p("v_lshlrev_b32", ad[0], 10, ad[0])
        p("v_and_b32", ad[1], 1, self.vG); p("v_lshlrev_b32", ad[1], 5, ad[1]); p("v_add_u32", ad[0], ad[0], ad[1])
        p("v_lshrrev_b32", ad[1], 1, self.vG); p("v_lshlrev_b32", ad[1], 4, ad[1]); p("v_add_u32", ad[0], ad[0], ad[1])
        p("s_lshl_b32", self.sT, self.sJJ, 7)
        for b in range(2):
            p("buffer_store_dwordx4", xp[4 * b:4 * b + 4], ad[0], self.OUT, self.sT, mods="offen offset:%d" % (64 * b))
        self.vp.free(ad)
    def halo_export(self, xp, sv):
        p = self.p
        def f():
            p("s_add_u32", self.sT, self.sXout, XSZ); p("s_lshl_b32", self.sT1, self.sJJ, 11); p("s_add_u32", self.sT3, self.sT, self.sT1)
            p("buffer_store_dwordx4", xp[0:4], self.vL16, self.WS, self.sT3, mods="offen " + WT, token="xst")
            p("buffer_store_dwordx4", xp[4:8], self.vL16, self.WS, self.sT3, mods="offen offset:1024 " + WT, token="xst")
            p("s_add_u32", self.sT, self.sSTout, STSZ); p("s_lshl_b32", self.sT1, self.sJJ, 8); p("s_add_u32", self.sT3, self.sT, self.sT1)
            p("buffer_store_dword", sv, self.vSt, self.WS, self.sT3, mods="offen " + WT, token="xst")
        def g():
            self.if_scalar("lt", self.sC, 15, f)
        self.if_scalar("eq", self.sOwn, 8, g)
    def dump_stamps(self):
        if not self.o.stamps: return
        p = self.p
        def f():
            t = self.va(1, "t")
            p("s_lshl_b32", self.sT, S(2), 8); p("s_add_u32", self.sT, self.sT, WS_STAMP)
            p("v_lshlrev_b32", t, 2, self.vLane)
            p("buffer_store_dword", self.vStamp, t, self.WS, self.sT, mods="offen")
            if self.o.dbgstamps:
                sel = self.o.dbgstamps
                def g():
                    u = self.va(2, "u")
                    p("v_readlane_b32", self.sT1, self.vStamp, 0)
                    p("v_subrev_u32", u[0], self.sT1, self.vStamp)
                    for n, idx in enumerate(sel):
                        p("v_readlane_b32", self.sT3, u[0], idx)
                        p("v_mov_b32", u[1], self.sT3)
                        p("v_mov_b32", t, 4 * (n + 1))
                        p("s_mov_b64", "exec", 1)
                        p("buffer_store_dword", u[1], t, self.DBG, 0, mods="offen")
                        p("s_mov_b64", "exec", -1)
                    self.vp.free(u)
                self.if_scalar("eq", S(2), 0, g)
            self.vp.free(t)
        self.if_wave(0, f)
    def build(self):
        p, o = self.p, self.o
        self.prologue()
        self.consts()
        self.h_offsets()
        self.sL2E = self.sp.alloc(2, 2, "l2e"); p("s_mov_b32", self.sL2E[0], f2u(LOG2E)); p("s_mov_b32", self.sL2E[1], f2u(-LOG2E))
        self.sW3 = self.sa(1, "w3"); p("s_mul_i32", self.sW3, self.sJ, W3SZ); p("s_add_u32", self.sW3, self.sW3, WS_W3)
        self.startup()
        self.entry()
        def stop(n):
            if o.upto == n:
                p("s_branch", "L_fin"); return True
            return False
        p.label("L_layer")
        self.layer_bases()
        self.p1()
        def w1():
            self.split3(self.b3_items(range(6)))
            self.if_scalar("eq", self.sLayer, 0, self.csum3)
        self.handoff(2, w1)
        self.stamp("h12")
        if not stop(1):
            self.p2()
            self.handoff(3, lambda: self.split3(self.b3_items(range(6, 13))), need=("B3",))
            self.stamp("h23")
        if o.upto not in (1,) and not stop(2):
            self.p3()
            self.handoff(4, lambda: self.split3(self.b4_rest), need=("B4",))
            self.stamp("h34")
        if o.upto not in (1, 2) and not stop(3):
            xp = self.p4()
            lout = p.newlabel("Lout")
            p("s_cmp_eq_u32", self.sLayer, 1); p("s_cbranch_scc1", lout)
            sv = self.store_x(xp, self.sXout, self.sSTout, "xst")
            self.halo_export(xp, sv)
            p.need("xst"); self.barrier()
            self.vp.free(sv)
            self.stamp("p4done")
            def hpub():
                p("s_add_u32", self.sT3, self.sC, 1)
                sN = self.sa(1, "cn"); p("s_mov_b32", sN, self.sT3)
                self.publish(5, base=WS_FLAG_H, sIdx=sN, sSub=self.sJJ, force_wt=True)
                self.sp.free(sN)
            def hp():
                self.if_scalar("eq", self.sI, 1, lambda: self.if_scalar("lt", self.sC, 15, hpub))
            self.if_wave(0, hp)
            self.unpack_resid(xp)
            self.handoff(5, lambda: self.split3([(lambda st=st: self.job_b1_abs(st)) for st in range(16)]), need=("B1",))
            self.stamp("h41")
            if o.upto == 4: p("s_branch", "L_fin")
            p("s_mov_b32", self.sLayer, 1)
            p("s_branch", "L_layer")
            p.label(lout)
            self.store_out(xp)
            self.vp.free(xp)
        p.label("L_fin")
        self.stamp("end")
        self.dump_stamps()
        p.label("L_exit")
        p("s_endpgm")
    def job_b1_abs(self, st):
        p = self.p
        for half in range(2):
            p("s_mov_b32", "m0", st * 6144 + half * 3072)
            p("s_mov_b32", self.sT, (32 * st + 16 * half) * 3072)
            for u in range(3): self.dma(self.WQKV, self.vB1[u], self.sT, 1024 * u, "B1")

def emit(opt):
    g = G(opt); g.build()
    ins = finalize(g.p.ins)
    errs = check_loop(ins, "L_layer")
    if errs:
        print("LOOP CHECK:", len(errs)); print("\n".join(errs[:20]))
    hdr = open(opt.header).read() if opt.header else ""
    body = to_text(ins)
    txt = hdr
    txt += '.amdgcn_target "amdgcn-amd-amdhsa--gfx950"\n.text\n.globl %s\n.p2align 8\n.type %s,@function\n%s:\n' % (KNAME, KNAME, KNAME)
    txt += body
    txt += '''.section .rodata,"a"
.p2align 6
.amdhsa_kernel %s
  .amdhsa_next_free_vgpr 512
  .amdhsa_next_free_sgpr 102
  .amdhsa_accum_offset 256
  .amdhsa_group_segment_fixed_size 0
  .amdhsa_kernarg_size 80
  .amdhsa_user_sgpr_count 2
  .amdhsa_user_sgpr_kernarg_segment_ptr 1
  .amdhsa_system_sgpr_workgroup_id_x 1
  .amdhsa_float_denorm_mode_32 3
.end_amdhsa_kernel
''' % KNAME
    return txt, g, ins

if __name__ == "__main__":
    ap = argparse.ArgumentParser()
    ap.add_argument("-o", default="out.s"); ap.add_argument("--upto", type=int, default=99)
    ap.add_argument("--stamps", action="store_true"); ap.add_argument("--slow", action="store_true")
    ap.add_argument("--header", default="header.txt")
    ap.add_argument("--dbgstamps", type=lambda x: [int(v) for v in x.split(",")], default=None)
    opt = ap.parse_args()
    txt, g, ins = emit(opt)
    open(opt.o, "w").write(txt)
    nb = sum(1 for i in ins if i.op not in ("label", "raw", "need"))
    print("instructions:", nb, "vgpr high", g.vp.high, "agpr high", g.ap.high, "sgpr high", g.sp.high)
    if opt.stamps: open(opt.o + ".stamps", "w").write("\n".join(g.stamp_names))
```

```python
import re

class Reg:
    __slots__ = ("k", "i", "n")
    def __init__(self, k, i, n=1):
        self.k, self.i, self.n = k, i, n
    def __getitem__(self, x):
        if isinstance(x, slice):
            a = x.start or 0
            b = self.n if x.stop is None else x.stop
            assert 0 <= a < b <= self.n, (self, x)
            return Reg(self.k, self.i + a, b - a)
        assert 0 <= x < self.n, (str(self), x)
        return Reg(self.k, self.i + x, 1)
    def __str__(self):
        return "%s%d" % (self.k, self.i) if self.n == 1 else "%s[%d:%d]" % (self.k, self.i, self.i + self.n - 1)
    __repr__ = __str__
    def regs(self):
        return [(self.k, self.i + j) for j in range(self.n)]
    def __len__(self): return self.n

def V(i, n=1): return Reg("v", i, n)
def A(i, n=1): return Reg("a", i, n)
def S(i, n=1): return Reg("s", i, n)

class Pool:
    def __init__(self, kind, lo, hi):
        self.kind, self.lo, self.hi = kind, lo, hi
        self.used = {}
        self.high = lo
    def alloc(self, n=1, align=None, name="?"):
        if align is None:
            align = 1 if n == 1 else (2 if self.kind != "s" else (2 if n == 2 else 4))
        i = (self.lo + align - 1) // align * align
        while i + n <= self.hi:
            if all((i + j) not in self.used for j in range(n)):
                for j in range(n): self.used[i + j] = name
                self.high = max(self.high, i + n)
                return Reg(self.kind, i, n)
            i += align
        raise RuntimeError("out of %s regs for %s (n=%d); used=%d" % (self.kind, name, n, len(self.used)))
    def free(self, *rs):
        for r in rs:
            if isinstance(r, (list, tuple)):
                self.free(*r); continue
            for (_, i) in r.regs():
                del self.used[i]

_SPECIAL = {"vcc": [("s", 106), ("s", 107)], "vcc_lo": [("s", 106)], "vcc_hi": [("s", 107)],
            "exec": [("s", 126), ("s", 127)], "m0": [("s", 124)], "scc": [("s", 200)]}
_RE = re.compile(r"^(-|\|)?([vas])(\d+|\[(\d+):(\d+)\])\|?$")
def regs_of(x):
    if isinstance(x, Reg): return x.regs()
    if isinstance(x, (int, float)): return []
    t = str(x).strip()
    if t.startswith("-"): t2 = t[1:]
    else: t2 = t
    if t2.startswith("abs(") : t2 = t2[4:-1]
    if t2 in _SPECIAL: return list(_SPECIAL[t2])
    m = _RE.match(t2)
    if m:
        k = m.group(2)
        if m.group(4) is not None: return [(k, j) for j in range(int(m.group(4)), int(m.group(5)) + 1)]
        return [(k, int(m.group(3)))]
    return []

TRANS = ("v_exp_f32", "v_log_f32", "v_rcp_f32", "v_rsq_f32", "v_sqrt_f32", "v_sin_f32", "v_cos_f32", "v_rcp_iflag_f32")
class Ins:
    __slots__ = ("op", "ops", "mods", "defs", "uses", "kind", "token", "cmt", "label", "target", "need", "lds")
    def __init__(self, op, ops=(), mods="", token=None, cmt=None, lds=None):
        self.op, self.ops, self.mods, self.token, self.cmt = op, list(ops), mods, token, cmt
        self.lds = lds
        self.label = None; self.target = None; self.need = None
        self.classify()
    def classify(self):
        op, o = self.op, self.ops
        d, u = [], []
        R = regs_of
        k = "other"
        if op == "label" or op == "need" or op == "raw":
            k = op
        elif op.startswith("v_mfma"):
            k = "mfma"; d = R(o[0]); u = R(o[1]) + R(o[2]) + R(o[3])
        elif op.startswith("v_"):
            k = "trans" if any(op.startswith(t) for t in TRANS) else "valu"
            if op.startswith("v_cmp"):
                d = R(o[0]); u = sum((R(x) for x in o[1:]), [])
                if op.startswith("v_cmpx"): d += R("exec")
            elif op.startswith("v_permlane16_swap") or op.startswith("v_permlane32_swap"):
                d = R(o[0]) + R(o[1]); u = list(d); k = "permlane"
            elif op.startswith(("v_add_co", "v_sub_co", "v_addc_co", "v_subb_co", "v_subrev_co")):
                d = R(o[0]) + R(o[1]); u = sum((R(x) for x in o[2:]), [])
            elif op.startswith(("v_fmac", "v_dot2c", "v_pk_fmac", "v_mac")):
                d = R(o[0]); u = sum((R(x) for x in o), [])
            elif op.startswith("v_cndmask") and len(o) == 3:
                d = R(o[0]); u = R(o[1]) + R(o[2]) + R("vcc")
            else:
                d = R(o[0]); u = sum((R(x) for x in o[1:]), [])
            if "_dpp" in op or "row_" in self.mods or "quad_perm" in self.mods:
                u += R(o[0]); k = "dpp"
            if op.startswith("v_readfirstlane") or op.startswith("v_readlane"): k = "readlane"
            u += R("exec")
        elif op.startswith("ds_"):
            k = "ds"
            if op.startswith(("ds_read", "ds_bpermute", "ds_permute", "ds_swizzle")):
                d = R(o[0]); u = sum((R(x) for x in o[1:]), [])
            else:
                u = sum((R(x) for x in o), [])
        elif op.startswith(("buffer_", "global_")):
            k = "vmem"
            lds = " lds" in (" " + self.mods) or "load_lds" in op
            if op in ("buffer_wbl2", "buffer_inv"):
                pass
            elif "load" in op and not lds:
                d = R(o[0]); u = sum((R(x) for x in o[1:]), [])
            elif "atomic" in op and "sc0" in self.mods:
                d = R(o[0]); u = sum((R(x) for x in o), [])
            else:
                u = sum((R(x) for x in o), [])
                if lds: u += R("m0")
        elif op.startswith("s_"):
            k = "salu"
            if op.startswith(("s_load", "s_buffer_load", "s_memtime", "s_memrealtime")):
                k = "smem"; d = R(o[0]); u = sum((R(x) for x in o[1:]), [])
            elif op.startswith(("s_cmp", "s_bitcmp")):
                d = R("scc"); u = sum((R(x) for x in o), [])
            elif op.startswith(("s_cbranch", "s_branch")):
                k = "branch"; self.target = o[0]
                if "scc" in op: u = R("scc")
                if "vcc" in op: u = R("vcc")
                if "exec" in op: u = R("exec")
            elif op in ("s_waitcnt", "s_barrier", "s_nop", "s_sleep", "s_setprio", "s_endpgm", "s_sethalt"):
                k = op
            elif op.startswith("s_cselect"):
                d = R(o[0]); u = R(o[1]) + R(o[2]) + R("scc")
            elif op.startswith(("s_addc", "s_subb")):
                d = R(o[0]) + R("scc"); u = R(o[1]) + R(o[2]) + R("scc")
            elif "saveexec" in op:
                d = R(o[0]) + R("exec") + R("scc"); u = R(o[1]) + R("exec")
            elif op.startswith(("s_mov", "s_movk", "s_getreg", "s_mul_i32", "s_mul_hi", "s_getpc")):
                d = R(o[0]); u = sum((R(x) for x in o[1:]), [])
            else:
                d = R(o[0]) + R("scc"); u = sum((R(x) for x in o[1:]), [])
        self.kind, self.defs, self.uses = k, d, u
    def text(self):
        if self.op == "label": return "%s:" % self.label
        if self.op == "raw": return self.ops[0]
        if self.op == "need": return "; need %s" % (self.need,)
        s = "  " + self.op
        if self.ops: s += " " + ", ".join(str(x) for x in self.ops)
        if self.mods: s += " " + self.mods
        if self.cmt: s += " ; " + self.cmt
        return s
    def is_store(self): return self.kind == "vmem" and ("store" in self.op or ("atomic" in self.op))
    def passes(self):
        if "16x16x32" in self.op or "16x16x16" in self.op: return 4
        if "32x32x16" in self.op or "32x32x8" in self.op: return 8
        raise ValueError(self.op)

class Prog:
    def __init__(self):
        self.ins = []
        self._lab = 0
    def __call__(self, op, *ops, mods="", token=None, cmt=None, lds=None):
        i = Ins(op, ops, mods, token, cmt, lds); self.ins.append(i); return i
    def label(self, name):
        i = Ins("label"); i.label = name; self.ins.append(i); return i
    def newlabel(self, base="L"):
        self._lab += 1; return "%s_%d" % (base, self._lab)
    def need(self, *tokens):
        i = Ins("need"); i.need = tokens; self.ins.append(i)
    def needr(self, *regs):
        i = Ins("need"); i.need = (); i.uses = sum((r.regs() for r in regs), []); self.ins.append(i)
    def raw(self, t): self.ins.append(Ins("raw", [t]))
    def extend(self, lst): self.ins.extend(lst)
    def take(self):
        l = self.ins; self.ins = []; return l

class WState:
    def __init__(self):
        self.p = {}
        self.smem = False
    def copy(self):
        w = WState(); w.p = {k: list(v) for k, v in self.p.items()}; w.smem = self.smem; return w
    def merge(self, o):
        for k, v in o.p.items():
            if k in self.p: self.p[k][1] = min(self.p[k][1], v[1])
            else: self.p[k] = list(v)
        self.smem = self.smem or o.smem
    def issue(self, cnt, keys):
        for k, v in self.p.items():
            if v[0] == cnt: v[1] += 1
        for k in keys: self.p[k] = [cnt, 0]
    def retire(self, cnt, n):
        for k in [k for k, v in self.p.items() if v[0] == cnt and v[1] >= n]: del self.p[k]

def parse_wait(i):
    vm = lg = None
    t = " ".join(str(x) for x in i.ops) + " " + i.mods
    m = re.search(r"vmcnt\((\d+)\)", t);  vm = int(m.group(1)) if m else None
    m = re.search(r"lgkmcnt\((\d+)\)", t); lg = int(m.group(1)) if m else None
    return vm, lg

def insert_waits(ins, check_only=False, entry=None, capture=None):
    out = []
    captured = {}
    st = entry.copy() if entry else WState()
    pend_lab = {}
    dead = False
    errs = []
    for i in ins:
        if i.op == "label":
            if i.label in pend_lab:
                o = pend_lab.pop(i.label)
                if dead: st = o
                else: st.merge(o)
            dead = False
            out.append(i); continue
        if i.op == "raw":
            out.append(i); continue
        need_vm, need_lg = None, None
        keys = []
        if i.op == "need": keys = [("tok", t) for t in i.need] + list(i.uses)
        else: keys = list(i.uses) + list(i.defs)
        for k in keys:
            if k in st.p:
                c, a = st.p[k]
                if c == "vm": need_vm = a if need_vm is None else min(need_vm, a)
                elif c == "lg": need_lg = a if need_lg is None else min(need_lg, a)
                elif c == "sm": need_lg = 0
        if need_lg is not None and st.smem: need_lg = 0
        if need_vm is not None or need_lg is not None:
            if check_only:
                errs.append("missing wait before: %s (vm %s lg %s)" % (i.text(), need_vm, need_lg))
            parts = []
            if need_vm is not None:
                n = min(need_vm, 63); parts.append("vmcnt(%d)" % n); st.retire("vm", n)
            if need_lg is not None:
                n = min(need_lg, 15); parts.append("lgkmcnt(%d)" % n); st.retire("lg", n)
                if n == 0: st.retire("sm", 0); st.smem = False
            if not check_only: out.append(Ins("s_waitcnt", [" ".join(parts)]))
        if i.op == "need":
            out.append(i); continue
        if i.op == "s_waitcnt":
            vm, lg = parse_wait(i)
            if vm is not None: st.retire("vm", vm)
            if lg is not None:
                st.retire("lg", lg)
                if lg == 0: st.retire("sm", 0); st.smem = False
        elif i.kind == "vmem":
            if i.op not in ("buffer_wbl2x",):
                ks = list(i.defs)
                if i.token: ks.append(("tok", i.token))
                st.issue("vm", ks)
        elif i.kind == "ds":
            ks = list(i.defs)
            if i.token: ks.append(("tok", i.token))
            st.issue("lg", ks)
        elif i.kind == "smem":
            for k in i.defs: st.p[k] = ["sm", 0]
            st.smem = True
        out.append(i)
        if i.kind == "branch" and capture and i.target == capture: captured["st"] = st.copy()
        if i.kind == "branch":
            if i.target in pend_lab: pend_lab[i.target].merge(st)
            else: pend_lab[i.target] = st.copy()
            if i.op == "s_branch": dead = True
    if check_only: return errs, captured.get('st')
    return out

def insert_nops(ins, check_only=False):
    out = []
    errs = []
    hist = []
    pend = {}
    dead = False
    def required(i):
        need = 0
        us, ds = set(i.uses), set(i.defs)
        for dist, p in hist:
            pd = set(p.defs)
            r = 0
            vd = {x for x in pd if x[0] in "va"}
            sd = {x for x in pd if x[0] == "s"}
            pk = p.kind
            isvalu = pk in ("valu", "trans", "dpp", "permlane", "readlane")
            if isvalu:
                if i.kind == "mfma" and vd & us: r = max(r, 2)
                if i.kind == "permlane" and vd & us: r = max(r, 2)
                if i.kind == "dpp" and vd & us: r = max(r, 2)
                if i.kind == "readlane" and vd & us: r = max(r, 1)
                if pk == "trans" and i.kind in ("valu", "dpp", "permlane", "readlane", "mfma", "ds", "vmem") and vd & us: r = max(r, 1)
                if sd:
                    if i.kind == "vmem" and sd & us: r = max(r, 5)
                    if i.kind in ("valu", "trans", "dpp", "permlane", "readlane", "mfma") and (sd & us):
                        r = max(r, 4 if i.kind == "readlane" else 2)
                        if ("s", 126) in sd: r = max(r, 5 if i.kind == "dpp" else 4)
                    if i.kind in ("salu", "branch", "smem") and sd & us: r = max(r, 4)
                if p.op.startswith("v_dot") and vd & (us | ds):
                    if i.op == p.op:
                        if vd & (set(regs_of(i.ops[1])) | set(regs_of(i.ops[2]))): r = max(r, 3)
                    else: r = max(r, 3)
                if ("op_sel" in p.mods or "sdwa" in p.op) and vd & us and i.kind in ("valu", "trans", "dpp"): r = max(r, 1)
            if pk == "mfma":
                ps = p.passes()
                full = {4: 8, 8: 12}[ps]
                if vd & (us | ds):
                    if i.kind == "mfma":
                        c = set(regs_of(i.ops[3])); ab = set(regs_of(i.ops[1])) | set(regs_of(i.ops[2]))
                        if vd & ab: r = max(r, full)
                        if vd & c:
                            if c == vd and i.passes() == ps: pass
                            else: r = max(r, {4: 6, 8: 10}[ps])
                        if (vd & set(i.defs)) and not (c == vd): r = max(r, full)
                    else:
                        r = max(r, full)
                pc = set(regs_of(p.ops[3]))
                if i.kind in ("valu", "trans", "dpp", "permlane") and pc & ds: r = max(r, {4: 3, 8: 7}[ps])
            if pk == "salu" and ("s", 124) in sd and i.kind in ("vmem", "ds") and ("s", 124) in us: r = max(r, 1)
            if pk == "salu" and ("s", 126) in sd and i.kind == "dpp": r = max(r, 1)
            if pk == "vmem" and p.is_store() and ("x4" in p.op or "x3" in p.op):
                data = set(regs_of(p.ops[0])) if p.op.startswith("buffer") else set(regs_of(p.ops[1]))
                if data & ds and i.kind in ("valu", "trans", "dpp", "permlane", "mfma"): r = max(r, 2)
            if r > dist: need = max(need, r - dist)
        return need
    def age(n):
        for h in hist: h[0] += n
        while hist and hist[0][0] > 24: hist.pop(0)
    for i in ins:
        if i.op == "label":
            if i.label in pend:
                o = pend.pop(i.label)
                if dead: hist = o
                else:
                    hist = sorted(hist + o, key=lambda h: -h[0])
            dead = False
            out.append(i); continue
        if i.op in ("raw", "need"):
            out.append(i); continue
        n = required(i)
        if n > 0:
            if check_only: errs.append("hazard: need %d more states before %s" % (n, i.text()))
            else:
                m = n
                while m > 0:
                    c = min(m, 16); out.append(Ins("s_nop", [c - 1])); m -= c
            age(n)
        out.append(i)
        if i.op == "s_nop": age(int(i.ops[0]) + 1)
        else: age(1)
        if i.op != "s_nop": hist.append([0, i])
        if i.kind == "branch":
            snap = [list(h) for h in hist]
            if i.target in pend: pend[i.target] = sorted(pend[i.target] + snap, key=lambda h: -h[0])
            else: pend[i.target] = snap
            if i.op == "s_branch": dead = True
    if check_only: return errs
    return out

def finalize(ins):
    a = insert_waits(ins)
    b = insert_nops(a)
    return b
def to_text(ins): return "\n".join(i.text() for i in ins) + "\n"

def check_loop(ins, label):
    errs, st = insert_waits(ins, check_only=True, capture=label)
    assert not errs, errs[:5]
    if st is None: return []
    k = [n for n, i in enumerate(ins) if i.op == "label" and i.label == label][0]
    errs, _ = insert_waits(ins[k:], check_only=True, entry=st)
    return errs

def check_lds(ins):
    errs = []
    acc = []
    for n, i in enumerate(ins):
        if i.op == "s_waitcnt":
            vm, lg = parse_wait(i)
            for a in acc:
                if a["done"]: continue
                if a["cnt"] == "vm" and vm is not None and a["after"] >= vm: a["done"] = True
                if a["cnt"] == "lg" and lg is not None and a["after"] >= lg: a["done"] = True
        elif i.op == "s_barrier":
            acc = [a for a in acc if not a["done"]]
        if i.kind in ("vmem", "ds"):
            cnt = "vm" if i.kind == "vmem" else "lg"
            if i.lds:
                lo, hi = i.lds[0], i.lds[1]; priv = len(i.lds) > 2
                kind = "r" if i.op.startswith("ds_read") else "w"
                for a in acc:
                    if a["lo"] < hi and lo < a["hi"] and (a["kind"] == "w" or kind == "w"):
                        if a["kind"] == "w" and kind == "w" and a["tok"] == i.token and a["cnt"] == cnt: continue
                        ok = a["done"] and (a["bar"] or (priv and a["priv"]))
                        if priv and a["priv"] and a["cnt"] == "lg" and cnt == "lg": ok = True
                        if not ok:
                            errs.append("LDS race [%d,%d): %s(%s) then %s(%s)" % (max(lo, a["lo"]), min(hi, a["hi"]), a["kind"], a["txt"], kind, i.text().strip()))
                if kind == "w":
                    acc = [a for a in acc if not (a["lo"] >= lo and a["hi"] <= hi and a["done"] and a["bar"])]
            for a in acc:
                if a["cnt"] == cnt and not a["done"]: a["after"] += 1
            if i.lds:
                acc.append(dict(kind=kind, lo=lo, hi=hi, done=False, bar=False, cnt=cnt, after=0, priv=priv, tok=i.token, txt=i.text().strip()))
        if len(acc) > 4000: acc = [a for a in acc if not (a["done"] and a["bar"] and a["kind"] == "r")]
    return errs
```

```python
KB = 1024
WS_FLAG   = 0x0
WS_FLAG_W = 0x2000
WS_FLAG_H = 0x4000
WS_FLAG_P = 0x6000
WS_STAMP  = 0x8000
XSZ = 9 * 16 * KB
WS_X  = [0x100000 + i * 0x240000 for i in range(4)]
STSZ = 9 * 16 * 128
WS_ST = [0xA00000 + i * 0x48000 for i in range(4)]
OSZ = 8 * 16 * KB
WS_O  = [0xC00000 + i * 0x200000 for i in range(2)]
HSTEPS = 44
HSZ = 8 * HSTEPS * KB
WS_H  = [0x1000000 + i * 0x580000 for i in range(2)]
W3SZ = 16 * 11 * KB
WS_W3 = 0x1C00000
WS_W1 = 0x1F00000
WS_W3CS = 0x2100000
WS_END = 0x2200000
LDS_SIZE = 163840
L_MISC = 159744
L_CS1T = L_MISC
L_CS1V = L_MISC + 256
L_CS3  = L_MISC + 384
L_RMEAN = L_MISC + 1088
L_RRSTD = L_MISC + 1664
L_NONCE = L_MISC + 2240
def hspace_F(sigma, k):
    kh, i = divmod(sigma, 22)
    if i < 16:
        return 704 * kh + 88 * (i >> 1) + 32 * (i & 1) + k
    lam = 4 * (i - 16) + (k >> 3)
    return 704 * kh + 88 * (lam // 3) + 64 + 8 * (lam % 3) + (k & 7)
```

```python
import sys, argparse, struct
from collections import deque
from fw import *
from layout import *

KNAME = "interleave_layers__sliding_local_dilated__glu_gated_glu__prompt_kernel"
NEG = 0xF149F2CA
LOG2E = 1.4426950408889634
def f2u(x): return struct.unpack("<I", struct.pack("<f", x))[0]
MFMA = "v_mfma_f32_16x16x32_bf16"
MFMA16 = "v_mfma_f32_16x16x16_bf16"
WT = "sc0 sc1"
SPIN_MAX = 400000
OOB = 0x7ffffff0
KB = 1024
L_B1 = 0
L_HA = 96 * KB
L_EX = 112 * KB
L_B2HI = 124 * KB
L_B2LO = 0
L_RG = 98304; L_RU = 98304 + 6144
def b2_slot(kh, i): return (L_B2HI + (2 * i + kh) * 4096) if i < 4 else (L_B2LO + (2 * (i - 4) + kh) * 4096)
def b3_slot(s):
    if s < 8: return (33 + 11 * s) * KB
    if s < 11: return 11 * (s - 8) * KB
    if s < 14: return (121 + 11 * (s - 11)) * KB
    return (33 + 11 * (s - 14)) * KB
def b4_slot(i):
    if i < 8: return (56 + 8 * i) * KB
    if i < 12: return 8 * (i - 8) * KB
    if i < 16: return (124 + 8 * (i - 12)) * KB
    if i < 19: return (32 + 8 * (i - 16)) * KB
    return b4_slot(i - 19)
L_SCR2 = 0
L_SCR4 = 96 * KB

class G:
    def __init__(self, opt):
        self.o = opt
        self.p = Prog()
        self.vp = Pool("v", 1, 256)
        self.ap = Pool("a", 0, 256)
        self.sp = Pool("s", 44, 102)
        self.stamp_names = []
        self.fq = deque()
    def va(self, n=1, name="?", align=None): return self.vp.alloc(n, align, name)
    def aa(self, n=1, name="?"): return self.ap.alloc(n, 2 if n < 4 else 4, name)
    def sa(self, n=1, name="?"): return self.sp.alloc(n, None, name)
    def cap(self, fn):
        old = self.p.ins; self.p.ins = []
        fn()
        got = self.p.ins; self.p.ins = old
        return got
    def queue(self, *fns):
        for fn in fns: self.fq.append(self.cap(fn))
    def pump(self, n=1):
        for _ in range(n):
            if self.fq: self.p.ins.extend(self.fq.popleft())
    def flush(self): self.pump(len(self.fq))
    def weave(self, a, b, ra=1, rb=1):
        i = j = 0
        def isx(x): return x.op == "s_mov_b64" and str(x.ops[0]) == "exec"
        while i < len(a) or j < len(b):
            n = 0
            while i < len(a) and n < ra:
                x = a[i]; self.p.ins.append(x); i += 1; n += 1
                if isx(x) and x.ops[1] != -1:
                    while True:
                        x = a[i]; self.p.ins.append(x); i += 1
                        if isx(x) and x.ops[1] == -1: break
            self.p.ins.extend(b[j:j + rb]); j += rb
    def weave_groups(self, main, groups, start=0, every=8):
        out = []; k = 0; nxt = start
        for n, ins in enumerate(main):
            if k < len(groups) and n >= nxt and not (out and out[-1].op.startswith("s_cmp")) and ins.kind != "branch":
                out.extend(groups[k]); k += 1; nxt = n + every
            out.append(ins)
        for g in groups[k:]: out.extend(g)
        self.p.ins.extend(out)
    def stamp(self, name):
        if not self.o.stamps: return
        p = self.p
        self.stamp_names.append(name)
        p("s_memrealtime", self.sT2)
        p("s_waitcnt", "lgkmcnt(0)")
        p("s_mov_b32", "m0", self.sStampIdx); p("s_nop", 3); p("v_writelane_b32", self.vStamp, self.sT2[0], "m0")
        p("s_add_u32", self.sStampIdx, self.sStampIdx, 1)
        if name in ("start", "end", "p3s", "p3main"):
            p("s_memtime", self.sT2); p("s_waitcnt", "lgkmcnt(0)")
            p("v_writelane_b32", self.vStamp, self.sT2[0], {"start": 60, "end": 61, "p3s": 62, "p3main": 63}[name])
    def srd(self, dst, lo, nbytes):
        p = self.p
        p("s_mov_b32", dst[0], lo[0]); p("s_and_b32", dst[1], lo[1], 0xffff)
        p("s_mov_b32", dst[2], nbytes); p("s_mov_b32", dst[3], 0x20000)
    def if_wave(self, w, fn, eq=True):
        p = self.p; l = p.newlabel("Lw")
        p("s_cmp_lg_u32" if eq else "s_cmp_eq_u32", self.sW, w)
        p("s_cbranch_scc1", l); fn(); p.label(l)
    def by_wave(self, blocks):
        p = self.p; end = p.newlabel("Lwe"); items = list(blocks.items())
        for n, (w, fn) in enumerate(items):
            nxt = p.newlabel("Lw")
            p("s_cmp_lg_u32", self.sW, w); p("s_cbranch_scc1", nxt)
            fn()
            if n != len(items) - 1: p("s_branch", end)
            p.label(nxt)
        p.label(end)
    def if_scalar(self, cmp, a, b, fn):
        p = self.p; l = p.newlabel("Li")
        inv = {"eq": "lg", "lg": "eq", "lt": "ge", "ge": "lt"}[cmp]
        p("s_cmp_%s_u32" % inv, a, b); p("s_cbranch_scc1", l); fn(); p.label(l)
    def dual_store(self, emit):
        p = self.p; slow = p.newlabel("Lsl"); end = p.newlabel("Lse")
        p("s_cmp_eq_u32", self.sFast, 0); p("s_cbranch_scc1", slow)
        emit(""); p("s_branch", end); p.label(slow); emit(WT); p.label(end)
    def barrier(self): self.p("s_barrier")

    def prologue(self):
        p = self.p
        self.X0, self.WQKV, self.WO, self.WG, self.WU, self.WD, self.OUT, self.WS, self.DBG = [S(8 + 4 * i, 4) for i in range(9)]
        self.sT3 = S(3); self.sT = S(4); self.sT1 = S(5); self.sT2 = S(6, 2)
        p("s_cmp_ge_u32", S(2), 256)
        p("s_cbranch_scc1", "L_exit")
        ka = self.sp.alloc(16, 4, "ka"); kb = self.sp.alloc(4, 4, "kb")
        p("s_load_dwordx16", ka, S(0, 2), 0)
        p("s_load_dwordx4", kb, S(0, 2), 64)
        for n in "C J W XCC Nonce Fast Layer I JJ MH KH StampIdx Xb STb Ob Hb Own Spin Dm W1k".split():
            setattr(self, "s" + n, self.sp.alloc(1, None, n))
        self.vLane = self.va(1, "lane"); self.vM = self.va(1, "m"); self.vG = self.va(1, "g")
        self.vL16 = self.va(1, "l16"); self.vOnes = self.va(4, "ones"); self.vZero = self.va(1, "zero")
        t = self.va(1, "t")
        p("v_lshrrev_b32", t, 6, V(0))
        p("v_and_b32", self.vLane, 63, V(0))
        p("v_readfirstlane_b32", self.sW, t)
        p("v_and_b32", self.vM, 15, self.vLane)
        p("v_lshrrev_b32", self.vG, 4, self.vLane)
        p("v_lshlrev_b32", self.vL16, 4, self.vLane)
        p("v_mov_b32", self.vZero, 0)
        for i in range(4): p("v_mov_b32", self.vOnes[i], 0x3F803F80)
        p("s_getreg_b32", self.sXCC, "hwreg(HW_REG_XCC_ID, 0, 4)")
        p("s_and_b32", self.sT, S(2), 7); p("s_lshl_b32", self.sT, self.sT, 1)
        p("s_lshr_b32", self.sT1, S(2), 7); p("s_add_u32", self.sC, self.sT, self.sT1)
        p("s_lshr_b32", self.sJ, S(2), 3); p("s_and_b32", self.sJ, self.sJ, 15)
        p("s_lshr_b32", self.sI, self.sJ, 3); p("s_and_b32", self.sJJ, self.sJ, 7)
        p("s_lshr_b32", self.sMH, self.sW, 1); p("s_and_b32", self.sKH, self.sW, 1)
        p("s_lshl_b32", self.sW1k, self.sW, 10)
        p("s_mov_b32", self.sLayer, 0); p("s_mov_b32", self.sFast, 0); p("s_mov_b32", self.sStampIdx, 0)
        p("s_mul_i32", self.sXb, self.sC, XSZ); p("s_mul_i32", self.sSTb, self.sC, STSZ)
        p("s_mul_i32", self.sOb, self.sC, OSZ); p("s_mul_i32", self.sHb, self.sC, HSZ)
        p("s_lshl_b32", self.sT, self.sI, 2); p("s_lshl_b32", self.sT1, self.sMH, 1)
        p("s_add_u32", self.sT, self.sT, self.sT1); p("s_add_u32", self.sT, self.sT, self.sKH)
        p("s_add_u32", self.sOwn, self.sT, 1)
        if self.o.stamps:
            self.vStamp = self.va(1, "stamp"); p("v_mov_b32", self.vStamp, 0)
        p("s_waitcnt", "lgkmcnt(0)")
        self.srd(self.X0, ka[0:2], 2048 * 1024); self.srd(self.WQKV, ka[2:4], 512 * 3072)
        self.srd(self.DBG, kb[0:2], 256); self.srd(self.WS, kb[2:4], WS_END)
        self.srd(self.WO, ka[4:6], 512 * 1024);  self.srd(self.WG, ka[8:10], 512 * 2752)
        self.srd(self.WU, ka[10:12], 512 * 2752); self.srd(self.WD, ka[12:14], 1376 * 1024)
        self.srd(self.OUT, ka[14:16], 2048 * 1024)
        self.sp.free(ka, kb); self.vp.free(t)
        self.stamp("start")
        def wr():
            t2 = self.va(1, "t2")
            p("s_memrealtime", self.sT2); p("s_waitcnt", "lgkmcnt(0)")
            p("s_or_b32", self.sT, self.sT2[0], 1)
            p("v_mov_b32", t2, self.sT)
            p("buffer_store_dword", t2, self.vZero, self.DBG, 0, mods="offen " + WT)
            self.vp.free(t2)
        p("s_or_b32", self.sT, S(2), self.sW)
        self.if_scalar("eq", self.sT, 0, wr)

    def const_b1(self):
        p = self.p
        t = self.va(4, "t")
        if not hasattr(self, "vB1"): self.vB1 = self.va(3, "vB1", 1)
        p("s_lshl_b32", self.sT, self.sJ, 6)
        for u in range(3):
            p("v_add_u32", t[0], 64 * u, self.vLane)
            p("v_mul_u32_u24", t[1], 0x5556, t[0]); p("v_lshrrev_b32", t[1], 18, t[1])
            p("v_mul_u32_u24", t[2], 12, t[1]); p("v_sub_u32", t[2], t[0], t[2])
            p("v_lshrrev_b32", t[3], 2, t[1]); p("v_and_b32", t[3], 1, t[3]); p("v_lshlrev_b32", t[3], 1, t[3])
            p("v_xor_b32", t[2], t[2], t[3])
            p("v_mul_u32_u24", t[1], 3072, t[1])
            p("v_lshrrev_b32", t[3], 2, t[2]); p("v_lshlrev_b32", t[3], 10, t[3]); p("v_add_u32", t[1], t[1], t[3])
            p("v_and_b32", t[2], 3, t[2]); p("v_lshlrev_b32", t[2], 4, t[2]); p("v_add_u32", t[1], t[1], t[2])
            p("v_add_u32", t[1], self.sT, t[1])
            if u: p("v_subrev_u32", self.vB1[u], 1024 * u, t[1])
            else: p("v_mov_b32", self.vB1[u], t[1])
        self.vp.free(t)
    def consts(self):
        p = self.p
        t = self.va(4, "t")
        self.vB2 = self.va(4, "vB2", 1); self.vBq = self.va(1, "vBq")
        p("v_lshrrev_b32", t[0], 3, self.vLane)
        p("v_lshrrev_b32", t[1], 1, t[0]); p("v_and_b32", t[1], 3, t[1]); p("v_lshlrev_b32", t[1], 1, t[1])
        p("v_and_b32", t[2], 7, self.vLane); p("v_xor_b32", t[2], t[2], t[1]); p("v_lshlrev_b32", t[2], 4, t[2])
        p("v_lshlrev_b32", t[0], 10, t[0]); p("v_add_u32", t[0], t[0], t[2])
        p("s_lshl_b32", self.sT, self.sJJ, 7)
        p("v_add_u32", self.vB2[0], self.sT, t[0])
        for q in range(1, 4): p("v_add_u32", self.vB2[q], 7168 * q, self.vB2[0])
        p("s_lshl_b32", self.sT, self.sW, 13); p("v_add_u32", self.vBq, self.sT, self.vB2[0])
        self.vRho = self.va(1, "rho"); self.vIn = self.va(1, "in")
        vr = t[0]
        p("v_lshrrev_b32", vr, 2, self.vM)
        p("v_and_b32", t[1], 3, self.vLane); p("v_lshlrev_b32", self.vIn, 3, t[1])
        p("v_lshlrev_b32", self.vRho, 2, self.vG); p("v_add_u32", self.vRho, self.vRho, vr)
        self.vT1 = self.va(4, "vT1", 1); self.vT1b = self.va(1, "vT1b")
        p("v_mul_u32_u24", self.vT1b, 192, self.vRho); p("v_add_u32", self.vT1b, self.vT1b, self.vIn)
        p("v_and_b32", t[1], 1, self.vG); p("v_lshlrev_b32", t[1], 5, t[1])
        p("v_add_u32", self.vT1[0], self.vT1b, t[1]); p("v_sub_u32", self.vT1[2], self.vT1b, t[1])
        p("v_add_u32", self.vT1[1], 49152, self.vT1[0]); p("v_add_u32", self.vT1[3], 49152, self.vT1[2])
        self.vT2 = self.va(4, "vT2", 1)
        p("v_and_b32", t[1], 1, self.vG); p("v_lshlrev_b32", t[1], 1, t[1]); p("v_lshrrev_b32", t[2], 1, vr)
        p("v_add_u32", t[1], t[1], t[2])
        p("v_lshlrev_b32", t[2], 7, self.vRho); p("v_add_u32", t[2], t[2], self.vIn)
        p("s_lshl_b32", self.sT, self.sKH, 12); p("v_add_u32", t[2], self.sT, t[2])
        for nt in range(4):
            p("v_xor_b32", t[3], nt, t[1]); p("v_lshlrev_b32", t[3], 5, t[3]); p("v_add_u32", self.vT2[nt], t[2], t[3])
        self.vBiasP = self.va(4, "biasP"); self.vBiasC = self.va(4, "biasC"); self.vBiasP0 = self.va(4, "biasP0")
        p("v_mov_b32", t[2], NEG)
        for r in range(4):
            p("v_lshlrev_b32", t[0], 2, self.vG); p("v_add_u32", t[0], r, t[0])
            p("v_sub_u32", t[1], self.vM, t[0]); p("v_and_b32", t[1], 0x80000001, t[1])
            p("v_cmp_eq_u32", "vcc", 0, t[1]); p("v_cndmask_b32", self.vBiasC[r], t[2], self.vZero, "vcc")
            p("v_cmp_eq_u32", "vcc", 0x80000000, t[1]); p("v_cndmask_b32", self.vBiasP[r], t[2], self.vZero, "vcc")
        p("s_or_b32", self.sT, self.sC, self.sW); p("s_cmp_eq_u32", self.sT, 0)
        p("s_cselect_b64", "vcc", -1, 0)
        for r in range(4): p("v_cndmask_b32", self.vBiasP0[r], self.vBiasP[r], t[2], "vcc")
        self.vResF = self.va(16, "residF")
        self.vp.free(t)
        self.sLeft = [self.sa(1, "left") for _ in range(6)]
        for n in range(6):
            p("s_add_u32", self.sT, self.sW, 4 * n); p("s_mul_i32", self.sT1, self.sT, 43); p("s_lshr_b32", self.sT1, self.sT1, 7)
            p("s_mul_i32", self.sT3, self.sT1, 3); p("s_sub_u32", self.sT, self.sT, self.sT3)
            p("s_mul_i32", self.sT1, self.sT1, 88); p("s_lshl_b32", self.sT, self.sT, 3); p("s_add_u32", self.sT, self.sT, self.sT1)
            p("s_add_u32", self.sT, self.sT, 64); p("s_lshl_b32", self.sLeft[n], self.sT, 10)
        self.sW3 = self.sa(1, "w3"); p("s_mul_i32", self.sW3, self.sJ, W3SZ); p("s_add_u32", self.sW3, self.sW3, WS_W3)
        self.sW3w = self.sa(1, "w3w"); p("s_add_u32", self.sW3w, self.sW3, self.sW1k)
        self.sW1 = self.sa(1, "w1"); p("s_mul_i32", self.sW1, self.sJ, 96 * KB); p("s_add_u32", self.sW1, self.sW1, WS_W1)
        self.sL2E = self.sp.alloc(2, 2, "l2e"); p("s_mov_b32", self.sL2E[0], f2u(LOG2E)); p("s_mov_b32", self.sL2E[1], f2u(-LOG2E))
    def const_st(self):
        p = self.p; t = self.va(2, "t", 1)
        self.vSt = self.va(1, "vSt")
        p("v_and_b32", t[0], 1, self.vG); p("v_lshlrev_b32", t[0], 7, t[0])
        p("v_lshrrev_b32", t[1], 1, self.vG); p("v_lshlrev_b32", t[1], 6, t[1])
        p("v_lshlrev_b32", self.vSt, 2, self.vM); p("v_add3_u32", self.vSt, self.vSt, t[0], t[1])
        self.vp.free(t)
    def h_offsets(self):
        p = self.p
        self.vH4 = self.va(1, "vH4"); self.vHm = self.va(1, "vHm")
        t = self.va(4, "t")
        p("s_mul_i32", self.sT3, self.sI, 22); p("s_add_u32", self.sT3, self.sT3, 16)
        def pos(dst, lam):
            p("v_lshrrev_b32", t[1], 2, lam); p("v_add_u32", t[1], self.sT3, t[1]); p("v_lshlrev_b32", t[1], 10, t[1])
            p("v_and_b32", t[2], 1, lam); p("v_lshlrev_b32", t[2], 1, t[2]); p("v_and_b32", t[3], 1, self.vG)
            p("v_add_u32", t[2], t[2], t[3]); p("v_lshlrev_b32", t[2], 4, t[2]); p("v_add_u32", t[2], t[2], self.vM)
            p("v_lshlrev_b32", t[2], 4, t[2]); p("v_add_u32", t[1], t[1], t[2])
            p("v_and_b32", t[2], 2, lam); p("v_lshlrev_b32", t[2], 2, t[2]); p("v_add_u32", dst, t[1], t[2])
        p("s_mul_i32", self.sT, self.sJJ, 3)
        p("v_lshrrev_b32", t[0], 1, self.vG); p("v_add_u32", t[0], self.sT, t[0]); pos(self.vH4, t[0])
        p("s_add_u32", self.sT, self.sT, 2); p("v_mov_b32", t[0], self.sT); pos(self.vHm, t[0])
        p("v_lshrrev_b32", t[0], 5, self.vLane); p("v_mul_u32_u24", t[0], HSTEPS * 1024, t[0]); p("v_add_u32", self.vHm, self.vHm, t[0])
        self.vp.free(t)

    def dma(self, srd, voff, soff, off, token, lds, extra=""):
        m = "offen" + (" offset:%d" % off if off else "") + (" " + extra if extra else "") + " lds"
        self.p("buffer_load_dwordx4", voff, srd, soff, mods=m, token=token, lds=lds)
    def r_lin(self, sGw, goff, lds, token, n=4):
        p = self.p
        def body():
            p("s_add_u32", "m0", self.sW1k, lds); p("s_add_u32", self.sDm, sGw, goff)
            self.dma(self.WS, self.vL16, self.sDm, 0, token, (lds, lds + n * KB), "sc1")
        if n == 4: body()
        else: self.if_scalar("lt", self.sW, n, body)
    def r_rows(self, srd, row0, lds, token):
        p = self.p
        p("s_add_u32", "m0", self.sW1k, lds); p("s_mov_b32", self.sDm, row0 * 1024)
        self.dma(srd, self.vBq, self.sDm, 0, token, (lds, lds + 4096))
    def r_b4(self, kh, i, token):
        lds = b4_slot(i) + kh * 4096
        if i < 16: self.r_rows(self.WD, hspace_F(22 * kh + i, 0), lds, token)
        else:
            p = self.p
            p("s_add_u32", "m0", self.sW1k, lds); p("s_add_u32", self.sDm, self.sLeft[i - 16], 704 * kh * 1024)
            self.dma(self.WD, self.vB2[0], self.sDm, 0, token, (lds, lds + 4096))
    def b3_rounds(self, steps, token):
        out = []
        for s in steps:
            for u0 in (0, 4, 8):
                out.append(lambda s=s, u0=u0: self.r_lin(self.sW3w, s * 11264 + u0 * KB, b3_slot(s) + u0 * KB, token, n=min(4, 11 - u0)))
        return out
    def s_lin(self, sG, goff, lds, n, token):
        p = self.p; out = []
        for i in range(n):
            def f(i=i):
                if i % 4 == 0 or True:
                    p("s_mov_b32", "m0", lds + i * KB); p("s_add_u32", self.sDm, sG, goff + i * KB)
                self.dma(self.WS, self.vL16, self.sDm, 0, token, (lds + i * KB, lds + (i + 1) * KB), "sc1")
            out.append(f)
        return out
    def s_rows(self, srd, row0, lds, token):
        p = self.p; out = []
        for q in range(4):
            def f(q=q):
                p("s_mov_b32", "m0", lds); p("s_mov_b32", self.sDm, row0 * 1024)
                self.dma(srd, self.vB2[q], self.sDm, 1024 * q, token, (lds + q * KB, lds + (q + 1) * KB))
            out.append(f)
        return out
    def split3(self, items):
        self.by_wave({w: (lambda w=w: [f() for f in items[w - 1::3]]) for w in (1, 2, 3)})

    def publish(self, phase, addr_s, force_wt=False):
        p = self.p
        t = self.va(2, "pub", 1)
        p("v_mov_b32", t[0], addr_s)
        if isinstance(phase, int): p("s_add_u32", self.sT, self.sNonce, phase * 16)
        else:
            p("s_lshl_b32", self.sT, phase, 4); p("s_add_u32", self.sT, self.sT, self.sNonce)
        p("s_add_u32", self.sT, self.sT, self.sXCC)
        p("v_mov_b32", t[1], self.sT)
        p("s_mov_b64", "exec", 1)
        if force_wt: p("buffer_store_dword", t[1], t[0], self.WS, 0, mods="offen " + WT)
        else: self.dual_store(lambda m: p("buffer_store_dword", t[1], t[0], self.WS, 0, mods=("offen " + m).strip()))
        p("s_mov_b64", "exec", -1)
        self.vp.free(t)
    def flag_addr(self, dst, base, sIdx, sSub):
        p = self.p
        p("s_lshl_b32", dst, sIdx, 8); p("s_lshl_b32", self.sT1, sSub, 2); p("s_add_u32", dst, dst, self.sT1); p("s_add_u32", dst, dst, base)
    def poll_setup(self, vaddr, sBase, mask):
        p = self.p
        p("v_and_b32", vaddr, mask, self.vLane); p("v_lshlrev_b32", vaddr, 2, vaddr); p("v_add_u32", vaddr, sBase, vaddr)
    def poll_loop(self, vaddr, vval, sThr, sLim, first_loaded=False, force_true=None, keep=None):
        p = self.p
        l = p.newlabel("Lpoll"); ok = p.newlabel("Lok"); t = self.va(1, "pt")
        def test():
            p("v_subrev_u32", t, sThr, vval)
            p("v_cmp_gt_u32", "vcc", sLim, t)
            if force_true is not None: p("s_or_b64", "vcc", "vcc", force_true)
            p("s_cmp_eq_u64", "vcc", "exec")
        if first_loaded:
            test(); p("s_cbranch_scc1", ok)
        p("s_mov_b32", self.sSpin, 0)
        p.label(l)
        p("s_add_u32", self.sSpin, self.sSpin, 1); p("s_cmp_gt_u32", self.sSpin, SPIN_MAX); p("s_cbranch_scc1", "L_exit")
        p("buffer_load_dword", vval, vaddr, self.WS, 0, mods="offen sc1")
        test(); p("s_cbranch_scc0", l)
        p.label(ok)
        if keep is not None: p("v_mov_b32", keep, t)
        self.vp.free(t)
    def poll(self, phase, base, sIdx, n=16, keep=None, force_true=None):
        p = self.p
        t = self.va(2, "poll", 1); sB = self.sa(1, "pb"); sL = self.sa(1, "pl")
        p("s_lshl_b32", sB, sIdx, 8); p("s_add_u32", sB, sB, base)
        self.poll_setup(t[0], sB, n - 1)
        if isinstance(phase, int):
            p("s_add_u32", sB, self.sNonce, phase * 16); p("s_mov_b32", sL, 256 - phase * 16)
        else:
            p("s_lshl_b32", sL, phase, 4); p("s_add_u32", sB, sL, self.sNonce); p("s_sub_u32", sL, 256, sL)
        self.poll_loop(t[0], t[1], sB, sL, keep=keep, force_true=force_true)
        self.vp.free(t); self.sp.free(sB, sL)
    def handoff(self, pub_off, between=None, need=()):
        p = self.p
        sP = self.sa(1, "ph"); sA = self.sa(1, "pa")
        l1 = p.newlabel("Lh"); le = p.newlabel("Lhe")
        p("s_cmp_lg_u32", self.sW, 0); p("s_cbranch_scc1", l1)
        p("s_add_u32", sP, self.sPh, pub_off)
        self.flag_addr(sA, WS_FLAG, self.sC, self.sJ)
        self.publish(sP, sA); self.poll(sP, WS_FLAG, self.sC)
        p("s_branch", le); p.label(l1)
        if between: between()
        p.label(le)
        if need: p.need(*need)
        self.barrier()
        self.sp.free(sP, sA)

    def stats_loads(self, dst8, sBase, off):
        return [(lambda i=i: self.p("buffer_load_dword", dst8[i], self.vSt, self.WS, sBase, mods="offen offset:%d sc1" % (off + i * 256))) for i in range(8)]
    def stats_finish(self, src8, pair, tmp):
        p = self.p
        p("v_add_f32", src8[0], src8[0], src8[1]); p("v_add_f32", src8[2], src8[2], src8[3])
        p("v_add_f32", src8[4], src8[4], src8[5]); p("v_add_f32", src8[6], src8[6], src8[7])
        p("v_add_f32", src8[0], src8[0], src8[2]); p("v_add_f32", src8[4], src8[4], src8[6])
        p("v_add_f32", src8[0], src8[0], src8[4])
        p("v_mov_b32", tmp, src8[0])
        p("v_permlane16_swap_b32", src8[0], tmp)
        p("v_add_f32", src8[0], src8[0], tmp)
        p("v_mov_b32", tmp, src8[0])
        p("v_permlane32_swap_b32", src8[0], tmp)
        p("v_mul_f32", pair[0], f2u(1.0 / 512), src8[0])
        p("v_mul_f32", tmp, f2u(1.0 / 512), tmp)
        p("v_fma_f32", tmp, "-" + str(pair[0]), pair[0], tmp)
        p("v_max_f32", tmp, 0, tmp)
        p("v_add_f32", tmp, f2u(1e-5), tmp)
        p("v_rsq_f32", pair[1], tmp)
    def stats_of_frags(self, frags, out, tmp):
        p = self.p
        n = len(frags)
        for b, f in enumerate(frags):
            s, q = tmp[2 * b], tmp[2 * b + 1]
            p("v_dot2_f32_bf16", s, f[0], self.vOnes[0], self.vZero)
            p("v_dot2_f32_bf16", q, f[0], f[0], self.vZero)
            for i in range(1, 4):
                p("v_dot2_f32_bf16", s, f[i], self.vOnes[0], s)
                p("v_dot2_f32_bf16", q, f[i], f[i], q)
        for b in range(n):
            p("v_permlane32_swap_b32", tmp[2 * b], tmp[2 * b + 1])
        for b in range(n):
            p("v_add_f32", tmp[2 * b], tmp[2 * b], tmp[2 * b + 1])
        if n == 2:
            p("v_permlane16_swap_b32", tmp[0], tmp[2]); p("v_add_f32", out, tmp[0], tmp[2])
        else:
            p("v_mov_b32", tmp[1], tmp[0]); p("v_permlane16_swap_b32", tmp[0], tmp[1]); p("v_add_f32", out, tmp[0], tmp[1])
    def a_loader(self, aX, sO, nsteps):
        p = self.p
        nt = len(aX)
        def f(s, t):
            if s >= nsteps: return
            if s and s % 4 == 0: p("s_add_u32", sO[t], sO[t], 4096)
            p("buffer_load_dwordx4", aX[t][s], self.vL16, self.WS, sO[t], mods="offen offset:%d sc1" % ((s % 4) * 1024))
        return f

    def get_nonce(self, v):
        p = self.p
        l = p.newlabel("Lnonce"); ok = p.newlabel("Lnok")
        p("v_readfirstlane_b32", self.sNonce, v); p("s_cmp_lg_u32", self.sNonce, 0); p("s_cbranch_scc1", ok)
        p("s_mov_b32", self.sSpin, 0)
        p.label(l)
        p("s_add_u32", self.sSpin, self.sSpin, 1); p("s_cmp_gt_u32", self.sSpin, SPIN_MAX); p("s_cbranch_scc1", "L_exit")
        p("buffer_load_dword", v, self.vZero, self.DBG, 0, mods="offen sc1")
        p("v_readfirstlane_b32", self.sNonce, v); p("s_cmp_eq_u32", self.sNonce, 0); p("s_cbranch_scc1", l)
        p.label(ok)
    def startup(self):
        p = self.p
        x = [self.va(4, "p0x%d" % i) for i in range(3)]
        vo = self.va(1, "p0off"); vn = self.va(1, "nonce")
        l3 = p.newlabel("Ls3"); le = p.newlabel("Lse")
        p("s_cmp_eq_u32", self.sW, 3); p("s_cbranch_scc1", l3)
        p("s_lshl_b32", self.sT, self.sC, 7); p("s_mul_i32", self.sT1, self.sW, 48)
        p("s_add_u32", self.sT, self.sT, self.sT1); p("s_sub_u32", self.sT, self.sT, 16)
        p("v_add_u32", vo, self.sT, self.vM); p("v_lshlrev_b32", vo, 10, vo)
        p("v_lshlrev_b32", x[0][0], 4, self.vG); p("v_add_u32", vo, vo, x[0][0])
        p("s_lshl_b32", self.sT, self.sJ, 6); p("v_add_u32", vo, self.sT, vo)
        for n in range(3):
            p("buffer_load_dwordx4", x[n], vo, self.X0, 0, mods="offen")
            if n < 2: p("v_add_u32", vo, 16384, vo)
        p("buffer_load_dword", vn, self.vZero, self.DBG, 0, mods="offen sc1")
        p("s_branch", le)
        p.label(l3)
        self.const_b1()
        lp = p.newlabel("Lb1")
        p("s_mov_b32", self.sDm, 0); p("s_mov_b32", "m0", L_B1); p("s_mov_b32", self.sT3, 0)
        p.label(lp)
        for u in range(3): self.dma(self.WQKV, self.vB1[u], self.sDm, 1024 * u, "B1", (L_B1, L_B1 + 96 * KB))
        p("s_add_u32", self.sDm, self.sDm, 16 * 3072); p("s_add_u32", "m0", "m0", 3072)
        p("s_add_u32", self.sT3, self.sT3, 1); p("s_cmp_lt_u32", self.sT3, 32); p("s_cbranch_scc1", lp)
        p("buffer_load_dword", vn, self.vZero, self.DBG, 0, mods="offen sc1")
        p.label(le)
        vB1s = self.vB1
        self.const_st()
        self.if_wave(3, self.const_b1, eq=False)
        vq = self.va(6, "w3off", 1); t = self.va(4, "t")
        p("s_mul_i32", self.sT, self.sJ, 176)
        for u in range(6):
            p("v_add_u32", t[0], 64 * u, self.vLane)
            p("v_mul_u32_u24", t[1], 5958, t[0]); p("v_lshrrev_b32", t[1], 16, t[1])
            p("v_mul_u32_u24", t[2], 11, t[1]); p("v_sub_u32", t[2], t[0], t[2])
            p("v_and_b32", t[3], 16, t[1]); p("v_and_b32", t[0], 1, t[1]); p("v_lshlrev_b32", t[0], 3, t[0])
            p("v_add_u32", t[3], t[3], t[0]); p("v_and_b32", t[0], 15, t[1]); p("v_lshrrev_b32", t[0], 1, t[0])
            p("v_add_u32", t[3], t[3], t[0])
            p("v_mul_u32_u24", t[3], 2752, t[3]); p("v_lshlrev_b32", t[2], 4, t[2]); p("v_add_u32", t[3], t[3], t[2])
            p("v_add_u32", vq[u], self.sT, t[3])
            if u == 5:
                p("v_cmp_gt_u32", "vcc", 32, self.vLane); p("v_mov_b32", t[0], OOB)
                p("v_cndmask_b32", vq[u], t[0], vq[u], "vcc")
        self.vp.free(t)
        tmp = self.va(4, "tmp"); so = self.va(1, "so"); sv = self.va(1, "sv")
        sXo = self.sa(1, "xo"); sSo = self.sa(1, "so"); sFa = self.sa(1, "fa")
        def p0_all():
            p("v_and_b32", tmp[0], 1, self.vG); p("v_cmp_eq_u32", "vcc", 0, tmp[0])
            p("v_mov_b32", tmp[1], OOB); p("v_cndmask_b32", so, tmp[1], self.vSt, "vcc")
            for n in range(3):
                f = x[n]
                p("v_permlane16_swap_b32", f[0], f[2]); p("v_permlane16_swap_b32", f[1], f[3])
                p("v_permlane32_swap_b32", f[0], f[2]); p("v_permlane32_swap_b32", f[1], f[3])
                p("s_mul_i32", self.sT, self.sW, 3); p("s_add_u32", self.sT, self.sT, n)
                p("s_lshl_b32", self.sT1, self.sT, 14)
                p("s_add_u32", sXo, self.sT1, self.sXb); p("s_lshl_b32", self.sT1, self.sJ, 10)
                p("s_add_u32", sXo, sXo, self.sT1); p("s_add_u32", sXo, sXo, WS_X[0])
                p("buffer_store_dwordx4", f, self.vL16, self.WS, sXo, mods="offen " + WT, token="p0st")
                p("s_lshl_b32", self.sT1, self.sT, 11); p("s_add_u32", sSo, self.sT1, self.sSTb)
                p("s_lshl_b32", self.sT1, self.sJ, 7); p("s_add_u32", sSo, sSo, self.sT1); p("s_add_u32", sSo, sSo, WS_ST[0])
                self.stats_of_frags([f], sv, tmp)
                p("buffer_store_dword", sv, so, self.WS, sSo, mods="offen " + WT, token="p0st")
            self.get_nonce(vn)
            p("s_lshl_b32", self.sT, self.sJ, 2); p("s_add_u32", self.sT, self.sT, self.sW)
            p("s_lshl_b32", self.sT, self.sT, 2); p("s_lshl_b32", sFa, self.sC, 8); p("s_add_u32", sFa, sFa, self.sT); p("s_add_u32", sFa, sFa, WS_FLAG_P)
            p.need("p0st")
            self.publish(1, sFa, force_wt=True)
        self.if_wave(3, p0_all, eq=False)
        self.if_wave(3, lambda: self.get_nonce(vn))
        self.vp.free(x, vo, tmp, so, sv, vn); self.sp.free(sXo, sSo, sFa)
        self.stamp("p0done")
        sRow = self.sa(1, "w3row")
        p("s_mul_i32", sRow, self.sC, 32 * 2752)
        def w3_dma(srd, lds):
            def f():
                for u in range(6):
                    p("s_mov_b32", "m0", lds + 1024 * u)
                    self.dma(srd, vq[u], sRow, 0, "w3src", (lds + 1024 * u, lds + 1024 * (u + 1)))
            return f
        r1 = [self.va(4, "r1") for _ in range(3)]
        def w1_loads():
            p("s_and_b32", self.sT, self.sW, 1); p("s_lshl_b32", self.sT1, self.sC, 1); p("s_add_u32", self.sT, self.sT, self.sT1)
            p("s_mul_i32", self.sT3, self.sT, 16 * 3072)
            for u in range(3): p("buffer_load_dwordx4", r1[u], self.vB1[u], self.WQKV, self.sT3, mods="offen" + (" offset:%d" % (1024 * u) if u else ""))
        self.by_wave({0: w1_loads, 1: w3_dma(self.WG, L_RG), 2: w3_dma(self.WU, L_RU), 3: w1_loads})
        self.vp.free(vq); self.sp.free(sRow)
        self.consts(); self.h_offsets()
        def w1_stores():
            p("s_and_b32", self.sT, self.sW, 1); p("s_lshl_b32", self.sT1, self.sC, 1); p("s_add_u32", self.sT, self.sT, self.sT1)
            p("s_mul_i32", self.sT3, self.sT, 3072); p("s_add_u32", self.sT3, self.sT3, self.sW1)
            for u in range(3): p("buffer_store_dwordx4", r1[u], self.vL16, self.WS, self.sT3, mods="offen offset:%d %s" % (1024 * u, WT), token="w3st")
        self.by_wave({0: w1_stores, 3: w1_stores})
        self.vp.free(r1)
        p.need("w3src"); self.barrier()
        self.w3_repack()
    def w3_repack(self):
        p = self.p
        t = self.va(4, "t"); base = self.va(1, "rb")
        p("v_and_b32", t[0], 1, self.vG); p("v_lshlrev_b32", t[0], 2, t[0])
        p("v_lshrrev_b32", t[1], 2, self.vM); p("v_add_u32", t[0], t[0], t[1]); p("v_lshlrev_b32", t[0], 1, t[0])
        p("v_lshrrev_b32", t[1], 1, self.vG); p("v_add_u32", t[0], t[0], t[1])
        p("v_mul_u32_u24", base, 176, t[0]); p("v_add_u32", base, L_RG, base)
        frag = [self.va(4, "frag") for _ in range(3)]; ad = self.va(1, "ad")
        sO = self.sa(1, "w3o")
        p("s_mul_i32", self.sT, self.sC, 11 * 1024); p("s_add_u32", sO, self.sW3, self.sT)
        cacc = [self.va(4, "cacc") for _ in range(3)]; cad = self.va(1, "cad"); sCs = self.sa(1, "cs")
        p("s_lshl_b32", sCs, self.sJ, 4); p("s_add_u32", sCs, sCs, self.sC); p("s_lshl_b32", sCs, sCs, 10); p("s_add_u32", sCs, sCs, WS_W3CS)
        p("v_lshlrev_b32", cad, 4, self.vG); p("v_mov_b32", t[0], OOB)
        p("v_cmp_eq_u32", "vcc", 0, self.vM); p("v_cndmask_b32", cad, t[0], cad, "vcc")
        R = (L_RG, L_RG + 12288)
        def tiles(lst):
            for n, nt in enumerate(lst):
                if nt < 10:
                    off = (0 if nt % 2 == 0 else L_RU - L_RG) + 32 * (nt // 2)
                    p("v_add_u32", ad, base, self.vIn)
                    p("ds_read_b64_tr_b16", frag[n][0:2], ad, mods="offset:%d" % off, lds=R)
                    p("ds_read_b64_tr_b16", frag[n][2:4], ad, mods="offset:%d" % (off + 16 * 176), lds=R)
                else:
                    p("v_and_b32", t[0], 1, self.vLane); p("v_lshlrev_b32", t[0], 3, t[0])
                    p("v_and_b32", t[1], 2, self.vLane); p("v_mul_u32_u24", t[1], (L_RU - L_RG) // 2, t[1])
                    p("v_add3_u32", ad, base, t[0], t[1])
                    p("ds_read_b64_tr_b16", frag[n][0:2], ad, mods="offset:%d" % 160, lds=R)
                    p("ds_read_b64_tr_b16", frag[n][2:4], ad, mods="offset:%d" % (160 + 16 * 176), lds=R)
            for n, nt in enumerate(lst):
                p("s_add_u32", self.sT, sO, nt * 1024)
                p("buffer_store_dwordx4", frag[n], self.vL16, self.WS, self.sT, mods="offen " + WT, token="w3st")
                p(MFMA, cacc[n], frag[n], self.vOnes, 0)
            for n, nt in enumerate(lst):
                p("buffer_store_dwordx4", cacc[n], cad, self.WS, sCs, mods="offen offset:%d %s" % (nt * 64, WT), token="w3st")
        self.by_wave({w: (lambda w=w: tiles(list(range(w, 11, 4)))) for w in range(4)})
        self.vp.free(t, base, frag, ad, cacc, cad); self.sp.free(sO, sCs)
        p.need("w3st", "B1")
        self.barrier()
        def pub():
            sA = self.sa(1, "a"); self.flag_addr(sA, WS_FLAG_W, self.sJ, self.sC); self.publish(1, sA, force_wt=True); self.sp.free(sA)
        self.if_wave(0, pub)

    def wave_tile_base(self, dst, sNt):
        p = self.p; t = self.va(1, "t")
        p("v_and_b32", t, 1, self.vG); p("v_xor_b32", t, sNt, t); p("v_lshlrev_b32", t, 5, t)
        p("v_add_u32", dst, self.vT1b, t); self.vp.free(t)
    def csum1(self):
        p = self.p
        bT = self.va(2, "bT", 1); bV = self.va(2, "bV", 1)
        self.wave_tile_base(bT[0], self.sW); p("v_add_u32", bT[1], 49152, bT[0])
        p("s_and_b32", self.sT, self.sW, 1); p("s_add_u32", self.sT, self.sT, 4)
        self.wave_tile_base(bV[0], self.sT); p("v_add_u32", bV[1], 49152, bV[0])
        accT = self.va(4, "cT"); accV = self.va(4, "cV")
        fT = [self.aa(4, "fT") for _ in range(2)]; fV = [self.aa(4, "fV") for _ in range(2)]
        def rd(s):
            hi, so = s // 8, (s % 8) * 6144; R = (s * 6144, (s + 1) * 6144)
            p("ds_read_b64_tr_b16", fT[s % 2][0:2], bT[hi], mods="offset:%d" % so, lds=R)
            p("ds_read_b64_tr_b16", fT[s % 2][2:4], bT[hi], mods="offset:%d" % (so + 3072), lds=R)
            p("ds_read_b64_tr_b16", fV[s % 2][0:2], bV[hi], mods="offset:%d" % so, lds=R)
            p("ds_read_b64_tr_b16", fV[s % 2][2:4], bV[hi], mods="offset:%d" % (so + 3072), lds=R)
        rd(0)
        for s in range(16):
            if s + 1 < 16: rd(s + 1)
            p(MFMA, accT, fT[s % 2], self.vOnes, accT if s else 0)
            p(MFMA, accV, self.vOnes, fV[s % 2], accV if s else 0)
        ad = self.va(1, "ad")
        p("s_lshl_b32", self.sT, self.sW, 6); p("s_add_u32", self.sT, self.sT, L_CS1T)
        p("v_lshlrev_b32", ad, 4, self.vG); p("v_add_u32", ad, self.sT, ad)
        p("s_mov_b32", "exec_lo", 0x00010001); p("s_mov_b32", "exec_hi", 0x00010001)
        p("ds_write_b128", ad, accT, lds=(L_CS1T, L_CS1T + 256))
        p("s_and_b32", self.sT, self.sW, 1); p("s_lshl_b32", self.sT, self.sT, 6); p("s_add_u32", self.sT, self.sT, L_CS1V)
        p("s_mov_b64", "exec", -1)
        p("v_lshlrev_b32", ad, 2, self.vM); p("v_add_u32", ad, self.sT, ad)
        p("s_mov_b64", "exec", 0xFFFF)
        p("ds_write_b32", ad, accV[0], lds=(L_CS1V, L_CS1V + 128))
        p("s_mov_b64", "exec", -1)
        self.vp.free(bT, bV, accT, accV, ad); self.ap.free(fT, fV)
    def entry(self):
        p = self.p
        self.stamp("b1ready")
        self.csum1()
        def first_poll():
            k = self.va(2, "k", 1); sM = self.sp.alloc(2, 2, "msk")
            p("v_and_b32", k[0], 3, self.vLane); p("v_cmp_eq_u32", sM, 3, k[0])
            self.poll(1, WS_FLAG_P, self.sC, n=64, keep=k[0], force_true=sM)
            p("v_and_b32", k[0], 15, k[0]); p("v_cmp_eq_u32", "vcc", self.sXCC, k[0]); p("s_or_b64", "vcc", "vcc", sM)
            p("s_cmp_eq_u64", "vcc", "exec"); p("s_cselect_b32", self.sT, 0 if self.o.slow else 1, 0)
            p("v_mov_b32", k[0], self.sT); p("v_mov_b32", k[1], L_NONCE + 4); p("ds_write_b32", k[1], k[0], lds=(L_NONCE + 4, L_NONCE + 8))
            self.vp.free(k); self.sp.free(sM)
        self.if_wave(0, first_poll)
        p("s_waitcnt", "lgkmcnt(0)")
        self.barrier()
        t = self.va(1, "t"); p("v_mov_b32", t, L_NONCE + 4); p("ds_read_b32", t, t, lds=(L_NONCE + 4, L_NONCE + 8)); p("v_readfirstlane_b32", self.sFast, t); self.vp.free(t)
        self.stamp("x0ready")

    def layer_bases(self):
        p = self.p
        for n in "Xin Xmid Xout STin STmid STout Oc Hc Ph".split():
            if not hasattr(self, "s" + n): setattr(self, "s" + n, self.sa(1, n))
        L = self.sLayer
        p("s_mul_i32", self.sT, L, 2 * 0x240000); p("s_add_u32", self.sT, self.sT, self.sXb)
        p("s_add_u32", self.sXin, self.sT, WS_X[0]); p("s_add_u32", self.sXmid, self.sT, WS_X[1]); p("s_add_u32", self.sXout, self.sT, WS_X[2])
        p("s_mul_i32", self.sT, L, 2 * 0x48000); p("s_add_u32", self.sT, self.sT, self.sSTb)
        p("s_add_u32", self.sSTin, self.sT, WS_ST[0]); p("s_add_u32", self.sSTmid, self.sT, WS_ST[1]); p("s_add_u32", self.sSTout, self.sT, WS_ST[2])
        p("s_mul_i32", self.sT, L, 0x200000); p("s_add_u32", self.sT, self.sT, self.sOb); p("s_add_u32", self.sOc, self.sT, WS_O[0])
        p("s_mul_i32", self.sT, L, 0x580000); p("s_add_u32", self.sT, self.sT, self.sHb); p("s_add_u32", self.sHc, self.sT, WS_H[0])
        p("s_lshl_b32", self.sPh, L, 2)

    def lnT(self, dst2, a4, c4, pm, pr, prsel):
        p = self.p
        for i in range(2):
            p("v_pk_fma_f32", a4[2 * i:2 * i + 2], c4[2 * i:2 * i + 2], pm, a4[2 * i:2 * i + 2], mods="op_sel_hi:[1,0,1] neg_lo:[0,1,0] neg_hi:[0,1,0]")
        for i in range(2):
            p("v_pk_mul_f32", a4[2 * i:2 * i + 2], a4[2 * i:2 * i + 2], pr, mods=("op_sel:[0,1] op_sel_hi:[1,1]" if prsel else "op_sel_hi:[1,0]"))
        for i in range(2): p("v_cvt_pk_bf16_f32", dst2[i], a4[2 * i], a4[2 * i + 1])
    def lnN(self, dst2, a4, cv, m4, r4):
        p = self.p
        for i in range(2):
            p("v_pk_fma_f32", a4[2 * i:2 * i + 2], m4[2 * i:2 * i + 2], cv, a4[2 * i:2 * i + 2], mods="op_sel_hi:[1,0,1] neg_lo:[0,1,0] neg_hi:[0,1,0]")
        for i in range(2): p("v_pk_mul_f32", a4[2 * i:2 * i + 2], a4[2 * i:2 * i + 2], r4[2 * i:2 * i + 2])
        for i in range(2): p("v_cvt_pk_bf16_f32", dst2[i], a4[2 * i], a4[2 * i + 1])
    def p1(self):
        p, o = self.p, self.o
        D = o.d1
        aX = [[self.aa(4, "aX") for s in range(16)] for t in range(2)]
        aB = [self.aa(4, "aB") for nt in range(6)]
        acc = [[self.va(4, "acc") for nt in range(6)] for t in range(2)]
        sA = [self.sa(1, "p1a") for _ in range(2)]
        p("s_lshl_b32", self.sT, self.sW, 15); p("s_add_u32", sA[0], self.sT, self.sXin); p("s_add_u32", sA[0], sA[0], 16384)
        p("s_add_u32", sA[1], sA[0], 16384)
        ld = self.a_loader(aX, sA, 16)
        for s in range(D):
            for t in range(2): ld(s, t)
        def rdB(s, nt):
            b = self.vT1[(nt & 1) * 2 + s // 8]; so = (s % 8) * 6144 + nt * 32; R = (s * 6144, (s + 1) * 6144)
            p("ds_read_b64_tr_b16", aB[nt][0:2], b, mods="offset:%d" % so, lds=R)
            p("ds_read_b64_tr_b16", aB[nt][2:4], b, mods="offset:%d" % (so + 3072), lds=R)
        for nt in range(6): rdB(0, nt)
        st8 = [self.va(8, "st8", 1) for t in range(2)]; sth = self.va(8, "sth", 1)
        sS = self.sa(1, "p1s"); sHX = self.sa(1, "hx"); sHS = self.sa(1, "hs"); sThr = self.sa(1, "thr"); sLim = self.sa(1, "lim")
        p("s_lshl_b32", self.sT, self.sW, 12); p("s_add_u32", sS, self.sT, self.sSTin); p("s_add_u32", sS, sS, 2048)
        p("s_cmp_eq_u32", self.sC, 0)
        p("s_cselect_b32", sHX, WS_X[0], self.sXin); p("s_cselect_b32", sHS, WS_ST[0], self.sSTin)
        p("s_add_u32", sHX, sHX, self.sW1k)
        pv = self.va(2, "pv", 1)
        p("s_min_u32", self.sT3, self.sC, self.sLayer); p("s_cmp_lg_u32", self.sT3, 0)
        p("s_mov_b32", self.sT1, WS_FLAG_W); p("s_mov_b32", sThr, 16)
        p("s_cselect_b32", self.sT, self.sC, self.sJ); p("s_cselect_b32", self.sT1, WS_FLAG_H, self.sT1)
        p("s_cselect_b32", sThr, 5 * 16, sThr); p("s_cselect_b32", self.sT3, 7, 15)
        p("s_lshl_b32", self.sT, self.sT, 8); p("s_add_u32", self.sT, self.sT, self.sT1)
        p("v_and_b32", pv[0], self.sT3, self.vLane); p("v_lshlrev_b32", pv[0], 2, pv[0]); p("v_add_u32", pv[0], self.sT, pv[0])
        p("s_sub_u32", sLim, 256, sThr); p("s_add_u32", sThr, sThr, self.sNonce)
        rp = self.va(8, "rp")
        def ld_res():
            p("s_lshl_b32", self.sT, self.sOwn, 14); p("s_add_u32", self.sT, self.sT, self.sXin)
            p("s_lshl_b32", self.sT1, self.sJJ, 11); p("s_add_u32", self.sT, self.sT, self.sT1)
            p("buffer_load_dwordx4", rp[0:4], self.vL16, self.WS, self.sT, mods="offen sc1")
            p("buffer_load_dwordx4", rp[4:8], self.vL16, self.WS, self.sT, mods="offen offset:1024 sc1")
        st = [self.va(4, "st") for t in range(2)]; tmp = self.va(1, "tmp"); hst = self.va(4, "hst")
        slot = {}
        def at(s, nt, fn): slot.setdefault((s, nt), []).append(fn)
        for t in range(2):
            for i, f in enumerate(self.stats_loads(st8[t], sS, t * 2048)): at(2 + 2 * t + i // 4, (1, 2, 4, 5)[i % 4], f)
        at(6, 1, lambda: self.if_scalar("eq", self.sLayer, 0, ld_res))
        at(7, 1, lambda: p("buffer_load_dword", pv[1], pv[0], self.WS, 0, mods="offen sc1"))
        at(8, 0, lambda: (p.need("B1b"), self.barrier()))
        at(9, 1, lambda: self.poll_loop(pv[0], pv[1], sThr, sLim, first_loaded=True))
        for n in range(4): at(9 + n // 2, 2 + 2 * (n % 2), lambda n=n: self.r_lin(sHX, n * 4096, L_HA + n * 4096, "HA"))
        for i, f in enumerate(self.stats_loads(sth, sHS, 0)): at(11 + i // 4, (1, 2, 4, 5)[i % 4], f)
        k = 0
        for s in range(16 - D, 16):
            for nt in (1, 3, 5) if s < 15 else ():
                if k < 8:
                    at(s, nt, lambda k=k: self.r_rows(self.WO, 32 * (8 * (k & 1) + (k >> 1)), b2_slot(k & 1, k >> 1), "B2a")); k += 1
        while k < 8:
            at(15, 0, lambda k=k: self.r_rows(self.WO, 32 * (8 * (k & 1) + (k >> 1)), b2_slot(k & 1, k >> 1), "B2a")); k += 1
        for s in range(16):
            for nt in range(6):
                for t in range(2):
                    c = acc[t][nt] if s else 0
                    if nt < 4: p(MFMA, acc[t][nt], aB[nt], aX[t][s], c)
                    else: p(MFMA, acc[t][nt], aX[t][s], aB[nt], c)
                if s + 1 < 16: rdB(s + 1, nt)
                if nt == 0: ld(s + D, 0)
                if nt == 3: ld(s + D, 1)
                for f in slot.pop((s, nt), []): f()
        assert not slot, slot.keys()
        self.stamp("p1main")
        for t in range(2): self.ap.free(aX[t])
        self.ap.free(aB); self.sp.free(sA, sS, sHX, sHS, sThr, sLim); self.vp.free(pv)
        self.if_scalar("eq", self.sLayer, 0, lambda: self.unpack_resid(rp))
        self.vp.free(rp)
        p.need("HA"); self.barrier()
        Q = [[self.va(2, "Q") for h in range(2)] for t in range(2)]
        K = [[self.va(2, "K") for h in range(2)] for t in range(2)]
        KV = [self.va(8, "KV") for h in range(2)]
        o4 = [self.va(4, "o4") for t in range(2)]
        ad = self.va(4, "ad", 1)
        mN = [self.va(4, "mN") for t in range(2)]; rN = [self.va(4, "rN") for t in range(2)]
        cs = [self.va(4, "cs") for nt in range(4)]; csV = [self.va(2, "csV") for h in range(2)]
        RS = (L_RMEAN, L_RRSTD + 576)
        hb = self.va(2, "hb", 1); xa = self.va(1, "xa")
        hT = self.va(4, "hT"); hN = self.va(4, "hN"); fW = [self.aa(4, "fW") for _ in range(3)]; fX = [self.aa(4, "fX") for _ in range(3)]
        p("s_add_u32", self.sT, self.sW, 2); self.wave_tile_base(hb[0], self.sT); p("v_add_u32", hb[1], 49152, hb[0])
        p("v_add_u32", xa, L_HA, self.vL16)
        def streamA():
            p("v_lshlrev_b32", ad[2], 4, self.vG); p("v_add_u32", ad[2], L_MISC, ad[2])
            p("v_lshlrev_b32", ad[3], 2, self.vM); p("v_add_u32", ad[3], L_MISC, ad[3])
            for nt in range(4): p("ds_read_b128", cs[nt], ad[2], mods="offset:%d" % (L_CS1T - L_MISC + 64 * nt), lds=(L_CS1T, L_CS1T + 256))
            for h in range(2): p("ds_read_b32", csV[h][0], ad[3], mods="offset:%d" % (L_CS1V - L_MISC + 64 * h), lds=(L_CS1V, L_CS1V + 128))
            for t in range(2):
                self.stats_finish(st8[t], st[t], tmp)
                p("v_mul_f32", st[t][2], f2u(0.25), st[t][1])
            self.vp.free(st8[0], st8[1])
            p("s_lshl_b32", self.sT, self.sW, 7); p("s_add_u32", self.sT, self.sT, 64)
            p("v_add_u32", ad[0], self.sT, ad[3]); p("v_add_u32", ad[1], self.sT, ad[2])
            p("s_mov_b64", "exec", 0xFFFF)
            for t in range(2):
                p("ds_write_b32", ad[0], st[t][0], mods="offset:%d" % (L_RMEAN - L_MISC + 64 * t), lds=RS + ("p",))
                p("ds_write_b32", ad[0], st[t][1], mods="offset:%d" % (L_RRSTD - L_MISC + 64 * t), lds=RS + ("p",))
            p("s_mov_b64", "exec", -1)
            for t in range(2):
                p("ds_read_b128", mN[t], ad[1], mods="offset:%d" % (L_RMEAN - L_MISC + 64 * t), lds=RS + ("p",))
                p("ds_read_b128", rN[t], ad[1], mods="offset:%d" % (L_RRSTD - L_MISC + 64 * t), lds=RS + ("p",))
            for t in range(2):
                for h in range(2):
                    self.lnT(K[t][h], acc[t][2 + h], cs[2 + h], st[t][0:2], st[t][0:2], 1)
                    self.lnT(Q[t][h], acc[t][h], cs[h], st[t][0:2], st[t][2:4], 0)
            for t in range(2):
                for h in range(2): self.lnN(KV[h][4 + 2 * t:6 + 2 * t], acc[t][4 + h], csV[h], mN[t], rN[t])
            for t in range(2): self.vp.free(acc[t])
            self.vp.free(mN, rN, st, cs, csV)
            p("s_lshl_b32", self.sT, self.sW, 11); p("s_add_u32", self.sT, self.sT, L_EX + 2048)
            p("v_add_u32", ad[0], self.sT, self.vL16)
            for h in range(2):
                p("ds_write_b64", ad[0], K[1][h], mods="offset:%d" % (1024 * h), lds=(L_EX + 2048, L_EX + 10240))
                p("ds_write_b64", ad[0], KV[h][6:8], mods="offset:%d" % (1024 * h + 8), lds=(L_EX + 2048, L_EX + 10240))
            self.attention([(Q[1][h], K[0][h], K[1][h], KV[h][4:8], self.vBiasP, o4[1][2 * h:2 * h + 2]) for h in range(2)])
            self.stats_finish(sth, hst, tmp)
        A_ = self.cap(streamA)
        def streamB():
            def rd(s):
                hi, so = s // 8, (s % 8) * 6144; R = (s * 6144, (s + 1) * 6144)
                p("ds_read_b64_tr_b16", fW[s % 3][0:2], hb[hi], mods="offset:%d" % so, lds=R)
                p("ds_read_b64_tr_b16", fW[s % 3][2:4], hb[hi], mods="offset:%d" % (so + 3072), lds=R)
                p("ds_read_b128", fX[s % 3], xa, mods="offset:%d" % (s * 1024), lds=(L_HA + s * KB, L_HA + (s + 1) * KB))
            rd(0); rd(1)
            for s in range(16):
                if s + 2 < 16: rd(s + 2)
                p(MFMA, hT, fW[s % 3], fX[s % 3], hT if s else 0)
                p(MFMA, hN, fX[s % 3], fW[s % 3], hN if s else 0)
        B_ = self.cap(streamB)
        self.weave(A_, B_, 2, 1)
        self.vp.free(sth)
        hp = self.va(2, "hp"); c4 = self.va(4, "c4")
        lN = p.newlabel("LhN"); lE = p.newlabel("LhE")
        p("s_cmp_ge_u32", self.sW, 2); p("s_cbranch_scc1", lN)
        p("s_add_u32", self.sT, self.sW, 2); p("s_lshl_b32", self.sT, self.sT, 6)
        p("v_add_u32", xa, self.sT, ad[2]); p("ds_read_b128", c4, xa, mods="offset:%d" % (L_CS1T - L_MISC), lds=(L_CS1T, L_CS1T + 256))
        self.lnT(hp, hT, c4, hst[0:2], hst[0:2], 1)
        p("s_branch", lE); p.label(lN)
        m4 = self.va(4, "m4"); r4 = self.va(4, "r4")
        p("s_mov_b64", "exec", 0xFFFF)
        p("ds_write_b32", ad[3], hst[0], mods="offset:%d" % (L_RMEAN - L_MISC), lds=RS + ("p",)); p("ds_write_b32", ad[3], hst[1], mods="offset:%d" % (L_RRSTD - L_MISC), lds=RS + ("p",))
        p("s_mov_b64", "exec", -1)
        p("ds_read_b128", m4, ad[2], mods="offset:%d" % (L_RMEAN - L_MISC), lds=RS + ("p",)); p("ds_read_b128", r4, ad[2], mods="offset:%d" % (L_RRSTD - L_MISC), lds=RS + ("p",))
        p("s_and_b32", self.sT, self.sW, 1); p("s_lshl_b32", self.sT, self.sT, 6)
        p("v_add_u32", xa, self.sT, ad[3]); p("ds_read_b32", c4[0], xa, mods="offset:%d" % (L_CS1V - L_MISC), lds=(L_CS1V, L_CS1V + 128))
        self.lnN(hp, hN, c4[0:2], m4, r4)
        self.vp.free(m4, r4)
        p.label(lE)
        p("s_and_b32", self.sT, self.sW, 1); p("s_lshl_b32", self.sT, self.sT, 10)
        p("s_lshr_b32", self.sT1, self.sW, 1); p("s_lshl_b32", self.sT1, self.sT1, 3)
        p("s_add_u32", self.sT, self.sT, self.sT1); p("s_add_u32", self.sT, self.sT, L_EX)
        p("v_add_u32", xa, self.sT, self.vL16)
        p("ds_write_b64", xa, hp, lds=(L_EX, L_EX + 2048))
        self.vp.free(hb, hT, hN, hp, hst, c4); self.ap.free(fW, fX)
        p("s_waitcnt", "lgkmcnt(0)"); self.barrier()
        self.stamp("p1x1")
        p("s_lshl_b32", self.sT, self.sW, 11); p("s_add_u32", self.sT, self.sT, L_EX)
        p("v_add_u32", xa, self.sT, self.vL16)
        for h in range(2): p("ds_read_b128", KV[h][0:4], xa, mods="offset:%d" % (1024 * h), lds=(L_EX, L_EX + 8192))
        att = self.cap(lambda: self.attention([(Q[0][h], KV[h][0:2], K[0][h], KV[h][2:6], self.vBiasP0, o4[0][2 * h:2 * h + 2]) for h in range(2)]))
        groups = [self.cap(f) for f in self.b3_rounds(range(o.p1tail_b3), "B3a")]
        self.weave_groups(att, groups, start=0, every=6)
        p("s_lshl_b32", self.sT, self.sW, 15); p("s_add_u32", self.sT, self.sT, self.sOc)
        p("s_lshl_b32", self.sT1, self.sJ, 10); p("s_add_u32", self.sT3, self.sT, self.sT1)
        p("s_add_u32", self.sT1, self.sT3, 16384)
        def st_o(m):
            p("buffer_store_dwordx4", o4[0], self.vL16, self.WS, self.sT3, mods=("offen " + m).strip(), token="ost")
            p("buffer_store_dwordx4", o4[1], self.vL16, self.WS, self.sT1, mods=("offen " + m).strip(), token="ost")
        self.dual_store(st_o)
        self.vp.free(Q, K, KV, o4, tmp, ad, xa)
        p.need("ost", "B2a"); self.barrier()
        self.stamp("p1done")

    def attention(self, units):
        p = self.p
        streams = []; frees = []
        for (Q, Kp, Kc, V4, bP, out) in units:
            q = Prog()
            Sp = self.va(4, "Sp"); Sc = self.va(4, "Sc"); m = self.va(2, "m"); t = self.va(1, "t"); P = self.va(4, "P"); O = self.va(4, "O"); Sm = self.va(4, "Sm")
            q(MFMA16, Sp, Kp, Q, bP); q(MFMA16, Sc, Kc, Q, self.vBiasC)
            q("v_max3_f32", m[0], Sp[0], Sp[1], Sp[2]); q("v_max3_f32", m[0], m[0], Sp[3], Sc[0])
            q("v_max3_f32", m[0], m[0], Sc[1], Sc[2]); q("v_max_f32", m[0], m[0], Sc[3])
            q("v_mov_b32", t, m[0]); q("v_permlane16_swap_b32", m[0], t); q("v_max_f32", m[0], m[0], t)
            q("v_mov_b32", t, m[0]); q("v_permlane32_swap_b32", m[0], t); q("v_max_f32", m[0], m[0], t)
            q("v_mul_f32", m[0], self.sL2E[1], m[0])
            for Sx in (Sp, Sc):
                for i in range(2):
                    q("v_pk_fma_f32", Sx[2 * i:2 * i + 2], Sx[2 * i:2 * i + 2], self.sL2E, m, mods="op_sel_hi:[1,0,0]")
            for Sx in (Sp, Sc):
                for i in range(4): q("v_exp_f32", Sx[i], Sx[i])
            q("v_cvt_pk_bf16_f32", P[0], Sp[0], Sp[1]); q("v_cvt_pk_bf16_f32", P[1], Sp[2], Sp[3])
            q("v_cvt_pk_bf16_f32", P[2], Sc[0], Sc[1]); q("v_cvt_pk_bf16_f32", P[3], Sc[2], Sc[3])
            q(MFMA, Sm, self.vOnes, P, 0); q(MFMA, O, V4, P, 0)
            q("v_rcp_f32", m[0], Sm[0])
            for i in range(2): q("v_pk_mul_f32", O[2 * i:2 * i + 2], O[2 * i:2 * i + 2], m, mods="op_sel_hi:[1,0]")
            for i in range(2): q("v_cvt_pk_bf16_f32", out[i], O[2 * i], O[2 * i + 1])
            streams.append(q.take()); frees.append([Sp, Sc, m, t, P, O, Sm])
        n = max(len(s) for s in streams)
        for i in range(n):
            for s in streams:
                if i < len(s): p.ins.append(s[i])
        for f in frees: self.vp.free(f)

    def tr_bases(self, windows):
        p = self.p; out = {0: [self.vT2[nt] for nt in range(4)]}; tmp = []
        for w in windows:
            if w == 0: continue
            r = self.va(4, "vbw", 1); tmp.append(r)
            for nt in range(4): p("v_add_u32", r[nt], 65536 * w, self.vT2[nt])
            out[w] = [r[nt] for nt in range(4)]
        return out, tmp
    def gemm64(self, nsteps, sAbase, a_tile_stride, slot_of, D, hooks):
        p = self.p
        aX = [[self.aa(4, "aX") for s in range(nsteps)] for t in range(2)]
        aB = [self.aa(4, "aB") for nt in range(4)]
        acc = [[self.va(4, "acc") for nt in range(4)] for t in range(2)]
        sO = [self.sa(1, "ao") for _ in range(2)]
        p("s_lshl_b32", self.sT, self.sMH, 1); p("s_add_u32", self.sT1, self.sT, self.sKH)
        p("s_mul_i32", self.sT1, self.sT1, a_tile_stride); p("s_add_u32", sO[0], sAbase, self.sT1)
        p("s_add_u32", self.sT, self.sT, 1); p("s_sub_u32", self.sT, self.sT, self.sKH)
        p("s_mul_i32", self.sT1, self.sT, a_tile_stride); p("s_add_u32", sO[1], sAbase, self.sT1)
        ld = self.a_loader(aX, sO, nsteps)
        for s in range(D):
            for t in range(2): ld(s, t)
        bases, tmpb = self.tr_bases(sorted({slot_of(s) >> 16 for s in range(nsteps)} | {(slot_of(s) + 4096) >> 16 for s in range(nsteps)}))
        def rdB(s, nt):
            a = slot_of(s)
            w = a >> 16; so = a & 0xffff
            R = (a, a + 8192)
            p("ds_read_b64_tr_b16", aB[nt][0:2], bases[w][nt], mods="offset:%d" % so, lds=R)
            p("ds_read_b64_tr_b16", aB[nt][2:4], bases[w][nt], mods="offset:%d" % (so + 2048), lds=R)
        for nt in range(4): rdB(0, nt)
        for s in range(nsteps):
            for nt in range(4):
                for f in hooks.get((s, nt, "pre"), []): f()
                for t in range(2): p(MFMA, acc[t][nt], aB[nt], aX[t][s], acc[t][nt] if s else 0)
                if s + 1 < nsteps: rdB(s + 1, nt)
                if nt == 0: ld(s + D, 0)
                if nt == 2: ld(s + D, 1)
                for f in hooks.get((s, nt), []): f()
        self.sp.free(sO); self.vp.free(tmpb)
        for t in range(2): self.ap.free(aX[t])
        self.ap.free(aB)
        return acc
    def reduce64(self, acc, scratch, groups=()):
        p = self.p
        ad = self.va(2, "ad", 1); xp = self.va(8, "xp")
        R = (scratch, scratch + 16384)
        def part1():
            p("s_lshl_b32", self.sT, self.sW, 12); p("s_add_u32", self.sT, self.sT, scratch)
            p("v_add_u32", ad[0], self.sT, self.vL16)
            for nt in range(4): p("ds_write_b128", ad[0], acc[1][nt], mods="offset:%d" % (1024 * nt), lds=R)
            p("s_xor_b32", self.sT, self.sW, 1); p("s_lshl_b32", self.sT, self.sT, 12); p("s_add_u32", self.sT, self.sT, scratch)
            p("v_add_u32", ad[1], self.sT, self.vL16)
            for nt in range(4):
                for i in range(2): p("v_pk_add_f32", acc[0][nt][2 * i:2 * i + 2], acc[0][nt][2 * i:2 * i + 2], self.vResF[4 * nt + 2 * i:4 * nt + 2 * i + 2])
        self.weave_groups(self.cap(part1), [self.cap(g) for g in groups], start=2, every=3)
        p("s_waitcnt", "lgkmcnt(0)"); self.barrier()
        for nt in range(4): p("ds_read_b128", acc[1][nt], ad[1], mods="offset:%d" % (1024 * nt), lds=R)
        for nt in range(4):
            for i in range(2): p("v_pk_add_f32", acc[0][nt][2 * i:2 * i + 2], acc[0][nt][2 * i:2 * i + 2], acc[1][nt][2 * i:2 * i + 2])
            for i in range(2): p("v_cvt_pk_bf16_f32", xp[2 * nt + i], acc[0][nt][2 * i], acc[0][nt][2 * i + 1])
        self.vp.free(ad, acc[0], acc[1])
        return xp
    def unpack_resid(self, xp):
        for i in range(8):
            self.p("v_lshlrev_b32", self.vResF[2 * i], 16, xp[i]); self.p("v_and_b32", self.vResF[2 * i + 1], 0xffff0000, xp[i])
    def store_x(self, xp, sX, sST, token):
        p = self.p
        tmp = self.va(4, "tmp"); sv = self.va(1, "sv")
        sa_ = self.sa(1, "xa"); sb_ = self.sa(1, "xb")
        p("s_lshl_b32", self.sT, self.sOwn, 14); p("s_add_u32", sa_, self.sT, sX); p("s_lshl_b32", self.sT1, self.sJJ, 11); p("s_add_u32", sa_, sa_, self.sT1)
        p("s_lshl_b32", self.sT, self.sOwn, 11); p("s_add_u32", sb_, self.sT, sST); p("s_lshl_b32", self.sT1, self.sJJ, 8); p("s_add_u32", sb_, sb_, self.sT1)
        def st1(m):
            p("buffer_store_dwordx4", xp[0:4], self.vL16, self.WS, sa_, mods=("offen " + m).strip(), token=token)
            p("buffer_store_dwordx4", xp[4:8], self.vL16, self.WS, sa_, mods=("offen offset:1024 " + m).strip(), token=token)
        self.dual_store(st1)
        self.stats_of_frags([xp[0:4], xp[4:8]], sv, tmp)
        self.dual_store(lambda m: p("buffer_store_dword", sv, self.vSt, self.WS, sb_, mods=("offen " + m).strip(), token=token))
        self.vp.free(tmp); self.sp.free(sa_, sb_)
        return sv

    def p2(self):
        p, o = self.p, self.o
        sA = self.sa(1, "p2a")
        p("s_lshl_b32", self.sT, self.sI, 16); p("s_add_u32", sA, self.sT, self.sOc)
        p("s_lshl_b32", self.sT, self.sKH, 13); p("s_add_u32", sA, sA, self.sT)
        hooks = {(3, 0, "pre"): [lambda: (p.need("B2b"), self.barrier())]}
        acc = self.gemm64(8, sA, 16384, lambda s: b2_slot(0, s), o.d2, hooks)
        self.sp.free(sA)
        self.stamp("p2main")
        self.barrier()
        xp = self.reduce64(acc, L_SCR2, self.b3_rounds(o.p2tail_b3, "B3a"))
        sv = self.store_x(xp, self.sXmid, self.sSTmid, "xst")
        p.need("xst"); self.barrier()
        self.vp.free(sv)
        self.stamp("p2done")
        return xp

    def csum3(self):
        p = self.p
        ad = self.va(1, "ad"); v = [self.va(4, "c3") for _ in range(4)]; la = self.va(1, "la")
        p("v_lshlrev_b32", ad, 10, self.vM); p("v_lshlrev_b32", la, 4, self.vG); p("v_add_u32", ad, ad, la)
        p("s_lshl_b32", self.sT3, self.sJ, 14); p("s_add_u32", self.sT3, self.sT3, WS_W3CS)
        p("s_sub_u32", self.sT, self.sW, 1); p("s_lshl_b32", self.sT, self.sT, 6); p("s_add_u32", self.sT3, self.sT3, self.sT)
        for n in range(4):
            p("buffer_load_dwordx4", v[n], ad, self.WS, self.sT3, mods="offen offset:%d sc1" % (192 * n))
        for rot in (8, 4, 2, 1):
            for n in range(4):
                for r in range(4):
                    p("v_add_f32_dpp", v[n][r], v[n][r], v[n][r], mods="row_ror:%d row_mask:0xf bank_mask:0xf" % rot)
        p("s_add_u32", self.sT, self.sT, L_MISC); p("v_add_u32", la, self.sT, la)
        p("s_mov_b32", "exec_lo", 0x00010001); p("s_mov_b32", "exec_hi", 0x00010001)
        R = (L_CS3, L_CS3 + 704)
        for n in range(3): p("ds_write_b128", la, v[n], mods="offset:%d" % (L_CS3 - L_MISC + 192 * n), lds=R)
        def last(): p("ds_write_b128", la, v[3], mods="offset:%d" % (L_CS3 - L_MISC + 576), lds=R)
        self.if_wave(3, last, eq=False)
        p("s_mov_b64", "exec", -1)
        p("s_waitcnt", "lgkmcnt(0)")
        self.vp.free(ad, v, la)
    def p3(self):
        p, o = self.p, self.o
        D = o.d3
        aX = [[self.aa(4, "aX") for s in range(16)] for t in range(2)]
        aB = [self.aa(4, "aB") for nt in range(11)]
        acc = [[self.va(4, "acc") for nt in range(11)] for t in range(2)]
        sA = [self.sa(1, "p3a") for _ in range(2)]
        p("s_lshl_b32", self.sT, self.sW, 15); p("s_add_u32", sA[0], self.sT, self.sXmid); p("s_add_u32", sA[0], sA[0], 16384)
        p("s_add_u32", sA[1], sA[0], 16384)
        ld = self.a_loader(aX, sA, 16)
        for s in range(D):
            for t in range(2): ld(s, t)
        st8 = [self.va(8, "st8", 1) for t in range(2)]
        sS = self.sa(1, "p3s")
        p("s_lshl_b32", self.sT, self.sW, 12); p("s_add_u32", sS, self.sT, self.sSTmid); p("s_add_u32", sS, sS, 2048)
        lb = self.va(2, "lb", 1)
        p("v_add_u32", lb[0], 65536, self.vL16); p("v_add_u32", lb[1], 131072, self.vL16)
        def rdB(s, nt):
            a = b3_slot(s) + nt * 1024
            p("ds_read_b128", aB[nt], (self.vL16, lb[0], lb[1])[a >> 16], mods="offset:%d" % (a & 0xffff), lds=(a, a + 1024))
        for nt in range(11): rdB(0, nt)
        self.stamp("p3s")
        work = {s: [] for s in range(16)}; pre = {}
        r = self.b3_rounds([11, 12, 13], "B3c")
        for n, f in enumerate(r): work[n // 3].append(f)
        sl = self.stats_loads(st8[0], sS, 0) + self.stats_loads(st8[1], sS, 2048)
        for n, f in enumerate(sl): work[2 + n // 4].append(f)
        pre[4] = lambda: (p.need("B3b"), self.barrier())
        for n, f in enumerate(self.b3_rounds([14, 15], "B3c")): work[4 + n // 2].append(f)
        pre[8] = lambda: (p.need("B3c"), self.barrier())
        b4 = [(lambda i=i, kh=kh: self.r_b4(kh, i, "B4a")) for i in range(19) for kh in range(2)]
        sched = {8: 3, 9: 3, 10: 3, 11: 3, 12: 4, 13: 4, 14: 4, 15: 4}
        k = 0
        for s in range(8, 16):
            for _ in range(sched[s]): work[s].append(b4[k]); k += 1
        self.b4_tail = b4[k:]
        pre[11] = self.barrier; pre[14] = self.barrier
        for s in range(16):
            if s in pre: pre[s]()
            items = list(work[s]); pos = {}
            free = [1, 3, 5, 7, 9, 2, 4, 6, 8, 10]
            for n, f in enumerate(items): pos.setdefault(free[n % len(free)], []).append(f)
            for nt in range(11):
                for t in range(2): p(MFMA, acc[t][nt], aB[nt], aX[t][s], acc[t][nt] if s else 0)
                if s + 1 < 16: rdB(s + 1, nt)
                if nt == 0: ld(s + D, 0)
                if nt == 6: ld(s + D, 1)
                for f in pos.get(nt, []): f()
        self.sp.free(sA, sS)
        self.stamp("p3main")
        for t in range(2): self.ap.free(aX[t])
        self.ap.free(aB); self.vp.free(lb)
        self.barrier()
        tmp = self.va(1, "tmp"); st = [self.va(4, "st") for t in range(2)]
        ad = self.va(1, "ad"); hp = [self.va(4, "hp") for _ in range(2)]
        sH = [self.sa(1, "h") for _ in range(2)]; sHf = [self.sa(1, "hf") for _ in range(2)]
        cg = [self.va(4, "cg") for _ in range(2)]; cu = [self.va(4, "cu") for _ in range(2)]; hm = self.va(2, "hm")
        NEGM = "op_sel_hi:[1,0,1] neg_lo:[0,1,0] neg_hi:[0,1,0]"
        RC = (L_CS3, L_CS3 + 704)
        def head():
            p("v_lshlrev_b32", ad, 4, self.vG); p("v_add_u32", ad, L_MISC, ad)
            p("ds_read_b128", cg[0], ad, mods="offset:%d" % (L_CS3 - L_MISC), lds=RC); p("ds_read_b128", cu[0], ad, mods="offset:%d" % (L_CS3 - L_MISC + 64), lds=RC)
            for t in range(2):
                self.stats_finish(st8[t], st[t], tmp)
                p("v_mul_f32", st[t][3], tmp, st[t][1])
                p("v_mul_f32", st[t][2], self.sL2E[1], st[t][1])
            p("s_lshl_b32", self.sT, self.sW, 1); p("s_mul_i32", self.sT, self.sT, HSTEPS * 1024); p("s_add_u32", sH[0], self.sT, self.sHc)
            p("s_add_u32", sH[1], sH[0], HSTEPS * 1024)
            p("s_mul_i32", self.sT, self.sI, 22); p("s_lshl_b32", self.sT1, self.sJJ, 1); p("s_add_u32", self.sT, self.sT, self.sT1); p("s_lshl_b32", self.sT, self.sT, 10)
            for t in range(2): p("s_add_u32", sHf[t], sH[t], self.sT)
        def glu2(i, cgi, cui, dsts):
            ss = []
            for t in range(2):
                q = Prog(); Gt, U = acc[t][2 * i], acc[t][2 * i + 1]; dst2 = dsts[t]
                for a in range(2): q("v_pk_fma_f32", Gt[2 * a:2 * a + 2], cgi[2 * a:2 * a + 2], st[t][0:2], Gt[2 * a:2 * a + 2], mods=NEGM)
                for a in range(2): q("v_pk_mul_f32", Gt[2 * a:2 * a + 2], Gt[2 * a:2 * a + 2], st[t][2:4], mods="op_sel_hi:[1,0]")
                for a in range(4): q("v_exp_f32", Gt[a], Gt[a])
                for a in range(2): q("v_pk_fma_f32", U[2 * a:2 * a + 2], cui[2 * a:2 * a + 2], st[t][0:2], U[2 * a:2 * a + 2], mods=NEGM)
                for a in range(2): q("v_pk_fma_f32", Gt[2 * a:2 * a + 2], Gt[2 * a:2 * a + 2], st[t][2:4], st[t][2:4], mods="op_sel:[0,1,1] op_sel_hi:[1,1,1]")
                for a in range(4): q("v_rcp_f32", Gt[a], Gt[a])
                for a in range(2): q("v_pk_mul_f32", U[2 * a:2 * a + 2], U[2 * a:2 * a + 2], Gt[2 * a:2 * a + 2])
                for a in range(2): q("v_cvt_pk_bf16_f32", dst2[a], U[2 * a], U[2 * a + 1])
                ss.append(q.take())
            for a, b in zip(*ss): p.ins.append(a); p.ins.append(b)
        def part(i):
            n = (i + 1) % 2
            nx = i + 1
            if nx < 5:
                p("ds_read_b128", cg[n], ad, mods="offset:%d" % (L_CS3 - L_MISC + 128 * nx), lds=RC); p("ds_read_b128", cu[n], ad, mods="offset:%d" % (L_CS3 - L_MISC + 128 * nx + 64), lds=RC)
            else:
                p("ds_read_b128", cg[n], ad, mods="offset:%d" % (L_CS3 - L_MISC + 640), lds=RC)
            dsts = [hp[t][2 * (i & 1):2 * (i & 1) + 2] if i < 4 else hp[t][0:2] for t in range(2)]
            glu2(i, cg[i % 2], cu[i % 2], dsts)
        def stores(i):
            if i in (1, 3):
                def stf(m):
                    for t in range(2): p("buffer_store_dwordx4", hp[t], self.vL16, self.WS, sHf[t], mods=("offen offset:%d " % (1024 * (i >> 1)) + m).strip(), token="hst")
                self.dual_store(stf)
            elif i == 4:
                def stf(m):
                    for t in range(2): p("buffer_store_dwordx2", hp[t][0:2], self.vH4, self.WS, sH[t], mods=("offen " + m).strip(), token="hst")
                self.dual_store(stf)
        groups = [self.cap(f) for f in self.b4_tail]
        body = self.cap(lambda: (head(), part(0), part(1)))
        self.weave_groups(body, groups, start=4, every=max(4, len(body) // (len(groups) + 1)))
        stores(1); part(2); part(3); stores(3); part(4); stores(4)
        cm = cg[1]
        for t in range(2):
            M = acc[t][10]
            for a in range(2): p("v_pk_fma_f32", M[2 * a:2 * a + 2], cm[2 * a:2 * a + 2], st[t][0:2], M[2 * a:2 * a + 2], mods=NEGM)
            for a in range(2): p("v_pk_mul_f32", M[2 * a:2 * a + 2], M[2 * a:2 * a + 2], st[t][0:2], mods="op_sel:[0,1] op_sel_hi:[1,1]")
        X, Y = acc[0][10], acc[1][10]
        for a in range(4): p("v_permlane32_swap_b32", X[a], Y[a])
        for a in range(4): p("v_mul_f32", X[a], self.sL2E[1], X[a])
        for a in range(4): p("v_exp_f32", X[a], X[a])
        for a in range(2): p("v_pk_add_f32", X[2 * a:2 * a + 2], X[2 * a:2 * a + 2], 1.0, mods="op_sel_hi:[1,0]")
        for a in range(4): p("v_rcp_f32", X[a], X[a])
        for a in range(2): p("v_pk_mul_f32", Y[2 * a:2 * a + 2], Y[2 * a:2 * a + 2], X[2 * a:2 * a + 2])
        for a in range(2): p("v_cvt_pk_bf16_f32", hm[a], Y[2 * a], Y[2 * a + 1])
        self.dual_store(lambda m: p("buffer_store_dwordx2", hm, self.vHm, self.WS, sH[0], mods=("offen " + m).strip(), token="hst"))
        p.need("hst", "B4a"); self.barrier()
        for t in range(2): self.vp.free(acc[t])
        self.vp.free(tmp, st, ad, hp, cg, cu, hm, st8[0], st8[1]); self.sp.free(sH, sHf)
        self.stamp("p3done")

    def p4(self):
        p, o = self.p, self.o
        sA = self.sa(1, "p4a")
        p("s_lshl_b32", self.sT, self.sI, 2); p("s_mul_i32", self.sT, self.sT, HSTEPS * 1024); p("s_add_u32", sA, self.sT, self.sHc)
        p("s_mul_i32", self.sT, self.sKH, 22 * 1024); p("s_add_u32", sA, sA, self.sT)
        hooks = {(4, 0, "pre"): [self.barrier], (17, 0, "pre"): [lambda: (p.need("B4b"), self.barrier())]}
        k = 0
        for i in range(19, 22):
            for kh in range(2):
                hooks.setdefault((4 + k, 1), []).append(lambda i=i, kh=kh: self.r_b4(kh, i, "B4b")); k += 1
        acc = self.gemm64(22, sA, HSTEPS * 1024, b4_slot, o.d4, hooks)
        self.sp.free(sA)
        self.stamp("p4main")
        self.barrier()
        lskip = None
        groups = []
        if o.b1_tail:
            groups = [(lambda n=n: self.if_scalar("eq", self.sLayer, 0, lambda: self.r_lin(self.sW1w, n * 4096, L_B1 + n * 4096, "B1"))) for n in range(o.b1_tail)]
        xp = self.reduce64(acc, L_SCR4, groups)
        return xp

    def store_out(self, xp):
        p = self.p
        for b in range(2):
            p("v_permlane16_swap_b32", xp[4 * b], xp[4 * b + 2]); p("v_permlane16_swap_b32", xp[4 * b + 1], xp[4 * b + 3])
        ad = self.va(2, "ad", 1)
        p("s_lshl_b32", self.sT, self.sC, 7); p("s_lshl_b32", self.sT1, self.sOwn, 4); p("s_add_u32", self.sT, self.sT, self.sT1); p("s_sub_u32", self.sT, self.sT, 16)
        p("v_add_u32", ad[0], self.sT, self.vM); p("v_lshlrev_b32", ad[0], 10, ad[0])
        p("v_and_b32", ad[1], 1, self.vG); p("v_lshlrev_b32", ad[1], 5, ad[1]); p("v_add_u32", ad[0], ad[0], ad[1])
        p("v_lshrrev_b32", ad[1], 1, self.vG); p("v_lshlrev_b32", ad[1], 4, ad[1]); p("v_add_u32", ad[0], ad[0], ad[1])
        p("s_lshl_b32", self.sT, self.sJJ, 7)
        for b in range(2):
            p("buffer_store_dwordx4", xp[4 * b:4 * b + 4], ad[0], self.OUT, self.sT, mods="offen" + (" offset:%d" % (64 * b) if b else ""))
        self.vp.free(ad)
    def halo_export(self, xp, sv):
        p = self.p
        def f():
            p("s_add_u32", self.sT, self.sXout, XSZ); p("s_lshl_b32", self.sT1, self.sJJ, 11); p("s_add_u32", self.sT3, self.sT, self.sT1)
            p("buffer_store_dwordx4", xp[0:4], self.vL16, self.WS, self.sT3, mods="offen " + WT, token="xst")
            p("buffer_store_dwordx4", xp[4:8], self.vL16, self.WS, self.sT3, mods="offen offset:1024 " + WT, token="xst")
            p("s_add_u32", self.sT, self.sSTout, STSZ); p("s_lshl_b32", self.sT1, self.sJJ, 8); p("s_add_u32", self.sT3, self.sT, self.sT1)
            p("buffer_store_dword", sv, self.vSt, self.WS, self.sT3, mods="offen " + WT, token="xst")
        self.if_scalar("eq", self.sOwn, 8, lambda: self.if_scalar("lt", self.sC, 15, f))
    def dump_stamps(self):
        if not self.o.stamps: return
        p = self.p
        def f():
            t = self.va(1, "t")
            p("s_lshl_b32", self.sT, S(2), 8); p("s_add_u32", self.sT, self.sT, WS_STAMP)
            p("v_lshlrev_b32", t, 2, self.vLane)
            p("buffer_store_dword", self.vStamp, t, self.WS, self.sT, mods="offen")
            self.vp.free(t)
        self.if_wave(0, f)
    def build(self):
        p, o = self.p, self.o
        self.prologue()
        self.startup()
        self.sW1w = self.sa(1, "w1w"); p("s_add_u32", self.sW1w, self.sW1, self.sW1k)
        self.entry()
        p.label("L_layer")
        self.layer_bases()
        self.p1()
        def w12():
            items = []
            for i in range(4, 8):
                for kh in range(2): items += self.s_rows(self.WO, 32 * (8 * kh + i), b2_slot(kh, i), "B2b")
            for s in range(o.p1tail_b3, o.h12_b3): items += self.s_lin(self.sW3, s * 11264, b3_slot(s), 11, "B3a")
            self.split3(items)
            self.if_scalar("eq", self.sLayer, 0, self.csum3)
        self.handoff(2, w12)
        self.stamp("h12")
        o.p2tail_b3 = list(range(o.h12_b3, 6))
        xp = self.p2()
        def w23():
            items = []
            for s in range(6, 11): items += self.s_lin(self.sW3, s * 11264, b3_slot(s), 11, "B3b")
            self.split3(items)
            self.unpack_resid(xp)
        def w0_unpack(): pass
        self.handoff(3, w23, need=("B3a",))
        self.if_wave(0, lambda: self.unpack_resid(xp))
        self.vp.free(xp)
        self.stamp("h23")
        self.p3()
        self.handoff(4, None)
        self.stamp("h34")
        xp = self.p4()
        lout = p.newlabel("Lout")
        p("s_cmp_eq_u32", self.sLayer, 1); p("s_cbranch_scc1", lout)
        sv = self.store_x(xp, self.sXout, self.sSTout, "xst")
        self.halo_export(xp, sv)
        p.need("xst"); self.barrier()
        self.vp.free(sv)
        self.stamp("p4done")
        def hpub():
            sN = self.sa(1, "cn"); sA = self.sa(1, "a")
            p("s_add_u32", sN, self.sC, 1); self.flag_addr(sA, WS_FLAG_H, sN, self.sJJ); self.publish(5, sA, force_wt=True)
            self.sp.free(sN, sA)
        self.if_wave(0, lambda: self.if_scalar("eq", self.sI, 1, lambda: self.if_scalar("lt", self.sC, 15, hpub)))
        def w41():
            n0 = 4 * o.b1_tail
            self.split3(self.s_lin(self.sW1, n0 * KB, L_B1 + n0 * KB, 60 - n0, "B1") + self.s_lin(self.sW1, 60 * KB, L_B1 + 60 * KB, 36, "B1b"))
            self.unpack_resid(xp)
        self.handoff(5, w41, need=("B1",))
        self.if_wave(0, lambda: self.unpack_resid(xp))
        self.stamp("h41")
        p("s_mov_b32", self.sLayer, 1)
        p("s_branch", "L_layer")
        p.label(lout)
        self.store_out(xp)
        self.vp.free(xp)
        p.label("L_fin")
        self.stamp("end")
        self.dump_stamps()
        p.label("L_exit")
        p("s_endpgm")

def emit(opt):
    g = G(opt); g.build()
    ins = finalize(g.p.ins)
    errs = check_loop(ins, "L_layer")
    if errs:
        print("LOOP CHECK:", len(errs)); print("\n".join(errs[:20]))
    k = [n for n, i in enumerate(ins) if i.op == "label" and i.label == "L_layer"][0]
    e = [n for n, i in enumerate(ins) if i.kind == "branch" and i.target == "L_layer"][0]
    errs = check_lds(ins[:e] + ins[k:])
    if errs:
        print("LDS CHECK:", len(errs)); print("\n".join(errs[:30]))
    hdr = open(opt.header).read() if opt.header else ""
    txt = hdr
    txt += '.amdgcn_target "amdgcn-amd-amdhsa--gfx950"\n.text\n.globl %s\n.p2align 8\n.type %s,@function\n%s:\n' % (KNAME, KNAME, KNAME)
    txt += to_text(ins)
    txt += '''.section .rodata,"a"
.p2align 6
.amdhsa_kernel %s
  .amdhsa_next_free_vgpr 512
  .amdhsa_next_free_sgpr 102
  .amdhsa_accum_offset 256
  .amdhsa_group_segment_fixed_size 0
  .amdhsa_kernarg_size 80
  .amdhsa_user_sgpr_count 2
  .amdhsa_user_sgpr_kernarg_segment_ptr 1
  .amdhsa_system_sgpr_workgroup_id_x 1
  .amdhsa_float_denorm_mode_32 3
.end_amdhsa_kernel
''' % KNAME
    return txt, g, ins

if __name__ == "__main__":
    ap = argparse.ArgumentParser()
    ap.add_argument("-o", default="out.s")
    ap.add_argument("--stamps", action="store_true"); ap.add_argument("--slow", action="store_true")
    ap.add_argument("--header", default="header.txt")
    ap.add_argument("--d1", type=int, default=4); ap.add_argument("--d2", type=int, default=5); ap.add_argument("--d3", type=int, default=3); ap.add_argument("--d4", type=int, default=6)
    ap.add_argument("--p1tail_b3", type=int, default=2); ap.add_argument("--h12_b3", type=int, default=4)
    ap.add_argument("--b1_tail", type=int, default=6)
    opt = ap.parse_args()
    txt, g, ins = emit(opt)
    open(opt.o, "w").write(txt)
    nb = sum(1 for i in ins if i.op not in ("label", "raw", "need"))
    print("instructions:", nb, "vgpr high", g.vp.high, "agpr high", g.ap.high, "sgpr high", g.sp.high)
    if opt.stamps: open(opt.o + ".stamps", "w").write("\n".join(g.stamp_names))
```

```python
import sys, argparse, struct
from collections import deque
from fw import *
from layout import *

KNAME = "interleave_layers__sliding_local_dilated__glu_gated_glu__prompt_kernel"
NEG = 0xF149F2CA
LOG2E = 1.4426950408889634
def f2u(x): return struct.unpack("<I", struct.pack("<f", x))[0]
MFMA = "v_mfma_f32_16x16x32_bf16"
MFMA16 = "v_mfma_f32_16x16x16_bf16"
WT = "sc0 sc1"
SPIN_MAX = 400000
OOB = 0x7ffffff0
L_B1 = 0
L_HA = 96 * KB
L_EX = 112 * KB
L_RG = 98304; L_RU = 98304 + 6144
def b2_slot(i): return (124 * KB + i * 8192) if i < 4 else (i - 4) * 8192
def b3_slot(s):
    if s < 8: return (33 + 11 * s) * KB
    if s < 11: return 11 * (s - 8) * KB
    if s < 14: return (121 + 11 * (s - 11)) * KB
    return (33 + 11 * (s - 14)) * KB
def b4_slot(i):
    if i < 4: return (72 + 8 * i) * KB
    if i < 6: return (56 + 8 * (i - 4)) * KB
    if i < 8: return (104 + 8 * (i - 6)) * KB
    if i < 12: return 8 * (i - 8) * KB
    if i < 16: return (124 + 8 * (i - 12)) * KB
    if i < 19: return (32 + 8 * (i - 16)) * KB
    return b4_slot(i - 19)
L_SCR2 = 0
L_SCR4 = 104 * KB

class Base:
    def __init__(self, opt):
        self.o = opt
        self.p = Prog()
        self.vp = Pool("v", 1, 256)
        self.ap = Pool("a", 0, 256)
        self.sp = Pool("s", 44, 102)
        self.stamp_names = []
        self.tail_blocks = []
    def va(self, n=1, name="?", align=None): return self.vp.alloc(n, align, name)
    def aa(self, n=1, name="?"): return self.ap.alloc(n, 2 if n < 4 else 4, name)
    def sa(self, n=1, name="?"): return self.sp.alloc(n, None, name)
    def pv(self, name, n=1, align=None):
        if not hasattr(self, name): setattr(self, name, self.va(n, name, align))
        return getattr(self, name)
    def ps(self, name, n=1):
        if not hasattr(self, name): setattr(self, name, self.sp.alloc(n, 2 if n == 2 else None, name))
        return getattr(self, name)
    def cap(self, fn):
        old = self.p.ins; self.p.ins = []
        fn()
        got = self.p.ins; self.p.ins = old
        return got
    def weave(self, a, b, ra=1, rb=1):
        i = j = 0
        def isx(x): return x.op == "s_mov_b64" and str(x.ops[0]) == "exec"
        while i < len(a) or j < len(b):
            n = 0
            while i < len(a) and n < ra:
                x = a[i]; self.p.ins.append(x); i += 1; n += 1
                if isx(x) and x.ops[1] != -1:
                    while True:
                        x = a[i]; self.p.ins.append(x); i += 1
                        if isx(x) and x.ops[1] == -1: break
            self.p.ins.extend(b[j:j + rb]); j += rb
    def weave_groups(self, main, groups, start=0, every=8):
        out = []; k = 0; nxt = start; masked = False
        for n, ins in enumerate(main):
            if k < len(groups) and n >= nxt and not masked and not (out and out[-1].op.startswith("s_cmp")) and ins.kind != "branch":
                out.extend(groups[k]); k += 1; nxt = n + every
            if ins.op == "s_mov_b64" and str(ins.ops[0]) == "exec": masked = ins.ops[1] != -1
            out.append(ins)
        for g in groups[k:]: out.extend(g)
        self.p.ins.extend(out)
    def stamp(self, name):
        if not self.o.stamps: return
        p = self.p
        self.stamp_names.append(name)
        p("s_memrealtime", self.sT2)
        p("s_waitcnt", "lgkmcnt(0)")
        p("s_mov_b32", "m0", self.sStampIdx); p("s_nop", 3); p("v_writelane_b32", self.vStamp, self.sT2[0], "m0")
        p("s_add_u32", self.sStampIdx, self.sStampIdx, 1)
        if name in ("start", "end", "p3s", "p3main"):
            p("s_memtime", self.sT2); p("s_waitcnt", "lgkmcnt(0)")
            p("v_writelane_b32", self.vStamp, self.sT2[0], {"start": 60, "end": 61, "p3s": 62, "p3main": 63}[name])
    def fs(self, sec, n):
        if self.o.fine != sec: return
        if not hasattr(self, "_fine"): self._fine = [self.sp.alloc(2, 2, "fine") for _ in range(6)]
        self.p.raw("  s_memtime %s" % self._fine[n])
    def fs_dump(self, sec):
        if self.o.fine != sec: return
        self.p("s_waitcnt", "lgkmcnt(0)")
        for n, r in enumerate(self._fine): self.p("v_writelane_b32", self.vStamp, r[0], 50 + n)
    def srd(self, dst, lo, nbytes):
        p = self.p
        p("s_mov_b32", dst[0], lo[0]); p("s_and_b32", dst[1], lo[1], 0xffff)
        p("s_mov_b32", dst[2], nbytes); p("s_mov_b32", dst[3], 0x20000)
    def if_wave(self, w, fn, eq=True):
        p = self.p; l = p.newlabel("Lw")
        p("s_cmp_lg_u32" if eq else "s_cmp_eq_u32", self.sW, w)
        p("s_cbranch_scc1", l); fn(); p.label(l)
    def by_wave(self, blocks):
        p = self.p; end = p.newlabel("Lwe"); items = list(blocks.items())
        for n, (w, fn) in enumerate(items):
            nxt = p.newlabel("Lw")
            p("s_cmp_lg_u32", self.sW, w); p("s_cbranch_scc1", nxt)
            fn()
            if n != len(items) - 1: p("s_branch", end)
            p.label(nxt)
        p.label(end)
    def if_scalar(self, cmp, a, b, fn):
        p = self.p; l = p.newlabel("Li")
        inv = {"eq": "lg", "lg": "eq", "lt": "ge", "ge": "lt", "le": "gt", "gt": "le"}[cmp]
        p("s_cmp_%s_u32" % inv, a, b); p("s_cbranch_scc1", l); fn(); p.label(l)
    def dual_store(self, emit):
        p = self.p; slow = p.newlabel("Lsl"); back = p.newlabel("Lsb")
        p("s_cmp_eq_u32", self.sFast, 0); p("s_cbranch_scc1", slow)
        emit(""); p.label(back)
        blk = self.cap(lambda: (p.label(slow), emit(WT), p("s_branch", back)))
        self.tail_blocks.append(blk)
    def barrier(self): self.p("s_barrier")

    def prologue(self):
        p = self.p
        self.X0, self.WQKV, self.WO, self.WG, self.WU, self.WD, self.OUT, self.WS, self.DBG = [S(8 + 4 * i, 4) for i in range(9)]
        self.sT3 = S(3); self.sT = S(4); self.sT1 = S(5); self.sT2 = S(6, 2)
        p("s_cmp_ge_u32", S(2), 256)
        p("s_cbranch_scc1", "L_exit")
        ka = self.sp.alloc(16, 4, "ka"); kb = self.sp.alloc(4, 4, "kb")
        p("s_load_dwordx16", ka, S(0, 2), 0)
        p("s_load_dwordx4", kb, S(0, 2), 64)
        for n in "C J W XCC Nonce Fast Layer I JJ MH KH StampIdx Cb Own Spin Dm W1k W3k W4k".split():
            setattr(self, "s" + n, self.sp.alloc(1, None, n))
        self.vLane = self.va(1, "lane"); self.vM = self.va(1, "m"); self.vG = self.va(1, "g")
        self.vL16 = self.va(1, "l16"); self.vOnes = self.va(4, "ones"); self.vZero = self.va(1, "zero")
        t = self.va(1, "t")
        p("v_lshrrev_b32", t, 6, V(0))
        p("v_and_b32", self.vLane, 63, V(0))
        p("v_readfirstlane_b32", self.sW, t)
        p("v_and_b32", self.vM, 15, self.vLane)
        p("v_lshrrev_b32", self.vG, 4, self.vLane)
        p("v_lshlrev_b32", self.vL16, 4, self.vLane)
        p("v_mov_b32", self.vZero, 0)
        for i in range(4): p("v_mov_b32", self.vOnes[i], 0x3F803F80)
        p("s_getreg_b32", self.sXCC, "hwreg(HW_REG_XCC_ID, 0, 4)")
        p("s_and_b32", self.sT, S(2), 7); p("s_lshl_b32", self.sT, self.sT, 1)
        p("s_lshr_b32", self.sT1, S(2), 7); p("s_add_u32", self.sC, self.sT, self.sT1)
        p("s_lshr_b32", self.sJ, S(2), 3); p("s_and_b32", self.sJ, self.sJ, 15)
        p("s_lshr_b32", self.sI, self.sJ, 3); p("s_and_b32", self.sJJ, self.sJ, 7)
        p("s_lshr_b32", self.sMH, self.sW, 1); p("s_and_b32", self.sKH, self.sW, 1)
        p("s_lshl_b32", self.sW1k, self.sW, 10); p("s_mul_i32", self.sW3k, self.sW, 3072); p("s_lshl_b32", self.sW4k, self.sW, 12)
        p("s_mov_b32", self.sLayer, 0); p("s_mov_b32", self.sFast, 0); p("s_mov_b32", self.sStampIdx, 0)
        p("s_lshl_b32", self.sCb, self.sC, 21); p("s_add_u32", self.sCb, self.sCb, CB0)
        p("s_lshl_b32", self.sT, self.sI, 2); p("s_lshl_b32", self.sT1, self.sMH, 1)
        p("s_add_u32", self.sT, self.sT, self.sT1); p("s_add_u32", self.sT, self.sT, self.sKH)
        p("s_add_u32", self.sOwn, self.sT, 1)
        if self.o.stamps:
            self.vStamp = self.va(1, "stamp"); p("v_mov_b32", self.vStamp, 0)
        p("s_waitcnt", "lgkmcnt(0)")
        self.srd(self.X0, ka[0:2], 2048 * 1024); self.srd(self.WQKV, ka[2:4], 512 * 3072)
        self.srd(self.DBG, kb[0:2], 256); self.srd(self.WS, kb[2:4], WS_END)
        self.srd(self.WG, ka[8:10], 512 * 2752); self.srd(self.WU, ka[10:12], 512 * 2752)
        self.srd(self.WO, ka[4:6], 512 * 1024); self.srd(self.WD, ka[12:14], 1376 * 1024)
        self.srd(self.OUT, ka[14:16], 2048 * 1024)
        self.sp.free(ka, kb); self.vp.free(t)
        self.stamp("start")
        def wr():
            t2 = self.va(1, "t2")
            p("s_memrealtime", self.sT2); p("s_waitcnt", "lgkmcnt(0)")
            p("s_or_b32", self.sT, self.sT2[0], 1)
            p("v_mov_b32", t2, self.sT)
            p("buffer_store_dword", t2, self.vZero, self.DBG, 0, mods="offen " + WT)
            self.vp.free(t2)
        p("s_or_b32", self.sT, S(2), self.sW)
        self.if_scalar("eq", self.sT, 0, wr)

    def const_b1(self):
        p = self.p
        t = self.va(4, "t")
        self.pv("vB1", 3, 1)
        p("s_lshl_b32", self.sT, self.sJ, 6)
        for u in range(3):
            p("v_add_u32", t[0], 64 * u, self.vLane)
            p("v_mul_u32_u24", t[1], 0x5556, t[0]); p("v_lshrrev_b32", t[1], 18, t[1])
            p("v_mul_u32_u24", t[2], 12, t[1]); p("v_sub_u32", t[2], t[0], t[2])
            p("v_lshrrev_b32", t[3], 2, t[1]); p("v_and_b32", t[3], 1, t[3]); p("v_lshlrev_b32", t[3], 1, t[3])
            p("v_xor_b32", t[2], t[2], t[3])
            p("v_mul_u32_u24", t[1], 3072, t[1])
            p("v_lshrrev_b32", t[3], 2, t[2]); p("v_lshlrev_b32", t[3], 10, t[3]); p("v_add_u32", t[1], t[1], t[3])
            p("v_and_b32", t[2], 3, t[2]); p("v_lshlrev_b32", t[2], 4, t[2]); p("v_add_u32", t[1], t[1], t[2])
            p("v_add_u32", t[1], self.sT, t[1])
            if u: p("v_subrev_u32", self.vB1[u], 1024 * u, t[1])
            else: p("v_mov_b32", self.vB1[u], t[1])
        self.vp.free(t)
    def const_st(self):
        p = self.p; t = self.va(2, "t", 1)
        self.pv("vSt"); self.pv("vStW")
        p("v_lshrrev_b32", t[1], 1, self.vG); p("v_lshlrev_b32", t[1], 6, t[1])
        p("v_lshlrev_b32", self.vSt, 2, self.vM); p("v_add_u32", self.vSt, self.vSt, t[1])
        p("v_and_b32", t[0], 1, self.vG); p("v_cmp_eq_u32", "vcc", 0, t[0])
        p("v_mov_b32", t[1], OOB); p("v_cndmask_b32", self.vStW, t[1], self.vSt, "vcc")
        p("v_lshlrev_b32", t[0], 7, t[0]); p("v_add_u32", self.vSt, self.vSt, t[0])
        self.vp.free(t)
    def consts(self):
        p = self.p
        t = self.va(4, "t")
        self.pv("vB2", 4, 1)
        p("v_lshrrev_b32", t[0], 3, self.vLane)
        p("v_lshrrev_b32", t[1], 1, t[0]); p("v_and_b32", t[1], 3, t[1]); p("v_lshlrev_b32", t[1], 1, t[1])
        p("v_and_b32", t[2], 7, self.vLane); p("v_xor_b32", t[2], t[2], t[1]); p("v_lshlrev_b32", t[2], 4, t[2])
        p("v_lshlrev_b32", t[0], 10, t[0]); p("v_add_u32", t[0], t[0], t[2])
        p("s_lshl_b32", self.sT, self.sJJ, 7)
        p("v_add_u32", self.vB2[0], self.sT, t[0])
        for q in range(1, 4): p("v_add_u32", self.vB2[q], 7168 * q, self.vB2[0])
        self.pv("vRho"); self.pv("vIn")
        vr = t[0]
        p("v_lshrrev_b32", vr, 2, self.vM)
        p("v_and_b32", t[1], 3, self.vLane); p("v_lshlrev_b32", self.vIn, 3, t[1])
        p("v_lshlrev_b32", self.vRho, 2, self.vG); p("v_add_u32", self.vRho, self.vRho, vr)
        self.pv("vT1", 4, 1); self.pv("vT1b")
        p("v_mul_u32_u24", self.vT1b, 192, self.vRho); p("v_add_u32", self.vT1b, self.vT1b, self.vIn)
        p("v_and_b32", t[1], 1, self.vG); p("v_lshlrev_b32", t[1], 5, t[1])
        p("v_add_u32", self.vT1[0], self.vT1b, t[1]); p("v_sub_u32", self.vT1[2], self.vT1b, t[1])
        p("v_add_u32", self.vT1[1], 49152, self.vT1[0]); p("v_add_u32", self.vT1[3], 49152, self.vT1[2])
        self.pv("vT2", 4, 1)
        p("v_and_b32", t[1], 1, self.vG); p("v_lshlrev_b32", t[1], 1, t[1]); p("v_lshrrev_b32", t[2], 1, vr)
        p("v_add_u32", t[1], t[1], t[2])
        p("v_lshlrev_b32", t[2], 7, self.vRho); p("v_add_u32", t[2], t[2], self.vIn)
        p("s_lshl_b32", self.sT, self.sKH, 12); p("v_add_u32", t[2], self.sT, t[2])
        for nt in range(4):
            p("v_xor_b32", t[3], nt, t[1]); p("v_lshlrev_b32", t[3], 5, t[3]); p("v_add_u32", self.vT2[nt], t[2], t[3])
        self.pv("vBiasP", 4); self.pv("vBiasC", 4); self.pv("vBiasP0", 4)
        p("v_mov_b32", t[2], NEG)
        for r in range(4):
            p("v_lshlrev_b32", t[0], 2, self.vG); p("v_add_u32", t[0], r, t[0])
            p("v_sub_u32", t[1], self.vM, t[0]); p("v_and_b32", t[1], 0x80000001, t[1])
            p("v_cmp_eq_u32", "vcc", 0, t[1]); p("v_cndmask_b32", self.vBiasC[r], t[2], self.vZero, "vcc")
            p("v_cmp_eq_u32", "vcc", 0x80000000, t[1]); p("v_cndmask_b32", self.vBiasP[r], t[2], self.vZero, "vcc")
        p("s_or_b32", self.sT, self.sC, self.sW); p("s_cmp_eq_u32", self.sT, 0)
        p("s_cselect_b64", "vcc", -1, 0)
        for r in range(4): p("v_cndmask_b32", self.vBiasP0[r], self.vBiasP[r], t[2], "vcc")
        self.pv("vResF", 16)
        self.vp.free(t)
        if not hasattr(self, "sLeft"): self.sLeft = [self.sa(1, "left") for _ in range(6)]
        for n in range(6):
            p("s_add_u32", self.sT, self.sW, 4 * n); p("s_mul_i32", self.sT1, self.sT, 43); p("s_lshr_b32", self.sT1, self.sT1, 7)
            p("s_mul_i32", self.sT3, self.sT1, 3); p("s_sub_u32", self.sT, self.sT, self.sT3)
            p("s_mul_i32", self.sT1, self.sT1, 88); p("s_lshl_b32", self.sT, self.sT, 3); p("s_add_u32", self.sT, self.sT, self.sT1)
            p("s_add_u32", self.sT, self.sT, 64); p("s_lshl_b32", self.sLeft[n], self.sT, 10)
        self.ps("sW3"); p("s_mul_i32", self.sW3, self.sJ, W3SZ); p("s_add_u32", self.sW3, self.sW3, WS_W3)
        self.ps("sW1"); p("s_mul_i32", self.sW1, self.sJ, 96 * KB); p("s_add_u32", self.sW1, self.sW1, WS_W1)
        self.ps("sU3"); p("s_mul_i32", self.sU3, self.sW, 3); p("s_min_u32", self.sU3, self.sU3, 8); p("s_lshl_b32", self.sU3, self.sU3, 10)
        self.ps("sW3w"); p("s_add_u32", self.sW3w, self.sW3, self.sU3)
        self.ps("sPairL"); p("s_lshl_b32", self.sPairL, self.sMH, 13); p("s_lshl_b32", self.sT, self.sKH, 12); p("s_add_u32", self.sPairL, self.sPairL, self.sT)
        self.ps("sPairO"); self.ps("sPairD")
        p("s_lshl_b32", self.sT, self.sMH, 15); p("s_lshl_b32", self.sPairO, self.sKH, 18); p("s_add_u32", self.sPairO, self.sPairO, self.sT)
        p("s_mul_i32", self.sPairD, self.sKH, 704 * 1024); p("s_add_u32", self.sPairD, self.sPairD, self.sT)
        self.ps("sL2E", 2); p("s_mov_b32", self.sL2E[0], f2u(LOG2E)); p("s_mov_b32", self.sL2E[1], f2u(-LOG2E))
    def h_offsets(self):
        p = self.p
        self.pv("vH4"); self.pv("vHm")
        t = self.va(4, "t")
        p("s_mul_i32", self.sT3, self.sI, 22); p("s_add_u32", self.sT3, self.sT3, 16)
        def pos(dst, lam):
            p("v_lshrrev_b32", t[1], 2, lam); p("v_add_u32", t[1], self.sT3, t[1]); p("v_lshlrev_b32", t[1], 10, t[1])
            p("v_and_b32", t[2], 1, lam); p("v_lshlrev_b32", t[2], 1, t[2]); p("v_and_b32", t[3], 1, self.vG)
            p("v_add_u32", t[2], t[2], t[3]); p("v_lshlrev_b32", t[2], 4, t[2]); p("v_add_u32", t[2], t[2], self.vM)
            p("v_lshlrev_b32", t[2], 4, t[2]); p("v_add_u32", t[1], t[1], t[2])
            p("v_and_b32", t[2], 2, lam); p("v_lshlrev_b32", t[2], 2, t[2]); p("v_add_u32", dst, t[1], t[2])
        p("s_mul_i32", self.sT, self.sJJ, 3)
        p("v_lshrrev_b32", t[0], 1, self.vG); p("v_add_u32", t[0], self.sT, t[0]); pos(self.vH4, t[0])
        p("s_add_u32", self.sT, self.sT, 2); p("v_mov_b32", t[0], self.sT); pos(self.vHm, t[0])
        p("v_lshrrev_b32", t[0], 5, self.vLane); p("v_mul_u32_u24", t[0], HSTEPS * 1024, t[0]); p("v_add_u32", self.vHm, self.vHm, t[0])
        self.vp.free(t)
    def touch_tables(self):
        p = self.p
        self.pv("vTc1"); self.pv("vTc3"); self.pv("vTc4")
        rel = self.va(1, "rel"); a = self.va(1, "a"); b = self.va(1, "b")
        def part(dst, lo, n, emit):
            p("v_subrev_u32", rel, lo, self.vLane); emit(a); p("v_cmp_gt_u32", "vcc", n, rel); p("v_cndmask_b32", dst, dst, a, "vcc")
        def lin(sBase):
            def e(d): p("v_lshlrev_b32", d, 7, rel); p("v_add_u32", d, sBase, d)
            return e
        sa_ = self.sa(1, "ta"); sb_ = self.sa(1, "tb")
        p("s_lshl_b32", sa_, self.sOwn, 14); p("s_lshl_b32", self.sT, self.sJJ, 11); p("s_add_u32", sa_, sa_, self.sT)
        p("s_lshl_b32", sb_, self.sOwn, 10); p("s_lshl_b32", self.sT, self.sJJ, 7); p("s_add_u32", sb_, sb_, self.sT)
        p("v_mov_b32", self.vTc4, OOB)
        sc = self.sa(1, "tc"); sd = self.sa(1, "td")
        p("s_add_u32", sc, sa_, L_XOUT); p("s_add_u32", sd, sb_, L_STOUT)
        part(self.vTc4, 0, 16, lin(sc)); part(self.vTc4, 16, 1, lin(sd))
        p("v_mov_b32", self.vTc1, OOB)
        p("s_add_u32", sc, sa_, L_XMID); p("s_add_u32", sd, sb_, L_STMID)
        part(self.vTc1, 0, 16, lin(sc)); part(self.vTc1, 16, 1, lin(sd))
        p("s_lshl_b32", sc, self.sW, 15); p("s_lshl_b32", self.sT, self.sJ, 10); p("s_add_u32", sc, sc, self.sT); p("s_add_u32", sc, sc, L_O)
        def eo(d):
            p("v_lshrrev_b32", d, 3, rel); p("v_lshlrev_b32", d, 14, d); p("v_and_b32", b, 7, rel); p("v_lshlrev_b32", b, 7, b); p("v_add3_u32", d, d, b, sc)
        part(self.vTc1, 17, 16, eo)
        p("s_lshl_b32", sc, self.sW, 1); p("s_mul_i32", sc, sc, HSTEPS * 1024); p("s_mul_i32", self.sT, self.sI, 22 * 1024); p("s_add_u32", sc, sc, self.sT); p("s_add_u32", sc, sc, L_H)
        p("s_lshl_b32", self.sT, self.sJJ, 11); p("s_add_u32", sd, sc, self.sT)
        p("v_mov_b32", self.vTc3, OOB)
        def full(d):
            p("v_lshrrev_b32", d, 4, rel); p("v_mul_u32_u24", d, HSTEPS * 1024, d); p("v_and_b32", b, 15, rel); p("v_lshlrev_b32", b, 7, b); p("v_add3_u32", d, d, b, sd)
        part(self.vTc3, 0, 32, full)
        p("s_mul_i32", sa_, self.sJJ, 3)
        def left(d):
            p("v_lshrrev_b32", d, 3, rel); p("v_and_b32", d, 1, d); p("v_lshlrev_b32", d, 1, d); p("v_add_u32", d, sa_, d)
            p("v_lshrrev_b32", d, 2, d); p("v_add_u32", d, 16, d); p("v_lshlrev_b32", d, 10, d)
            p("v_lshrrev_b32", b, 4, rel); p("v_and_b32", b, 1, b); p("v_mul_u32_u24", b, HSTEPS * 1024, b); p("v_add_u32", d, d, b)
            p("v_and_b32", b, 7, rel); p("v_lshlrev_b32", b, 7, b); p("v_add3_u32", d, d, b, sc)
        part(self.vTc3, 32, 32, left)
        self.vp.free(rel, a, b); self.sp.free(sa_, sb_, sc, sd)
        self.pv("vDum")
    def touch(self, tab):
        if self.o.touch: self.p("buffer_load_dword", self.vDum, tab, self.WS, self.sLb, mods="offen sc1")

    def dma(self, srd, voff, soff, off, token, lds, extra=""):
        m = "offen" + (" offset:%d" % off if off else "") + (" " + extra if extra else "") + " lds"
        self.p("buffer_load_dwordx4", voff, srd, soff, mods=m, token=token, lds=lds)
    def g_b3(self, s, token):
        p = self.p; lds = b3_slot(s); R = (lds, lds + 11 * KB)
        def f(u):
            if u == 0: p("s_add_u32", "m0", self.sU3, lds); p("s_add_u32", self.sDm, self.sW3w, s * 11264)
            self.dma(self.WS, self.vL16, self.sDm, 1024 * u, token, R, "sc1")
        return [(lambda u=u: f(u)) for u in range(3)]
    def g_pair(self, srd, sRow, rowoff, lds, token):
        p = self.p; R = (lds, lds + 16384)
        def f(q):
            if q == 0: p("s_add_u32", "m0", self.sPairL, lds); p("s_add_u32", self.sDm, sRow, rowoff)
            self.dma(srd, self.vB2[q], self.sDm, 1024 * q, token, R)
        return [(lambda q=q: f(q)) for q in range(4)]
    def g_b2(self, n, token): return self.g_pair(self.WO, self.sPairO, n * 64 * 1024, b2_slot(2 * n), token)
    def g_b4(self, n, token): return self.g_pair(self.WD, self.sPairD, n * 88 * 1024, b4_slot(2 * n), token)
    def r_b4left(self, kh, i, token):
        p = self.p; lds = b4_slot(i) + kh * 4096
        p("s_add_u32", "m0", self.sW1k, lds); p("s_add_u32", self.sDm, self.sLeft[i - 16], 704 * kh * 1024)
        self.dma(self.WD, self.vB2[0], self.sDm, 0, token, (lds, lds + 4096))
    def s_b4left(self, kh, i, token):
        p = self.p; lds = b4_slot(i) + kh * 4096
        p("s_mov_b32", "m0", lds)
        for q in range(4):
            p("s_mov_b32", self.sDm, hspace_F(22 * kh + i, 8 * q) * 1024 - 1024 * q)
            self.dma(self.WD, self.vB2[0], self.sDm, 1024 * q, token, (lds + q * KB, lds + (q + 1) * KB))
    def g_lin4(self, sGw4, goff, lds, token):
        p = self.p; R = (lds, lds + 16 * KB)
        def f(u):
            if u == 0: p("s_add_u32", "m0", self.sW4k, lds); p("s_add_u32", self.sDm, sGw4, goff)
            self.dma(self.WS, self.vL16, self.sDm, 1024 * u, token, R, "sc1")
        return [(lambda u=u: f(u)) for u in range(4)]
    def g_lin3(self, sGw3, goff, lds, token):
        p = self.p; R = (lds, lds + 12 * KB)
        def f(u):
            if u == 0: p("s_add_u32", "m0", self.sW3k, lds); p("s_add_u32", self.sDm, sGw3, goff)
            self.dma(self.WS, self.vL16, self.sDm, 1024 * u, token, R, "sc1")
        return [(lambda u=u: f(u)) for u in range(3)]
    def s_lin(self, sG, goff, lds, n, token):
        p = self.p; out = []
        for i0 in range(0, n, 4):
            def f(i0=i0):
                p("s_mov_b32", "m0", lds + i0 * KB); p("s_add_u32", self.sDm, sG, goff + i0 * KB)
                for u in range(min(4, n - i0)):
                    self.dma(self.WS, self.vL16, self.sDm, 1024 * u, token, (lds + (i0 + u) * KB, lds + (i0 + u + 1) * KB), "sc1")
            out.append(f)
        return out
    def s_rows(self, srd, row0, lds, token):
        p = self.p
        def f():
            p("s_mov_b32", "m0", lds); p("s_mov_b32", self.sDm, row0 * 1024)
            for q in range(4): self.dma(srd, self.vB2[q], self.sDm, 1024 * q, token, (lds + q * KB, lds + (q + 1) * KB))
        return [f]
    def split3(self, items):
        self.by_wave({w: (lambda w=w: [f() for f in items[w - 1::3]]) for w in (1, 2, 3)})

    def publish(self, phase, addr_s, force_wt=False):
        p = self.p
        t = self.va(2, "pub", 1)
        p("v_mov_b32", t[0], addr_s)
        if isinstance(phase, int): p("s_add_u32", self.sT, self.sNonce, phase * 16)
        else:
            p("s_lshl_b32", self.sT, phase, 4); p("s_add_u32", self.sT, self.sT, self.sNonce)
        p("s_add_u32", self.sT, self.sT, self.sXCC)
        p("v_mov_b32", t[1], self.sT)
        p("s_mov_b64", "exec", 1)
        if force_wt: p("buffer_store_dword", t[1], t[0], self.WS, 0, mods="offen " + WT)
        else: self.dual_store(lambda m: p("buffer_store_dword", t[1], t[0], self.WS, 0, mods=("offen " + m).strip()))
        p("s_mov_b64", "exec", -1)
        self.vp.free(t)
    def flag_addr(self, dst, base, sIdx, sSub):
        p = self.p
        p("s_lshl_b32", dst, sIdx, 8); p("s_lshl_b32", self.sT1, sSub, 2); p("s_add_u32", dst, dst, self.sT1); p("s_add_u32", dst, dst, base)
    def poll_loop(self, vaddr, vval, sThr, sLim, first_loaded=False, force_true=None, keep=None):
        p = self.p
        l = p.newlabel("Lpoll"); ok = p.newlabel("Lok"); t = self.va(1, "pt")
        def test():
            p("v_subrev_u32", t, sThr, vval)
            p("v_cmp_gt_u32", "vcc", sLim, t)
            if force_true is not None: p("s_or_b64", "vcc", "vcc", force_true)
            p("s_cmp_eq_u64", "vcc", "exec")
        if first_loaded:
            test(); p("s_cbranch_scc1", ok)
        p("s_mov_b32", self.sSpin, 0)
        p.label(l)
        p("s_add_u32", self.sSpin, self.sSpin, 1); p("s_cmp_gt_u32", self.sSpin, SPIN_MAX); p("s_cbranch_scc1", "L_exit")
        p("buffer_load_dword", vval, vaddr, self.WS, 0, mods="offen sc1")
        test(); p("s_cbranch_scc0", l)
        p.label(ok)
        if keep is not None: p("v_mov_b32", keep, t)
        self.vp.free(t)
    def poll(self, phase, base, sIdx, n=16, keep=None, force_true=None):
        p = self.p
        t = self.va(2, "poll", 1); sB = self.sa(1, "pb"); sL = self.sa(1, "pl")
        p("s_lshl_b32", sB, sIdx, 8); p("s_add_u32", sB, sB, base)
        p("v_and_b32", t[0], n - 1, self.vLane); p("v_lshlrev_b32", t[0], 2, t[0]); p("v_add_u32", t[0], sB, t[0])
        if isinstance(phase, int):
            p("s_add_u32", sB, self.sNonce, phase * 16); p("s_mov_b32", sL, 256 - phase * 16)
        else:
            p("s_lshl_b32", sL, phase, 4); p("s_add_u32", sB, sL, self.sNonce); p("s_sub_u32", sL, 256, sL)
        self.poll_loop(t[0], t[1], sB, sL, keep=keep, force_true=force_true)
        self.vp.free(t); self.sp.free(sB, sL)
    def handoff(self, pub_off, between=None, need=(), before_poll=None):
        p = self.p
        sP = self.sa(1, "ph"); sA = self.sa(1, "pa")
        l1 = p.newlabel("Lh"); le = p.newlabel("Lhe")
        p("s_cmp_lg_u32", self.sW, 0); p("s_cbranch_scc1", l1)
        p("s_add_u32", sP, self.sPh, pub_off)
        self.flag_addr(sA, WS_FLAG, self.sC, self.sJ)
        self.publish(sP, sA)
        if before_poll: before_poll()
        self.poll(sP, WS_FLAG, self.sC)
        p("s_branch", le); p.label(l1)
        if between: between()
        p.label(le)
        if need: p.need(*need)
        self.barrier()
        self.sp.free(sP, sA)

    def stats_loads(self, dst4, sBase, off):
        return [(lambda i=i: self.p("buffer_load_dword", dst4[i], self.vSt, self.WS, sBase, mods="offen offset:%d sc1" % (off + i * 256))) for i in range(4)]
    def stats_finish(self, src4, pair, tmp):
        p = self.p
        p("v_add_f32", src4[0], src4[0], src4[1]); p("v_add_f32", src4[2], src4[2], src4[3])
        p("v_add_f32", src4[0], src4[0], src4[2])
        p("v_mov_b32", tmp, src4[0])
        p("v_permlane16_swap_b32", src4[0], tmp)
        p("v_add_f32", src4[0], src4[0], tmp)
        p("v_mov_b32", tmp, src4[0])
        p("v_permlane32_swap_b32", src4[0], tmp)
        p("v_mul_f32", pair[0], f2u(1.0 / 512), src4[0])
        p("v_mul_f32", tmp, f2u(1.0 / 512), tmp)
        p("v_fma_f32", tmp, "-" + str(pair[0]), pair[0], tmp)
        p("v_max_f32", tmp, 0, tmp)
        p("v_add_f32", tmp, f2u(1e-5), tmp)
        p("v_rsq_f32", pair[1], tmp)
    def stats_of_tile(self, x8, out, tmp):
        p = self.p
        s, q, s2, q2 = tmp[0], tmp[1], tmp[2], tmp[3]
        for (a, b, base) in ((s, q, 0), (s2, q2, 4)):
            p("v_dot2_f32_bf16", a, x8[base], self.vOnes[0], self.vZero)
            p("v_dot2_f32_bf16", b, x8[base], x8[base], self.vZero)
        for i in range(1, 4):
            for (a, b, base) in ((s, q, 0), (s2, q2, 4)):
                p("v_dot2_f32_bf16", a, x8[base + i], self.vOnes[0], a)
                p("v_dot2_f32_bf16", b, x8[base + i], x8[base + i], b)
        p("v_add_f32", s, s, s2); p("v_add_f32", q, q, q2)
        p("v_permlane32_swap_b32", s, q)
        p("v_add_f32", s, s, q)
        p("v_mov_b32", q, s); p("v_permlane16_swap_b32", s, q); p("v_add_f32", out, s, q)
    def mainloop(self, nsteps, nB, mf, rd, regs, two_half, extras, pre, aregs=None):
        p = self.p
        for nt in range(nB - 1):
            rd(0, nt, 0)
            if two_half: rd(0, nt, 1)
        for s in range(nsteps):
            for f in pre.get(s, []): f()
            if s == 0 or pre.get(s): p.needr(*aregs(s))
            for nt in range(nB):
                ps, pn = (s + 1, nt - 1) if nt > 0 else (s, nB - 1)
                ok = ps < nsteps
                ex = list(extras.pop((s, nt), []))
                mf(s, nt, 0)
                if ok: rd(ps, pn, 0)
                if ex: ex.pop(0)()
                mf(s, nt, 1)
                if ok and two_half: rd(ps, pn, 1)
                if not two_half and ex: ex.pop(0)()
                for f in ex: f()
                nx = nt + 1 if nt + 1 < nB else 0
                if nt + 1 < nB: p.needr(regs(nx))
                elif s + 1 < nsteps:
                    if pre.get(s + 1): p.needr(regs(nx))
                    else: p.needr(regs(nx), *aregs(s + 1))
        assert not extras, extras.keys()
    def a_loader(self, aX, sO, nsteps):
        p = self.p
        def f(s, t):
            if s >= nsteps: return
            if s and s % 4 == 0: p("s_add_u32", sO[t], sO[t], 4096)
            p("buffer_load_dwordx4", aX[t][s], self.vL16, self.WS, sO[t], mods="offen offset:%d sc1" % ((s % 4) * 1024))
        return f
```

```python
from gen3a import *

class PartB(Base):
    def get_nonce(self, v):
        p = self.p
        l = p.newlabel("Lnonce"); ok = p.newlabel("Lnok")
        p("v_readfirstlane_b32", self.sNonce, v); p("s_cmp_lg_u32", self.sNonce, 0); p("s_cbranch_scc1", ok)
        p("s_mov_b32", self.sSpin, 0)
        p.label(l)
        p("s_add_u32", self.sSpin, self.sSpin, 1); p("s_cmp_gt_u32", self.sSpin, SPIN_MAX); p("s_cbranch_scc1", "L_exit")
        p("buffer_load_dword", v, self.vZero, self.DBG, 0, mods="offen sc1")
        p("v_readfirstlane_b32", self.sNonce, v); p("s_cmp_eq_u32", self.sNonce, 0); p("s_cbranch_scc1", l)
        p.label(ok)
    def all_consts(self):
        self.const_st(); self.consts(); self.h_offsets(); self.touch_tables()
    def startup(self):
        p = self.p
        self.cap(lambda: (self.const_b1(), self.all_consts()))
        x = [self.va(8, "p0x%d" % i) for i in range(2)]
        vo = self.va(1, "p0off"); vn = self.va(1, "nonce")
        vq = self.va(6, "w3off", 1)
        r1 = [self.va(4, "r1") for _ in range(3)]
        sTwo = self.sa(1, "two"); sFa = self.sa(1, "fa"); sXo = self.sa(1, "xo"); sSo = self.sa(1, "so")
        def w1_loads():
            p("s_and_b32", self.sT, self.sW, 1); p("s_lshl_b32", self.sT1, self.sC, 1); p("s_add_u32", self.sT, self.sT, self.sT1)
            p("s_mul_i32", self.sT3, self.sT, 16 * 3072)
            for u in range(3): p("buffer_load_dwordx4", r1[u], self.vB1[u], self.WQKV, self.sT3, mods="offen" + (" offset:%d" % (1024 * u) if u else ""))
        l3 = p.newlabel("Ls3"); le = p.newlabel("Lse")
        p("s_cmp_eq_u32", self.sW, 3); p("s_cbranch_scc1", l3)
        p("s_lshl_b32", self.sT, self.sC, 7); p("s_mul_i32", self.sT1, self.sI, 5); p("s_add_u32", self.sT1, self.sT1, self.sW); p("s_lshl_b32", self.sT1, self.sT1, 4)
        p("s_add_u32", self.sT, self.sT, self.sT1); p("s_sub_u32", self.sT, self.sT, 16)
        p("v_add_u32", vo, self.sT, self.vM); p("v_lshlrev_b32", vo, 10, vo)
        p("v_lshlrev_b32", x[0][0], 4, self.vG); p("v_add_u32", vo, vo, x[0][0])
        p("s_lshl_b32", self.sT, self.sJJ, 7); p("v_add_u32", vo, self.sT, vo)
        for b in range(2): p("buffer_load_dwordx4", x[0][4 * b:4 * b + 4], vo, self.X0, 0, mods="offen" + (" offset:64" if b else ""))
        p("s_add_u32", sTwo, self.sW, self.sI)
        def second():
            p("v_add_u32", vo, 3 * 16384, vo)
            for b in range(2): p("buffer_load_dwordx4", x[1][4 * b:4 * b + 4], vo, self.X0, 0, mods="offen" + (" offset:64" if b else ""))
        self.if_scalar("le", sTwo, 1, second)
        p("buffer_load_dword", vn, self.vZero, self.DBG, 0, mods="offen sc1")
        t = self.va(4, "t")
        def w3_src(srd, lds):
            def f():
                p("s_mul_i32", self.sT, self.sJ, 176)
                p("s_mul_i32", self.sT3, self.sC, 32 * 2752)
                for u in range(6):
                    p("v_add_u32", t[0], 64 * u, self.vLane)
                    p("v_mul_u32_u24", t[1], 5958, t[0]); p("v_lshrrev_b32", t[1], 16, t[1])
                    p("v_mul_u32_u24", t[2], 11, t[1]); p("v_sub_u32", t[2], t[0], t[2])
                    p("v_and_b32", t[3], 16, t[1]); p("v_and_b32", t[0], 1, t[1]); p("v_lshlrev_b32", t[0], 3, t[0])
                    p("v_add_u32", t[3], t[3], t[0]); p("v_and_b32", t[0], 15, t[1]); p("v_lshrrev_b32", t[0], 1, t[0])
                    p("v_add_u32", t[3], t[3], t[0])
                    p("v_mul_u32_u24", t[3], 2752, t[3]); p("v_lshlrev_b32", t[2], 4, t[2]); p("v_add_u32", t[3], t[3], t[2])
                    p("v_add_u32", vq[u], self.sT, t[3])
                    if u == 5:
                        p("v_cmp_gt_u32", "vcc", 32, self.vLane); p("v_mov_b32", t[0], OOB)
                        p("v_cndmask_b32", vq[u], t[0], vq[u], "vcc")
                    p("s_mov_b32", "m0", lds + 1024 * u)
                    self.dma(srd, vq[u], self.sT3, 0, "w3src", (lds + 1024 * u, lds + 1024 * (u + 1)))
            return f
        self.by_wave({0: lambda: (self.const_b1(), w1_loads()), 1: w3_src(self.WG, L_RG), 2: w3_src(self.WU, L_RU)})
        self.vp.free(t)
        self.const_st()
        tmp = self.va(4, "tmp"); sv = self.va(1, "sv")
        def tile(n):
            f = x[n]
            for b in range(2):
                g = f[4 * b:4 * b + 4]
                p("v_permlane16_swap_b32", g[0], g[2]); p("v_permlane16_swap_b32", g[1], g[3])
            for b in range(2):
                g = f[4 * b:4 * b + 4]
                p("v_permlane32_swap_b32", g[0], g[2]); p("v_permlane32_swap_b32", g[1], g[3])
            p("s_mul_i32", self.sT, self.sI, 5); p("s_add_u32", self.sT, self.sT, self.sW); p("s_add_u32", self.sT, self.sT, 3 * n)
            p("s_lshl_b32", self.sT1, self.sT, 14); p("s_add_u32", sXo, self.sT1, self.sCb); p("s_lshl_b32", self.sT1, self.sJJ, 11); p("s_add_u32", sXo, sXo, self.sT1)
            p("s_lshl_b32", self.sT1, self.sT, 10); p("s_add_u32", sSo, self.sT1, self.sCb); p("s_lshl_b32", self.sT1, self.sJJ, 7); p("s_add_u32", sSo, sSo, self.sT1); p("s_add_u32", sSo, sSo, C_ST0)
            for b in range(2): p("buffer_store_dwordx4", f[4 * b:4 * b + 4], self.vL16, self.WS, sXo, mods="offen" + (" offset:1024 " if b else " ") + WT, token="p0st")
            self.stats_of_tile(f, sv, tmp)
            p("buffer_store_dword", sv, self.vStW, self.WS, sSo, mods="offen " + WT, token="p0st")
        tile(0)
        self.if_scalar("le", sTwo, 1, lambda: tile(1))
        self.vp.free(tmp, sv)
        self.consts(); self.h_offsets(); self.touch_tables()
        self.get_nonce(vn)
        t1 = self.va(1, "t1"); p("v_mov_b32", t1, L_NONCE); p("ds_write_b32", t1, vn, lds=(L_NONCE, L_NONCE + 4), token="nonce"); self.vp.free(t1)
        p("s_lshl_b32", self.sT, self.sJ, 2); p("s_add_u32", self.sT, self.sT, self.sW)
        p("s_lshl_b32", self.sT, self.sT, 2); p("s_lshl_b32", sFa, self.sC, 8); p("s_add_u32", sFa, sFa, self.sT); p("s_add_u32", sFa, sFa, WS_FLAG_P)
        p.need("p0st")
        self.publish(1, sFa, force_wt=True)
        p("s_branch", le)
        p.label(l3)
        self.const_b1()
        w1_loads()
        cst = self.cap(self.all_consts)
        groups = []
        for hs in range(32):
            def g(hs=hs):
                p("s_mov_b32", "m0", L_B1 + hs * 3072); p("s_mov_b32", self.sDm, hs * 16 * 3072)
                self.dma(self.WQKV, self.vB1[0], self.sDm, 0, "B1", (L_B1 + hs * 3072, L_B1 + (hs + 1) * 3072))
            groups.append(self.cap(g))
            for u in (1, 2):
                groups.append(self.cap(lambda u=u, hs=hs: self.dma(self.WQKV, self.vB1[u], self.sDm, 1024 * u, "B1", (L_B1 + hs * 3072, L_B1 + (hs + 1) * 3072))))
        self.weave_groups(cst, groups, start=0, every=max(1, len(cst) // len(groups)))
        p.label(le)
        self.vp.free(x, vo, vq); self.sp.free(sTwo, sFa, sXo, sSo)
        self.stamp("p0done")
        def w1_stores():
            p("s_and_b32", self.sT, self.sW, 1); p("s_lshl_b32", self.sT1, self.sC, 1); p("s_add_u32", self.sT, self.sT, self.sT1)
            p("s_mul_i32", self.sT3, self.sT, 3072); p("s_add_u32", self.sT3, self.sT3, self.sW1)
            for u in range(3): p("buffer_store_dwordx4", r1[u], self.vL16, self.WS, self.sT3, mods="offen offset:%d %s" % (1024 * u, WT), token="w3st")
        p.need("w3src", "nonce"); self.barrier()
        t1 = self.va(1, "t1"); p("v_mov_b32", t1, L_NONCE); p("ds_read_b32", t1, t1, lds=(L_NONCE, L_NONCE + 4)); p("v_readfirstlane_b32", self.sNonce, t1); self.vp.free(t1, vn)
        self.by_wave({0: w1_stores, 3: w1_stores})
        self.vp.free(r1)
        self.w3_repack()
        p.need("B1"); self.barrier()
        self.stamp("b1ready")
        self.csum1()

    def w3_repack(self):
        p = self.p
        t = self.va(4, "t"); base = self.va(1, "rb")
        p("v_and_b32", t[0], 1, self.vG); p("v_lshlrev_b32", t[0], 2, t[0])
        p("v_lshrrev_b32", t[1], 2, self.vM); p("v_add_u32", t[0], t[0], t[1]); p("v_lshlrev_b32", t[0], 1, t[0])
        p("v_lshrrev_b32", t[1], 1, self.vG); p("v_add_u32", t[0], t[0], t[1])
        p("v_mul_u32_u24", base, 176, t[0]); p("v_add_u32", base, L_RG, base)
        frag = [self.va(4, "frag") for _ in range(3)]; ad = self.va(1, "ad")
        sO = self.sa(1, "w3o")
        p("s_mul_i32", self.sT, self.sC, 11 * 1024); p("s_add_u32", sO, self.sW3, self.sT)
        cacc = [self.va(4, "cacc") for _ in range(3)]; cad = self.va(1, "cad"); sCs = self.sa(1, "cs")
        p("s_lshl_b32", sCs, self.sJ, 4); p("s_add_u32", sCs, sCs, self.sC); p("s_lshl_b32", sCs, sCs, 10); p("s_add_u32", sCs, sCs, WS_W3CS)
        p("v_lshlrev_b32", cad, 4, self.vG); p("v_mov_b32", t[0], OOB)
        p("v_cmp_eq_u32", "vcc", 0, self.vM); p("v_cndmask_b32", cad, t[0], cad, "vcc")
        R = (L_RG, L_RG + 12288)
        def tiles(lst):
            for n, nt in enumerate(lst):
                if nt < 10:
                    off = (0 if nt % 2 == 0 else L_RU - L_RG) + 32 * (nt // 2)
                    p("v_add_u32", ad, base, self.vIn)
                    p("ds_read_b64_tr_b16", frag[n][0:2], ad, mods="offset:%d" % off, lds=R)
                    p("ds_read_b64_tr_b16", frag[n][2:4], ad, mods="offset:%d" % (off + 16 * 176), lds=R)
                else:
                    p("v_and_b32", t[0], 1, self.vLane); p("v_lshlrev_b32", t[0], 3, t[0])
                    p("v_and_b32", t[1], 2, self.vLane); p("v_mul_u32_u24", t[1], (L_RU - L_RG) // 2, t[1])
                    p("v_add3_u32", ad, base, t[0], t[1])
                    p("ds_read_b64_tr_b16", frag[n][0:2], ad, mods="offset:%d" % 160, lds=R)
                    p("ds_read_b64_tr_b16", frag[n][2:4], ad, mods="offset:%d" % (160 + 16 * 176), lds=R)
            for n, nt in enumerate(lst):
                p("s_add_u32", self.sT, sO, nt * 1024)
                p("buffer_store_dwordx4", frag[n], self.vL16, self.WS, self.sT, mods="offen " + WT, token="w3st")
                p(MFMA, cacc[n], frag[n], self.vOnes, 0)
            for n, nt in enumerate(lst):
                p("buffer_store_dwordx4", cacc[n], cad, self.WS, sCs, mods="offen offset:%d %s" % (nt * 64, WT), token="w3st")
        self.by_wave({w: (lambda w=w: tiles(list(range(w, 11, 4)))) for w in range(4)})
        self.vp.free(t, base, frag, ad, cacc, cad); self.sp.free(sO, sCs)

    def wave_tile_base(self, dst, sNt):
        p = self.p; t = self.va(1, "t")
        p("v_and_b32", t, 1, self.vG); p("v_xor_b32", t, sNt, t); p("v_lshlrev_b32", t, 5, t)
        p("v_add_u32", dst, self.vT1b, t); self.vp.free(t)
    def csum1(self):
        p = self.p
        bT = self.va(2, "bT", 1); bV = self.va(2, "bV", 1)
        self.wave_tile_base(bT[0], self.sW); p("v_add_u32", bT[1], 49152, bT[0])
        p("s_and_b32", self.sT, self.sW, 1); p("s_add_u32", self.sT, self.sT, 4)
        self.wave_tile_base(bV[0], self.sT); p("v_add_u32", bV[1], 49152, bV[0])
        accT = self.va(4, "cT"); accV = self.va(4, "cV")
        fT = [self.aa(4, "fT") for _ in range(3)]; fV = [self.aa(4, "fV") for _ in range(3)]
        def rd(s):
            hi, so = s // 8, (s % 8) * 6144; R = (s * 6144, (s + 1) * 6144)
            p("ds_read_b64_tr_b16", fT[s % 3][0:2], bT[hi], mods="offset:%d" % so, lds=R)
            p("ds_read_b64_tr_b16", fT[s % 3][2:4], bT[hi], mods="offset:%d" % (so + 3072), lds=R)
            p("ds_read_b64_tr_b16", fV[s % 3][0:2], bV[hi], mods="offset:%d" % so, lds=R)
            p("ds_read_b64_tr_b16", fV[s % 3][2:4], bV[hi], mods="offset:%d" % (so + 3072), lds=R)
        rd(0); rd(1)
        for s in range(16):
            if s + 2 < 16: rd(s + 2)
            p(MFMA, accT, fT[s % 3], self.vOnes, accT if s else 0)
            p(MFMA, accV, self.vOnes, fV[s % 3], accV if s else 0)
        ad = self.va(1, "ad")
        p("s_lshl_b32", self.sT, self.sW, 6); p("s_add_u32", self.sT, self.sT, L_CS1T)
        p("v_lshlrev_b32", ad, 4, self.vG); p("v_add_u32", ad, self.sT, ad)
        p("s_mov_b32", "exec_lo", 0x00010001); p("s_mov_b32", "exec_hi", 0x00010001)
        p("ds_write_b128", ad, accT, lds=(L_CS1T, L_CS1T + 256))
        p("s_and_b32", self.sT, self.sW, 1); p("s_lshl_b32", self.sT, self.sT, 6); p("s_add_u32", self.sT, self.sT, L_CS1V)
        p("s_mov_b64", "exec", -1)
        p("v_lshlrev_b32", ad, 2, self.vM); p("v_add_u32", ad, self.sT, ad)
        p("s_mov_b64", "exec", 0xFFFF)
        p("ds_write_b32", ad, accV[0], lds=(L_CS1V, L_CS1V + 128))
        p("s_mov_b64", "exec", -1)
        self.vp.free(bT, bV, accT, accV, ad); self.ap.free(fT, fV)
    def entry(self):
        p = self.p
        def first_poll():
            k = self.va(2, "k", 1); sM = self.sp.alloc(2, 2, "msk")
            p("v_and_b32", k[0], 3, self.vLane); p("v_cmp_eq_u32", sM, 3, k[0])
            self.poll(1, WS_FLAG_P, self.sC, n=64, keep=k[0], force_true=sM)
            p("v_and_b32", k[0], 15, k[0]); p("v_cmp_eq_u32", "vcc", self.sXCC, k[0]); p("s_or_b64", "vcc", "vcc", sM)
            p("s_cmp_eq_u64", "vcc", "exec"); p("s_cselect_b32", self.sT, 0 if self.o.slow else 1, 0)
            p("v_mov_b32", k[0], self.sT); p("v_mov_b32", k[1], L_NONCE + 4); p("ds_write_b32", k[1], k[0], lds=(L_NONCE + 4, L_NONCE + 8))
            self.vp.free(k); self.sp.free(sM)
        self.if_wave(0, first_poll)
        p("s_waitcnt", "lgkmcnt(0)")
        self.barrier()
        t = self.va(1, "t"); p("v_mov_b32", t, L_NONCE + 4); p("ds_read_b32", t, t, lds=(L_NONCE + 4, L_NONCE + 8)); p("v_readfirstlane_b32", self.sFast, t); self.vp.free(t)
        self.stamp("x0ready")

    def layer_bases(self):
        p = self.p
        for n in "Lb Xin STin Ph".split():
            if not hasattr(self, "s" + n): setattr(self, "s" + n, self.sa(1, n))
        L = self.sLayer
        p("s_mul_i32", self.sT, L, LBSZ); p("s_add_u32", self.sT, self.sT, self.sCb); p("s_add_u32", self.sLb, self.sT, C_L)
        p("s_cmp_eq_u32", L, 0)
        p("s_cselect_b32", self.sT, C_X0, C_L + L_XOUT); p("s_add_u32", self.sXin, self.sT, self.sCb)
        p("s_cmp_eq_u32", L, 0)
        p("s_mov_b32", self.sT1, C_L + L_STOUT); p("s_cselect_b32", self.sT, C_ST0, self.sT1); p("s_add_u32", self.sSTin, self.sT, self.sCb)
        p("s_lshl_b32", self.sPh, L, 2)

    def lnT(self, dst2, a4, c4, pm, pr, prsel):
        p = self.p
        for i in range(2):
            p("v_pk_fma_f32", a4[2 * i:2 * i + 2], c4[2 * i:2 * i + 2], pm, a4[2 * i:2 * i + 2], mods="op_sel_hi:[1,0,1] neg_lo:[0,1,0] neg_hi:[0,1,0]")
        for i in range(2):
            p("v_pk_mul_f32", a4[2 * i:2 * i + 2], a4[2 * i:2 * i + 2], pr, mods=("op_sel:[0,1] op_sel_hi:[1,1]" if prsel else "op_sel_hi:[1,0]"))
        for i in range(2): p("v_cvt_pk_bf16_f32", dst2[i], a4[2 * i], a4[2 * i + 1])
    def lnN(self, dst2, a4, cv, m4, r4):
        p = self.p
        for i in range(2):
            p("v_pk_fma_f32", a4[2 * i:2 * i + 2], m4[2 * i:2 * i + 2], cv, a4[2 * i:2 * i + 2], mods="op_sel_hi:[1,0,1] neg_lo:[0,1,0] neg_hi:[0,1,0]")
        for i in range(2): p("v_pk_mul_f32", a4[2 * i:2 * i + 2], a4[2 * i:2 * i + 2], r4[2 * i:2 * i + 2])
        for i in range(2): p("v_cvt_pk_bf16_f32", dst2[i], a4[2 * i], a4[2 * i + 1])
    def p1(self):
        p, o = self.p, self.o
        D = o.d1
        aX = [[self.aa(4, "aX") for s in range(16)] for t in range(2)]
        aB = [self.aa(4, "aB") for nt in range(6)]
        acc = [[self.va(4, "acc") for nt in range(6)] for t in range(2)]
        sA = [self.sa(1, "p1a") for _ in range(2)]
        p("s_lshl_b32", self.sT, self.sW, 15); p("s_add_u32", sA[0], self.sT, self.sXin); p("s_add_u32", sA[0], sA[0], 16384)
        p("s_add_u32", sA[1], sA[0], 16384)
        ld = self.a_loader(aX, sA, 16)
        for s in range(D):
            for t in range(2): ld(s, t)
        def rdB(s, nt, half):
            b = self.vT1[(nt & 1) * 2 + s // 8]; so = (s % 8) * 6144 + nt * 32; R = (s * 6144, (s + 1) * 6144)
            p("ds_read_b64_tr_b16", aB[nt][2 * half:2 * half + 2], b, mods="offset:%d" % (so + 3072 * half), lds=R)
        st4 = [self.va(4, "st4", 1) for t in range(2)]; sth = self.va(4, "sth", 1)
        sS = self.sa(1, "p1s"); sHX = self.sa(1, "hx"); sHS = self.sa(1, "hs"); sThr = self.sa(1, "thr"); sLim = self.sa(1, "lim")
        p("s_lshl_b32", self.sT, self.sW, 11); p("s_add_u32", sS, self.sT, self.sSTin); p("s_add_u32", sS, sS, 1024)
        p("s_cmp_eq_u32", self.sC, 0)
        p("s_cselect_b32", sHX, CB0 + C_X0, self.sXin); p("s_cselect_b32", sHS, CB0 + C_ST0, self.sSTin)
        p("s_add_u32", sHX, sHX, self.sW4k)
        pv = self.va(2, "pv", 1)
        p("s_min_u32", self.sT3, self.sC, self.sLayer); p("s_cmp_lg_u32", self.sT3, 0)
        p("s_mov_b32", self.sT1, WS_FLAG_P); p("s_mov_b32", sThr, 16)
        p("s_cselect_b32", self.sT1, WS_FLAG_H, self.sT1)
        p("s_cselect_b32", sThr, 5 * 16, sThr); p("s_cselect_b32", self.sT3, 2, 4)
        p("s_lshl_b32", self.sT, self.sC, 8); p("s_add_u32", self.sT, self.sT, self.sT1)
        p("v_and_b32", pv[0], 7, self.vLane); p("v_lshlrev_b32", pv[0], self.sT3, pv[0]); p("v_add_u32", pv[0], self.sT, pv[0])
        p("s_sub_u32", sLim, 256, sThr); p("s_add_u32", sThr, sThr, self.sNonce)
        rp = self.va(8, "rp")
        def ld_res():
            p("s_lshl_b32", self.sT, self.sOwn, 14); p("s_add_u32", self.sT, self.sT, self.sXin)
            p("s_lshl_b32", self.sT1, self.sJJ, 11); p("s_add_u32", self.sT, self.sT, self.sT1)
            p("buffer_load_dwordx4", rp[0:4], self.vL16, self.WS, self.sT, mods="offen sc1")
            p("buffer_load_dwordx4", rp[4:8], self.vL16, self.WS, self.sT, mods="offen offset:1024 sc1")
        st = [self.va(4, "st") for t in range(2)]; tmp = self.va(1, "tmp"); hst = self.va(4, "hst")
        slot = {}
        def at(s, nt, fn): slot.setdefault((s, nt), []).append(fn)
        for t in range(2):
            for i, f in enumerate(self.stats_loads(st4[t], sS, t * 1024)): at(2 + 2 * t + i // 2, (2, 5)[i % 2], f)
        at(6, 1, lambda: self.if_scalar("eq", self.sLayer, 0, ld_res))
        at(7, 1, lambda: p("buffer_load_dword", pv[1], pv[0], self.WS, 0, mods="offen sc1"))
        def wpub():
            sA_ = self.sa(1, "a"); self.flag_addr(sA_, WS_FLAG_W, self.sJ, self.sC); self.publish(1, sA_, force_wt=True); self.sp.free(sA_)
        pre1 = {8: [lambda: (p.need("B1b", "w3st"), self.barrier(), self.if_scalar("eq", self.sLayer, 0, lambda: self.if_wave(1, wpub)))]}
        at(9, 1, lambda: self.poll_loop(pv[0], pv[1], sThr, sLim, first_loaded=True))
        for n, f in enumerate(self.g_lin4(sHX, 0, L_HA, "HA")): at(9 + (n + 1) // 2, (5, 2)[n % 2], f)
        for i, f in enumerate(self.stats_loads(sth, sHS, 0)): at(11 + (i + 1) // 2, (4, 1)[i % 2], f)
        at(14, 1, lambda: self.touch(self.vTc1))
        b2a = self.g_b2(0, "B2a") + self.g_b2(1, "B2a")
        for s_ in range(16 - D):
            slot.setdefault((s_, 0), []).insert(0, lambda s_=s_: ld(s_ + D, 0)); slot.setdefault((s_, 3), []).insert(0, lambda s_=s_: ld(s_ + D, 1))
        def mf(s, nt, t):
            c = acc[t][nt] if s else 0
            if nt < 4: p(MFMA, acc[t][nt], aB[nt], aX[t][s], c)
            else: p(MFMA, acc[t][nt], aX[t][s], aB[nt], c)
        self.mainloop(16, 6, mf, rdB, lambda nt: aB[nt], True, slot, pre1, lambda s: (aX[0][s], aX[1][s]))
        self.stamp("p1main")
        for t in range(2): self.ap.free(aX[t])
        self.ap.free(aB); self.sp.free(sA, sS, sHX, sHS, sThr, sLim); self.vp.free(pv)
        self.if_scalar("eq", self.sLayer, 0, lambda: self.unpack_resid(rp))
        self.vp.free(rp)
        self.fs(1, 0)
        p.need("HA"); self.barrier()
        self.fs(1, 1)
        Q = [[self.va(2, "Q") for h in range(2)] for t in range(2)]
        K = [[self.va(2, "K") for h in range(2)] for t in range(2)]
        KV = [self.va(8, "KV") for h in range(2)]
        o4 = [self.va(4, "o4") for t in range(2)]
        ad = self.va(4, "ad", 1)
        mN = [self.va(4, "mN") for t in range(3)]; rN = [self.va(4, "rN") for t in range(3)]
        cs = [self.va(4, "cs") for nt in range(4)]; csV = [self.va(2, "csV") for h in range(2)]
        ch = self.va(4, "ch")
        RS = (L_RMEAN, L_RRSTD + 576)
        hb = self.va(2, "hb", 1); xa = self.va(1, "xa")
        NB = 4
        hT = self.va(4, "hT"); hN = self.va(4, "hN"); fW = [self.aa(4, "fW") for _ in range(NB)]; fX = [self.aa(4, "fX") for _ in range(NB)]
        p("s_add_u32", self.sT, self.sW, 2); self.wave_tile_base(hb[0], self.sT); p("v_add_u32", hb[1], 49152, hb[0])
        p("v_add_u32", xa, L_HA, self.vL16)
        def streamB():
            def rd(s):
                hi, so = s // 8, (s % 8) * 6144; R = (s * 6144, (s + 1) * 6144)
                p("ds_read_b64_tr_b16", fW[s % NB][0:2], hb[hi], mods="offset:%d" % so, lds=R)
                p("ds_read_b64_tr_b16", fW[s % NB][2:4], hb[hi], mods="offset:%d" % (so + 3072), lds=R)
                p("ds_read_b128", fX[s % NB], xa, mods="offset:%d" % (s * 1024), lds=(L_HA + s * KB, L_HA + (s + 1) * KB))
            for s in range(NB - 1): rd(s)
            for s in range(16):
                p(MFMA, hT, fW[s % NB], fX[s % NB], hT if s else 0)
                p(MFMA, hN, fX[s % NB], fW[s % NB], hN if s else 0)
                if s + NB - 1 < 16: rd(s + NB - 1)
        def streamA():
            for f in b2a: f()
            p("v_lshlrev_b32", ad[2], 4, self.vG); p("v_add_u32", ad[2], L_MISC, ad[2])
            p("v_lshlrev_b32", ad[3], 2, self.vM); p("v_add_u32", ad[3], L_MISC, ad[3])
            for t in range(2):
                self.stats_finish(st4[t], st[t], tmp)
                p("v_mul_f32", st[t][2], f2u(0.25), st[t][1])
            self.stats_finish(sth, hst, tmp)
            p("s_lshl_b32", self.sT, self.sW, 7); p("s_add_u32", self.sT, self.sT, 64)
            p("v_add_u32", ad[0], self.sT, ad[3]); p("v_add_u32", ad[1], self.sT, ad[2])
            p("s_mov_b64", "exec", 0xFFFF)
            for t in range(2):
                p("ds_write_b32", ad[0], st[t][0], mods="offset:%d" % (L_RMEAN - L_MISC + 64 * t), lds=RS + ("p",))
                p("ds_write_b32", ad[0], st[t][1], mods="offset:%d" % (L_RRSTD - L_MISC + 64 * t), lds=RS + ("p",))
            p("ds_write_b32", ad[3], hst[0], mods="offset:%d" % (L_RMEAN - L_MISC), lds=RS + ("p",)); p("ds_write_b32", ad[3], hst[1], mods="offset:%d" % (L_RRSTD - L_MISC), lds=RS + ("p",))
            p("s_mov_b64", "exec", -1)
            for t in range(2):
                p("ds_read_b128", mN[t], ad[1], mods="offset:%d" % (L_RMEAN - L_MISC + 64 * t), lds=RS + ("p",))
                p("ds_read_b128", rN[t], ad[1], mods="offset:%d" % (L_RRSTD - L_MISC + 64 * t), lds=RS + ("p",))
            p("ds_read_b128", mN[2], ad[2], mods="offset:%d" % (L_RMEAN - L_MISC), lds=RS + ("p",)); p("ds_read_b128", rN[2], ad[2], mods="offset:%d" % (L_RRSTD - L_MISC), lds=RS + ("p",))
            for nt in range(4): p("ds_read_b128", cs[nt], ad[2], mods="offset:%d" % (L_CS1T - L_MISC + 64 * nt), lds=(L_CS1T, L_CS1T + 256))
            for h in range(2): p("ds_read_b32", csV[h][0], ad[3], mods="offset:%d" % (L_CS1V - L_MISC + 64 * h), lds=(L_CS1V, L_CS1V + 128))
            p("s_and_b32", self.sT, self.sW, 1); p("s_lshl_b32", self.sT, self.sT, 6); p("s_add_u32", self.sT1, self.sT, 128)
            p("v_add_u32", ad[0], self.sT1, ad[2]); p("ds_read_b128", ch, ad[0], mods="offset:%d" % (L_CS1T - L_MISC), lds=(L_CS1T, L_CS1T + 256))
        self.weave(self.cap(streamA), self.cap(streamB), 1, 1)
        self.vp.free(st4[0], st4[1], sth)
        self.fs(1, 2)
        hp = self.va(2, "hp")
        for t in range(2):
            for h in range(2):
                self.lnT(K[t][h], acc[t][2 + h], cs[2 + h], st[t][0:2], st[t][0:2], 1)
                self.lnN(KV[h][4 + 2 * t:6 + 2 * t], acc[t][4 + h], csV[h], mN[t], rN[t])
        p("s_lshl_b32", self.sT, self.sW, 11); p("s_add_u32", self.sT, self.sT, L_EX + 2048)
        p("v_add_u32", ad[0], self.sT, self.vL16)
        for h in range(2):
            p("ds_write_b64", ad[0], K[1][h], mods="offset:%d" % (1024 * h), lds=(L_EX + 2048, L_EX + 10240))
            p("ds_write_b64", ad[0], KV[h][6:8], mods="offset:%d" % (1024 * h + 8), lds=(L_EX + 2048, L_EX + 10240))
        lN = p.newlabel("LhN"); lE = p.newlabel("LhE")
        p("s_cmp_ge_u32", self.sW, 2); p("s_cbranch_scc1", lN)
        self.lnT(hp, hT, ch, hst[0:2], hst[0:2], 1)
        p("s_branch", lE); p.label(lN)
        cvh = self.va(2, "cvh")
        p("s_cmp_eq_u32", self.sW, 2); p("s_cselect_b64", "vcc", -1, 0)
        p("v_cndmask_b32", cvh[0], csV[1][0], csV[0][0], "vcc")
        self.lnN(hp, hN, cvh, mN[2], rN[2])
        self.vp.free(cvh)
        p.label(lE)
        p("s_and_b32", self.sT, self.sW, 1); p("s_lshl_b32", self.sT, self.sT, 10)
        p("s_lshr_b32", self.sT1, self.sW, 1); p("s_lshl_b32", self.sT1, self.sT1, 3)
        p("s_add_u32", self.sT, self.sT, self.sT1); p("s_add_u32", self.sT, self.sT, L_EX)
        p("v_add_u32", xa, self.sT, self.vL16)
        p("ds_write_b64", xa, hp, lds=(L_EX, L_EX + 2048))
        for t in range(2):
            for h in range(2): self.lnT(Q[t][h], acc[t][h], cs[h], st[t][0:2], st[t][2:4], 0)
        for t in range(2): self.vp.free(acc[t])
        self.vp.free(mN, rN, st, cs, csV, ch, hb, hT, hN, hp, hst); self.ap.free(fW, fX)
        self.fs(1, 3)
        p("s_waitcnt", "lgkmcnt(0)"); self.barrier()
        self.stamp("p1x1")
        p("s_lshl_b32", self.sT, self.sW, 11); p("s_add_u32", self.sT, self.sT, L_EX)
        p("v_add_u32", xa, self.sT, self.vL16)
        for h in range(2): p("ds_read_b128", KV[h][0:4], xa, mods="offset:%d" % (1024 * h), lds=(L_EX, L_EX + 8192))
        self.fs(1, 4)
        self.attention([(Q[1][h], K[0][h], K[1][h], KV[h][4:8], self.vBiasP, o4[1][2 * h:2 * h + 2]) for h in range(2)] +
                       [(Q[0][h], KV[h][0:2], K[0][h], KV[h][2:6], self.vBiasP0, o4[0][2 * h:2 * h + 2]) for h in range(2)])
        self.fs(1, 5); self.fs_dump(1)
        sO = [self.sa(1, "o") for _ in range(2)]
        p("s_lshl_b32", self.sT, self.sW, 15); p("s_add_u32", self.sT, self.sT, self.sLb)
        p("s_lshl_b32", self.sT1, self.sJ, 10); p("s_add_u32", self.sT, self.sT, self.sT1); p("s_add_u32", sO[0], self.sT, L_O)
        p("s_add_u32", sO[1], sO[0], 16384)
        def st_o(m):
            for t in range(2): p("buffer_store_dwordx4", o4[t], self.vL16, self.WS, sO[t], mods=("offen " + m).strip(), token="ost")
        self.dual_store(st_o)
        self.sp.free(sO)
        self.vp.free(Q, K, KV, o4, tmp, ad, xa)
        self.if_scalar("eq", self.sLayer, 0, lambda: self.if_wave(0, lambda: self.poll(1, WS_FLAG_W, self.sJ)))
        p.need("ost", "B2a"); self.barrier()
        self.stamp("p1done")

    def attention(self, units):
        p = self.p
        streams = []; frees = []
        for (Q, Kp, Kc, V4, bP, out) in units:
            q = Prog()
            Sp = self.va(4, "Sp"); Sc = self.va(4, "Sc"); m = self.va(2, "m"); t = self.va(1, "t"); P = self.va(4, "P"); O = self.va(4, "O"); Sm = self.va(4, "Sm")
            q(MFMA16, Sp, Kp, Q, bP); q(MFMA16, Sc, Kc, Q, self.vBiasC)
            q("v_max3_f32", m[0], Sp[0], Sp[1], Sp[2]); q("v_max3_f32", m[0], m[0], Sp[3], Sc[0])
            q("v_max3_f32", m[0], m[0], Sc[1], Sc[2]); q("v_max_f32", m[0], m[0], Sc[3])
            q("v_mov_b32", t, m[0]); q("v_permlane16_swap_b32", m[0], t); q("v_max_f32", m[0], m[0], t)
            q("v_mov_b32", t, m[0]); q("v_permlane32_swap_b32", m[0], t); q("v_max_f32", m[0], m[0], t)
            q("v_mul_f32", m[0], self.sL2E[1], m[0])
            for Sx in (Sp, Sc):
                for i in range(4): q("v_fma_f32", Sx[i], Sx[i], self.sL2E[0], m[0])
            for Sx in (Sp, Sc):
                for i in range(4): q("v_exp_f32", Sx[i], Sx[i])
            q("v_cvt_pk_bf16_f32", P[0], Sp[0], Sp[1]); q("v_cvt_pk_bf16_f32", P[1], Sp[2], Sp[3])
            q("v_cvt_pk_bf16_f32", P[2], Sc[0], Sc[1]); q("v_cvt_pk_bf16_f32", P[3], Sc[2], Sc[3])
            q(MFMA, Sm, self.vOnes, P, 0); q(MFMA, O, V4, P, 0)
            q("v_rcp_f32", m[0], Sm[0])
            for i in range(4): q("v_mul_f32", O[i], O[i], m[0])
            for i in range(2): q("v_cvt_pk_bf16_f32", out[i], O[2 * i], O[2 * i + 1])
            streams.append(q.take()); frees.append([Sp, Sc, m, t, P, O, Sm])
        n = max(len(s) for s in streams)
        for i in range(n):
            for s in streams:
                if i < len(s): p.ins.append(s[i])
        for f in frees: self.vp.free(f)
```

```python
KB = 1024
WS_FLAG   = 0x0
WS_FLAG_W = 0x2000
WS_FLAG_H = 0x4000
WS_FLAG_P = 0x6000
WS_STAMP  = 0x8000
WS_W3CS   = 0x20000
WS_W1     = 0x80000
W3SZ = 16 * 11 * KB
WS_W3     = 0x200000
CB0 = 0x600000; CBSZ = 0x200000
XSZ = 9 * 16 * KB
C_X0 = 0x0; C_ST0 = 0x24000
C_L = 0x28000; LBSZ = 0xC8000
L_XMID = 0x0; L_XOUT = 0x24000; L_STMID = 0x48000; L_STOUT = 0x4C000; L_O = 0x50000; L_H = 0x70000
HSTEPS = 44
WS_END = CB0 + 16 * CBSZ
def ws_x(n, c):
    return CB0 + c * CBSZ + (C_X0 if n == 0 else C_L + ((n - 1) // 2) * LBSZ + (L_XMID if n % 2 == 1 else L_XOUT))
def ws_o(L, c): return CB0 + c * CBSZ + C_L + L * LBSZ + L_O
def ws_h(L, c): return CB0 + c * CBSZ + C_L + L * LBSZ + L_H
def ws_st(n, c): return CB0 + c * CBSZ + (C_ST0 if n == 0 else C_L + ((n - 1) // 2) * LBSZ + (L_STMID if n % 2 == 1 else L_STOUT))
LDS_SIZE = 163840
L_MISC = 159744
L_CS1T = L_MISC
L_CS1V = L_MISC + 256
L_CS3  = L_MISC + 384
L_RMEAN = L_MISC + 1088
L_RRSTD = L_MISC + 1664
L_NONCE = L_MISC + 2240
def hspace_F(sigma, k):
    kh, i = divmod(sigma, 22)
    if i < 16:
        return 704 * kh + 88 * (i >> 1) + 32 * (i & 1) + k
    lam = 4 * (i - 16) + (k >> 3)
    return 704 * kh + 88 * (lam // 3) + 64 + 8 * (lam % 3) + (k & 7)
```

```python
from gen3b import *

class G(PartB):
    def tr_bases(self, windows):
        p = self.p; out = {0: [self.vT2[nt] for nt in range(4)]}; tmp = []
        for w in windows:
            if w == 0: continue
            r = self.va(4, "vbw", 1); tmp.append(r)
            for nt in range(4): p("v_add_u32", r[nt], 65536 * w, self.vT2[nt])
            out[w] = [r[nt] for nt in range(4)]
        return out, tmp
    def gemm64(self, nsteps, sAbase, a_tile_stride, slot_of, D, hooks):
        p = self.p
        aX = [[self.aa(4, "aX") for s in range(nsteps)] for t in range(2)]
        aB = [self.aa(4, "aB") for nt in range(4)]
        acc = [[self.va(4, "acc") for nt in range(4)] for t in range(2)]
        sO = [self.sa(1, "ao") for _ in range(2)]
        p("s_lshl_b32", self.sT, self.sMH, 1); p("s_add_u32", self.sT1, self.sT, self.sKH)
        p("s_mul_i32", self.sT1, self.sT1, a_tile_stride); p("s_add_u32", sO[0], sAbase, self.sT1)
        p("s_add_u32", self.sT, self.sT, 1); p("s_sub_u32", self.sT, self.sT, self.sKH)
        p("s_mul_i32", self.sT1, self.sT, a_tile_stride); p("s_add_u32", sO[1], sAbase, self.sT1)
        ld = self.a_loader(aX, sO, nsteps)
        for s in range(D):
            for t in range(2): ld(s, t)
        bases, tmpb = self.tr_bases(sorted({slot_of(s) >> 16 for s in range(nsteps)}))
        def rdB(s, nt, half):
            a = slot_of(s); w = a >> 16; so = a & 0xffff
            p("ds_read_b64_tr_b16", aB[nt][2 * half:2 * half + 2], bases[w][nt], mods="offset:%d" % (so + 2048 * half), lds=(a, a + 8192))
        ex = {k: list(v) for k, v in hooks.items() if len(k) == 2}
        pre = {k[0]: v for k, v in hooks.items() if len(k) == 3}
        for s_ in range(nsteps - D):
            ex.setdefault((s_, 0), []).insert(0, lambda s_=s_: ld(s_ + D, 0)); ex.setdefault((s_, 2), []).insert(0, lambda s_=s_: ld(s_ + D, 1))
        self.mainloop(nsteps, 4, lambda s, nt, t: p(MFMA, acc[t][nt], aB[nt], aX[t][s], acc[t][nt] if s else 0), rdB, lambda nt: aB[nt], True, ex, pre, lambda s: (aX[0][s], aX[1][s]))
        self.sp.free(sO); self.vp.free(tmpb)
        for t in range(2): self.ap.free(aX[t])
        self.ap.free(aB)
        return acc
    def reduce64(self, acc, scratch, groups=()):
        p = self.p
        ad = self.va(2, "ad", 1); xp = self.va(8, "xp")
        R = (scratch, scratch + 16384)
        def part1():
            p("s_add_u32", self.sT, self.sW4k, scratch)
            p("v_add_u32", ad[0], self.sT, self.vL16)
            for nt in range(4): p("ds_write_b128", ad[0], acc[1][nt], mods="offset:%d" % (1024 * nt), lds=R)
            p("s_xor_b32", self.sT, self.sW4k, 4096); p("s_add_u32", self.sT, self.sT, scratch)
            p("v_add_u32", ad[1], self.sT, self.vL16)
            for nt in range(4):
                for i in range(2): p("v_pk_add_f32", acc[0][nt][2 * i:2 * i + 2], acc[0][nt][2 * i:2 * i + 2], self.vResF[4 * nt + 2 * i:4 * nt + 2 * i + 2])
        self.weave_groups(self.cap(part1), [self.cap(g) for g in groups], start=2, every=2)
        p("s_waitcnt", "lgkmcnt(0)"); self.barrier()
        for nt in range(4): p("ds_read_b128", acc[1][nt], ad[1], mods="offset:%d" % (1024 * nt), lds=R)
        for nt in range(4):
            for i in range(2): p("v_pk_add_f32", acc[0][nt][2 * i:2 * i + 2], acc[0][nt][2 * i:2 * i + 2], acc[1][nt][2 * i:2 * i + 2])
            for i in range(2): p("v_cvt_pk_bf16_f32", xp[2 * nt + i], acc[0][nt][2 * i], acc[0][nt][2 * i + 1])
        self.vp.free(ad, acc[0], acc[1])
        return xp
    def unpack_resid(self, xp):
        for i in range(8):
            self.p("v_lshlrev_b32", self.vResF[2 * i], 16, xp[i]); self.p("v_and_b32", self.vResF[2 * i + 1], 0xffff0000, xp[i])
    def store_x(self, xp, xoff, stoff, token):
        p = self.p
        tmp = self.va(4, "tmp"); sv = self.va(1, "sv")
        sa_ = self.sa(1, "xa"); sb_ = self.sa(1, "xb")
        p("s_lshl_b32", self.sT, self.sOwn, 14); p("s_add_u32", sa_, self.sT, self.sLb); p("s_lshl_b32", self.sT1, self.sJJ, 11); p("s_add_u32", sa_, sa_, self.sT1); p("s_add_u32", sa_, sa_, xoff)
        def st1(m):
            p("buffer_store_dwordx4", xp[0:4], self.vL16, self.WS, sa_, mods=("offen " + m).strip(), token=token)
            p("buffer_store_dwordx4", xp[4:8], self.vL16, self.WS, sa_, mods=("offen offset:1024 " + m).strip(), token=token)
        self.dual_store(st1)
        p("s_lshl_b32", self.sT, self.sOwn, 10); p("s_add_u32", sb_, self.sT, self.sLb); p("s_lshl_b32", self.sT1, self.sJJ, 7); p("s_add_u32", sb_, sb_, self.sT1); p("s_add_u32", sb_, sb_, stoff)
        self.stats_of_tile(xp, sv, tmp)
        self.dual_store(lambda m: p("buffer_store_dword", sv, self.vStW, self.WS, sb_, mods=("offen " + m).strip(), token=token))
        self.vp.free(tmp); self.sp.free(sa_, sb_)
        return sv

    def p2(self):
        p, o = self.p, self.o
        sA = self.sa(1, "p2a")
        p("s_lshl_b32", self.sT, self.sI, 16); p("s_add_u32", sA, self.sT, self.sLb)
        p("s_lshl_b32", self.sT, self.sKH, 13); p("s_add_u32", sA, sA, self.sT); p("s_add_u32", sA, sA, L_O)
        hooks = {(3, 0, "pre"): [lambda: (p.need("B2b"), self.barrier())]}
        acc = self.gemm64(8, sA, 16384, b2_slot, o.d2, hooks)
        self.sp.free(sA)
        self.stamp("p2main")
        self.barrier()
        groups = []
        for s in o.p2tail_b3: groups += self.g_b3(s, "B3a")
        xp = self.reduce64(acc, L_SCR2, groups)
        sv = self.store_x(xp, L_XMID, L_STMID, "xst")
        p.need("xst"); self.barrier()
        self.vp.free(sv)
        self.stamp("p2done")
        return xp

    def csum3_load(self):
        p = self.p
        ad = self.va(1, "ad"); la = self.va(1, "la")
        self.c3 = [self.va(4, "c3") for _ in range(4)]
        p("v_lshlrev_b32", ad, 10, self.vM); p("v_lshlrev_b32", la, 4, self.vG); p("v_add_u32", ad, ad, la)
        p("s_lshl_b32", self.sT3, self.sJ, 14); p("s_add_u32", self.sT3, self.sT3, WS_W3CS)
        p("s_sub_u32", self.sT, self.sW, 1); p("s_lshl_b32", self.sT, self.sT, 6); p("s_add_u32", self.sT3, self.sT3, self.sT)
        for n in range(4):
            p("buffer_load_dwordx4", self.c3[n], ad, self.WS, self.sT3, mods="offen offset:%d sc1" % (192 * n))
        self.vp.free(ad, la)
    def csum3_finish(self):
        p = self.p
        v = self.c3; la = self.va(1, "la")
        for rot in (8, 4, 2, 1):
            for n in range(4):
                for r in range(4):
                    p("v_add_f32_dpp", v[n][r], v[n][r], v[n][r], mods="row_ror:%d row_mask:0xf bank_mask:0xf" % rot)
        p("v_lshlrev_b32", la, 4, self.vG)
        p("s_sub_u32", self.sT, self.sW, 1); p("s_lshl_b32", self.sT, self.sT, 6); p("s_add_u32", self.sT, self.sT, L_MISC); p("v_add_u32", la, self.sT, la)
        p("s_mov_b32", "exec_lo", 0x00010001); p("s_mov_b32", "exec_hi", 0x00010001)
        R = (L_CS3, L_CS3 + 704)
        for n in range(3): p("ds_write_b128", la, v[n], mods="offset:%d" % (L_CS3 - L_MISC + 192 * n), lds=R)
        def last(): p("ds_write_b128", la, v[3], mods="offset:%d" % (L_CS3 - L_MISC + 576), lds=R)
        self.if_wave(3, last, eq=False)
        p("s_mov_b64", "exec", -1)
        p("s_waitcnt", "lgkmcnt(0)")
        self.vp.free(la)

    def p3(self):
        p, o = self.p, self.o
        aX = [[self.aa(4, "aX") for s in range(16)] for t in range(2)]
        aB = [self.aa(4, "aB") for nt in range(11)]
        acc = [[self.va(4, "acc") for nt in range(11)] for t in range(2)]
        sA = [self.sa(1, "p3a") for _ in range(2)]
        p("s_lshl_b32", self.sT, self.sW, 15); p("s_add_u32", sA[0], self.sT, self.sLb); p("s_add_u32", sA[0], sA[0], L_XMID + 16384)
        p("s_add_u32", sA[1], sA[0], 16384)
        ld = self.a_loader(aX, sA, 16)
        D0 = o.d3
        for s in range(D0):
            for t in range(2): ld(s, t)
        st4 = [self.va(4, "st4", 1) for t in range(2)]
        sS = self.sa(1, "p3s")
        p("s_lshl_b32", self.sT, self.sW, 11); p("s_add_u32", sS, self.sT, self.sLb); p("s_add_u32", sS, sS, L_STMID + 1024)
        lb = self.va(2, "lb", 1)
        p("v_add_u32", lb[0], 65536, self.vL16); p("v_add_u32", lb[1], 131072, self.vL16)
        def rdB(s, nt, half):
            a = b3_slot(s) + nt * 1024
            p("ds_read_b128", aB[nt], (self.vL16, lb[0], lb[1])[a >> 16], mods="offset:%d" % (a & 0xffff), lds=(a, a + 1024))
        self.stamp("p3s")
        work = {s: [] for s in range(16)}; pre = {}
        nxt = D0
        for s in range(16):
            for _ in range(o.ramp3):
                if nxt < 16:
                    fa = lambda n=nxt: ld(n, 0); fb = lambda n=nxt: ld(n, 1)
                    fa.isA = fb.isA = True
                    work[s].append(fa); work[s].append(fb); nxt += 1
        sl = self.stats_loads(st4[0], sS, 0) + self.stats_loads(st4[1], sS, 1024)
        for n, f in enumerate(sl): work[7 + n // 4].append(f)
        for n, s3 in enumerate([11, 12, 13]): work[1 + n] += self.g_b3(s3, "B3c")
        pre[4] = lambda: (p.need("B3b"), self.barrier())
        for n, s3 in enumerate([14, 15]): work[4 + n] += self.g_b3(s3, "B3c")
        pre[8] = lambda: (p.need("B3c"), self.barrier())
        work[10].append(lambda: self.touch(self.vTc3))
        work[15].append(lambda: self.if_scalar("eq", self.sLayer, 0, lambda: self.touch(self.vTc4)))
        if "nodma3" in o.exp:
            keep = {}
            for s_ in work: work[s_] = [f for f in work[s_] if getattr(f, "isA", False)]
        if "noA3" in o.exp:
            for s_ in work: work[s_] = [f for f in work[s_] if not getattr(f, "isA", False)]
        fine = []
        if o.fine == 3:
            fine = [self.sp.alloc(2, 2, "fine") for _ in range(5)]
        ex = {}; prel = {s: [f] for s, f in pre.items()}
        for s in range(16):
            if o.fine == 3 and s in o.finesteps:
                prel.setdefault(s, []).insert(0, lambda s=s: p.raw("  s_memtime %s" % fine[o.finesteps.index(s)]))
            items = list(work[s]); n = len(items)
            for i, f in enumerate(items): ex.setdefault((s, min(10, (i * 11) // max(n, 1))), []).append(f)
        self.mainloop(16, 11, lambda s, nt, t: p(MFMA, acc[t][nt], aB[nt], aX[t][s], acc[t][nt] if s else 0), rdB, lambda nt: aB[nt], False, ex, prel, lambda s: (aX[0][s], aX[1][s]))
        if o.fine == 3:
            p("s_waitcnt", "lgkmcnt(0)")
            for n, r in enumerate(fine): p("v_writelane_b32", self.vStamp, r[0], 50 + n)
            self.sp.free(fine)
        self.sp.free(sA, sS)
        self.stamp("p3main")
        for t in range(2): self.ap.free(aX[t])
        self.ap.free(aB); self.vp.free(lb)
        self.barrier()
        tmp = self.va(1, "tmp"); st = [self.va(4, "st") for t in range(2)]
        ad = self.va(1, "ad"); hp = [self.va(4, "hp") for _ in range(2)]
        sH = [self.sa(1, "h") for _ in range(2)]; sHf = [self.sa(1, "hf") for _ in range(2)]
        cg = [self.va(4, "cg") for _ in range(2)]; cu = [self.va(4, "cu") for _ in range(2)]; hm = self.va(2, "hm")
        NEGM = "op_sel_hi:[1,0,1] neg_lo:[0,1,0] neg_hi:[0,1,0]"
        RC = (L_CS3, L_CS3 + 704)
        def head():
            p("v_lshlrev_b32", ad, 4, self.vG); p("v_add_u32", ad, L_MISC, ad)
            p("ds_read_b128", cg[0], ad, mods="offset:%d" % (L_CS3 - L_MISC), lds=RC); p("ds_read_b128", cu[0], ad, mods="offset:%d" % (L_CS3 - L_MISC + 64), lds=RC)
            for t in range(2):
                self.stats_finish(st4[t], st[t], tmp)
                p("v_mul_f32", st[t][3], tmp, st[t][1])
                p("v_mul_f32", st[t][2], self.sL2E[1], st[t][1])
            p("s_lshl_b32", self.sT, self.sW, 1); p("s_mul_i32", self.sT, self.sT, HSTEPS * 1024); p("s_add_u32", sH[0], self.sT, self.sLb); p("s_add_u32", sH[0], sH[0], L_H)
            p("s_add_u32", sH[1], sH[0], HSTEPS * 1024)
            p("s_mul_i32", self.sT, self.sI, 22); p("s_lshl_b32", self.sT1, self.sJJ, 1); p("s_add_u32", self.sT, self.sT, self.sT1); p("s_lshl_b32", self.sT, self.sT, 10)
            for t in range(2): p("s_add_u32", sHf[t], sH[t], self.sT)
        def glu2(i, cgi, cui, dsts):
            ss = []
            for t in range(2):
                q = Prog(); Gt, U = acc[t][2 * i], acc[t][2 * i + 1]; dst2 = dsts[t]
                for a in range(2): q("v_pk_fma_f32", Gt[2 * a:2 * a + 2], cgi[2 * a:2 * a + 2], st[t][0:2], Gt[2 * a:2 * a + 2], mods=NEGM)
                for a in range(2): q("v_pk_mul_f32", Gt[2 * a:2 * a + 2], Gt[2 * a:2 * a + 2], st[t][2:4], mods="op_sel_hi:[1,0]")
                for a in range(4): q("v_exp_f32", Gt[a], Gt[a])
                for a in range(2): q("v_pk_fma_f32", U[2 * a:2 * a + 2], cui[2 * a:2 * a + 2], st[t][0:2], U[2 * a:2 * a + 2], mods=NEGM)
                for a in range(2): q("v_pk_fma_f32", Gt[2 * a:2 * a + 2], Gt[2 * a:2 * a + 2], st[t][2:4], st[t][2:4], mods="op_sel:[0,1,1] op_sel_hi:[1,1,1]")
                for a in range(4): q("v_rcp_f32", Gt[a], Gt[a])
                for a in range(2): q("v_pk_mul_f32", U[2 * a:2 * a + 2], U[2 * a:2 * a + 2], Gt[2 * a:2 * a + 2])
                for a in range(2): q("v_cvt_pk_bf16_f32", dst2[a], U[2 * a], U[2 * a + 1])
                ss.append(q.take())
            for a, b in zip(*ss): p.ins.append(a); p.ins.append(b)
        def part(i):
            n = (i + 1) % 2; nx = i + 1
            if nx < 5:
                p("ds_read_b128", cg[n], ad, mods="offset:%d" % (L_CS3 - L_MISC + 128 * nx), lds=RC); p("ds_read_b128", cu[n], ad, mods="offset:%d" % (L_CS3 - L_MISC + 128 * nx + 64), lds=RC)
            else:
                p("ds_read_b128", cg[n], ad, mods="offset:%d" % (L_CS3 - L_MISC + 640), lds=RC)
            dsts = [hp[t][2 * (i & 1):2 * (i & 1) + 2] if i < 4 else hp[t][0:2] for t in range(2)]
            glu2(i, cg[i % 2], cu[i % 2], dsts)
        def stores(i):
            if i in (1, 3):
                def stf(m):
                    for t in range(2): p("buffer_store_dwordx4", hp[t], self.vL16, self.WS, sHf[t], mods=("offen offset:%d " % (1024 * (i >> 1)) + m).strip(), token="hst")
                self.dual_store(stf)
            elif i == 4:
                def stf(m):
                    for t in range(2): p("buffer_store_dwordx2", hp[t][0:2], self.vH4, self.WS, sH[t], mods=("offen " + m).strip(), token="hst")
                self.dual_store(stf)
        items = []
        for n in range(o.b4_tail_pairs): items += self.g_b4(n, "B4a")
        groups = [self.cap(f) for f in items]
        body = self.cap(lambda: (head(), part(0), part(1), stores(1), part(2), part(3)))
        self.weave_groups(body, groups, start=2, every=max(3, int(len(body) * 0.92) // len(groups)))
        stores(3); part(4); stores(4)
        cm = cg[1]
        for t in range(2):
            M = acc[t][10]
            for a in range(2): p("v_pk_fma_f32", M[2 * a:2 * a + 2], cm[2 * a:2 * a + 2], st[t][0:2], M[2 * a:2 * a + 2], mods=NEGM)
            for a in range(2): p("v_pk_mul_f32", M[2 * a:2 * a + 2], M[2 * a:2 * a + 2], st[t][0:2], mods="op_sel:[0,1] op_sel_hi:[1,1]")
        X, Y = acc[0][10], acc[1][10]
        for a in range(4): p("v_permlane32_swap_b32", X[a], Y[a])
        for a in range(4): p("v_mul_f32", X[a], self.sL2E[1], X[a])
        for a in range(4): p("v_exp_f32", X[a], X[a])
        for a in range(2): p("v_pk_add_f32", X[2 * a:2 * a + 2], X[2 * a:2 * a + 2], 1.0, mods="op_sel_hi:[1,0]")
        for a in range(4): p("v_rcp_f32", X[a], X[a])
        for a in range(2): p("v_pk_mul_f32", Y[2 * a:2 * a + 2], Y[2 * a:2 * a + 2], X[2 * a:2 * a + 2])
        for a in range(2): p("v_cvt_pk_bf16_f32", hm[a], Y[2 * a], Y[2 * a + 1])
        self.dual_store(lambda m: p("buffer_store_dwordx2", hm, self.vHm, self.WS, sH[0], mods=("offen " + m).strip(), token="hst"))
        p.need("hst", "B4a"); self.barrier()
        for t in range(2): self.vp.free(acc[t])
        self.vp.free(tmp, st, ad, hp, cg, cu, hm, st4[0], st4[1]); self.sp.free(sH, sHf)
        self.stamp("p3done")

    def p4(self):
        p, o = self.p, self.o
        sA = self.sa(1, "p4a")
        p("s_lshl_b32", self.sT, self.sI, 2); p("s_mul_i32", self.sT, self.sT, HSTEPS * 1024); p("s_add_u32", sA, self.sT, self.sLb)
        p("s_mul_i32", self.sT, self.sKH, 22 * 1024); p("s_add_u32", sA, sA, self.sT); p("s_add_u32", sA, sA, L_H)
        hooks = {(4, 0, "pre"): [self.barrier], (2 * o.b4_tail_pairs - 2, 0, "pre"): [lambda: (p.need("B4w"), self.barrier())], (17, 0, "pre"): [lambda: (p.need("B4b"), self.barrier())]}
        k = 0
        for i in range(19, 22):
            for kh in range(2):
                hooks.setdefault((4 + k, (1, 3)[k % 2]), []).append(lambda i=i, kh=kh: self.r_b4left(kh, i, "B4b")); k += 1
        self.sW1w = self.sa(1, "w1w"); p("s_add_u32", self.sW1w, self.sW1, self.sW3k)
        early = []
        for n in (0, 1): early += self.g_lin3(self.sW1w, n * 12 * KB, L_B1 + n * 12 * KB, "B1")
        early += self.g_lin3(self.sW1w, 5 * 12 * KB, L_B1 + 5 * 12 * KB, "B1")
        pos = [(17, 1), (17, 3), (18, 1), (18, 3), (19, 1), (19, 3), (20, 1), (20, 3), (21, 1)]
        if o.b1_early:
            for f, (s, nt) in zip(early, pos): hooks.setdefault((s, nt), []).append(lambda f=f: self.if_scalar("eq", self.sLayer, 0, f))
        acc = self.gemm64(22, sA, HSTEPS * 1024, b4_slot, o.d4, hooks)
        self.sp.free(sA)
        self.stamp("p4main")
        self.barrier()
        groups = []
        for n in (2, 3, 4):
            groups += [(lambda f=f: self.if_scalar("eq", self.sLayer, 0, f)) for f in self.g_lin3(self.sW1w, n * 12 * KB, L_B1 + n * 12 * KB, "B1")]
        if not o.b1_early:
            for n in (0, 1, 5):
                groups += [(lambda f=f: self.if_scalar("eq", self.sLayer, 0, f)) for f in self.g_lin3(self.sW1w, n * 12 * KB, L_B1 + n * 12 * KB, "B1")]
        xp = self.reduce64(acc, L_SCR4, groups)
        self.sp.free(self.sW1w)
        return xp

    def store_out(self, xp):
        p = self.p
        for b in range(2):
            p("v_permlane16_swap_b32", xp[4 * b], xp[4 * b + 2]); p("v_permlane16_swap_b32", xp[4 * b + 1], xp[4 * b + 3])
        ad = self.va(2, "ad", 1)
        p("s_lshl_b32", self.sT, self.sC, 7); p("s_lshl_b32", self.sT1, self.sOwn, 4); p("s_add_u32", self.sT, self.sT, self.sT1); p("s_sub_u32", self.sT, self.sT, 16)
        p("v_add_u32", ad[0], self.sT, self.vM); p("v_lshlrev_b32", ad[0], 10, ad[0])
        p("v_and_b32", ad[1], 1, self.vG); p("v_lshlrev_b32", ad[1], 5, ad[1]); p("v_add_u32", ad[0], ad[0], ad[1])
        p("v_lshrrev_b32", ad[1], 1, self.vG); p("v_lshlrev_b32", ad[1], 4, ad[1]); p("v_add_u32", ad[0], ad[0], ad[1])
        p("s_lshl_b32", self.sT, self.sJJ, 7)
        for b in range(2):
            p("buffer_store_dwordx4", xp[4 * b:4 * b + 4], ad[0], self.OUT, self.sT, mods="offen" + (" offset:%d" % (64 * b) if b else ""))
        self.vp.free(ad)
    def halo_export(self, xp, sv):
        p = self.p
        def f():
            p("s_add_u32", self.sT, self.sLb, CBSZ + L_XOUT); p("s_lshl_b32", self.sT1, self.sJJ, 11); p("s_add_u32", self.sT3, self.sT, self.sT1)
            p("buffer_store_dwordx4", xp[0:4], self.vL16, self.WS, self.sT3, mods="offen " + WT, token="xst")
            p("buffer_store_dwordx4", xp[4:8], self.vL16, self.WS, self.sT3, mods="offen offset:1024 " + WT, token="xst")
            p("s_add_u32", self.sT, self.sLb, CBSZ + L_STOUT); p("s_lshl_b32", self.sT1, self.sJJ, 7); p("s_add_u32", self.sT3, self.sT, self.sT1)
            p("buffer_store_dword", sv, self.vStW, self.WS, self.sT3, mods="offen " + WT, token="xst")
        self.if_scalar("eq", self.sOwn, 8, lambda: self.if_scalar("lt", self.sC, 15, f))
    def dump_stamps(self):
        if not self.o.stamps: return
        p = self.p
        def f():
            t = self.va(1, "t")
            p("s_lshl_b32", self.sT, S(2), 8); p("s_add_u32", self.sT, self.sT, WS_STAMP)
            p("v_lshlrev_b32", t, 2, self.vLane)
            p("buffer_store_dword", self.vStamp, t, self.WS, self.sT, mods="offen")
            self.vp.free(t)
        self.if_wave(0, f)
    def build(self):
        p, o = self.p, self.o
        self.prologue()
        self.startup()
        self.entry()
        p.label("L_layer")
        self.layer_bases()
        self.p1()
        def w12():
            items = []
            for i in range(4, 8):
                for kh in range(2): items += self.s_rows(self.WO, 32 * (8 * kh + i), b2_slot(i) + kh * 4096, "B2b")
            items += self.s_lin(self.sW3, 0, b3_slot(0), 11 * o.h12_b3, "B3a")
            self.split3(items)
            self.if_scalar("eq", self.sLayer, 0, self.csum3_load)
        self.handoff(2, w12)
        self.stamp("h12")
        o.p2tail_b3 = list(range(o.h12_b3, 6))
        xp = self.p2()
        def w23():
            items = self.s_lin(self.sW3, 6 * 11264, b3_slot(6), 22, "B3b") + self.s_lin(self.sW3, 8 * 11264, b3_slot(8), 33, "B3b")
            self.split3(items)
            self.unpack_resid(xp)
            self.if_scalar("eq", self.sLayer, 0, self.csum3_finish)
        self.handoff(3, w23, need=("B3a",), before_poll=lambda: self.unpack_resid(xp))
        self.vp.free(xp, self.c3)
        self.stamp("h23")
        self.p3()
        def w34():
            items = []
            for i in range(2 * o.b4_tail_pairs, 16):
                for kh in range(2): items += self.s_rows(self.WD, hspace_F(22 * kh + i, 0), b4_slot(i) + kh * 4096, "B4w")
            for i in range(16, 19):
                for kh in range(2): items.append(lambda i=i, kh=kh: self.s_b4left(kh, i, "B4w"))
            self.split3(items)
        self.handoff(4, w34)
        self.stamp("h34")
        xp = self.p4()
        lout = p.newlabel("Lout")
        p("s_cmp_eq_u32", self.sLayer, 1); p("s_cbranch_scc1", lout)
        sv = self.store_x(xp, L_XOUT, L_STOUT, "xst")
        self.halo_export(xp, sv)
        p.need("xst"); self.barrier()
        self.vp.free(sv)
        self.stamp("p4done")
        def hpub():
            sN = self.sa(1, "cn"); sA = self.sa(1, "a")
            p("s_add_u32", sN, self.sC, 1); self.flag_addr(sA, WS_FLAG_H, sN, self.sJJ); self.publish(5, sA, force_wt=True)
            self.sp.free(sN, sA)
        self.if_wave(0, lambda: self.if_scalar("eq", self.sI, 1, lambda: self.if_scalar("lt", self.sC, 15, hpub)))
        def w41():
            self.split3(self.s_lin(self.sW1, 72 * KB, L_B1 + 72 * KB, 24, "B1b"))
            self.unpack_resid(xp)
        self.handoff(5, w41, need=("B1",), before_poll=lambda: self.unpack_resid(xp))
        self.stamp("h41")
        p("s_mov_b32", self.sLayer, 1)
        p("s_branch", "L_layer")
        p.label(lout)
        self.store_out(xp)
        self.vp.free(xp)
        p.label("L_fin")
        self.stamp("end")
        self.dump_stamps()
        p.label("L_exit")
        p("s_endpgm")
        for blk in self.tail_blocks: p.ins.extend(blk)

def emit(opt):
    g = G(opt); g.build()
    ins = finalize(g.p.ins)
    errs = check_loop(ins, "L_layer")
    if errs:
        print("LOOP CHECK:", len(errs)); print("\n".join(errs[:20]))
    k = [n for n, i in enumerate(ins) if i.op == "label" and i.label == "L_layer"][0]
    e = [n for n, i in enumerate(ins) if i.kind == "branch" and i.target == "L_layer"][0]
    errs = check_lds(ins[:e] + ins[k:])
    if errs:
        print("LDS CHECK:", len(errs)); print("\n".join(errs[:30]))
    hdr = open(opt.header).read() if opt.header else ""
    txt = hdr
    txt += '.amdgcn_target "amdgcn-amd-amdhsa--gfx950"\n.text\n.globl %s\n.p2align 8\n.type %s,@function\n%s:\n' % (KNAME, KNAME, KNAME)
    txt += to_text(ins)
    txt += '''.section .rodata,"a"
.p2align 6
.amdhsa_kernel %s
  .amdhsa_next_free_vgpr 512
  .amdhsa_next_free_sgpr 102
  .amdhsa_accum_offset 256
  .amdhsa_group_segment_fixed_size 0
  .amdhsa_kernarg_size 80
  .amdhsa_user_sgpr_count 2
  .amdhsa_user_sgpr_kernarg_segment_ptr 1
  .amdhsa_system_sgpr_workgroup_id_x 1
  .amdhsa_float_denorm_mode_32 3
.end_amdhsa_kernel
''' % KNAME
    return txt, g, ins

def args():
    ap = argparse.ArgumentParser()
    ap.add_argument("-o", default="out.s")
    ap.add_argument("--stamps", action="store_true"); ap.add_argument("--slow", action="store_true")
    ap.add_argument("--header", default="header.txt")
    ap.add_argument("--d1", type=int, default=4); ap.add_argument("--d2", type=int, default=5); ap.add_argument("--d3", type=int, default=2); ap.add_argument("--d4", type=int, default=6)
    ap.add_argument("--ramp3", type=int, default=2)
    ap.add_argument("--h12_b3", type=int, default=3)
    ap.add_argument("--b1_early", type=int, default=1); ap.add_argument("--b4_tail_pairs", type=int, default=6)
    ap.add_argument("--touch", type=int, default=1); ap.add_argument("--exp", default="")
    ap.add_argument("--fine", type=int, default=0); ap.add_argument("--finesteps", type=lambda x: [int(v) for v in x.split(",")], default=[0, 4, 8, 11, 14])
    return ap
if __name__ == "__main__":
    opt = args().parse_args()
    txt, g, ins = emit(opt)
    open(opt.o, "w").write(txt)
    nb = sum(1 for i in ins if i.op not in ("label", "raw", "need"))
    print("instructions:", nb, "vgpr high", g.vp.high, "agpr high", g.ap.high, "sgpr high", g.sp.high)
    if opt.stamps: open(opt.o + ".stamps", "w").write("\n".join(g.stamp_names))
```

```python
import sys, argparse, struct
from collections import deque
from fw import *
from layout import *

KNAME = "interleave_layers__sliding_local_dilated__glu_gated_glu__prompt_kernel"
NEG = 0xF149F2CA
LOG2E = 1.4426950408889634
def f2u(x): return struct.unpack("<I", struct.pack("<f", x))[0]
MFMA = "v_mfma_f32_16x16x32_bf16"
MFMA16 = "v_mfma_f32_16x16x16_bf16"
WT = "sc0 sc1"
SPIN_MAX = 400000
OOB = 0x7ffffff0
L_B1 = 0
L_HA = 96 * KB
L_EX = 112 * KB
L_RG = 98304; L_RU = 98304 + 6144
def b2_slot(i): return (124 * KB + i * 8192) if i < 4 else (i - 4) * 8192
def b3_slot(s):
    if s < 8: return (33 + 11 * s) * KB
    if s < 11: return 11 * (s - 8) * KB
    if s < 14: return (121 + 11 * (s - 11)) * KB
    return (33 + 11 * (s - 14)) * KB
def b4_slot(i):
    if i < 4: return (72 + 8 * i) * KB
    if i < 6: return (56 + 8 * (i - 4)) * KB
    if i < 8: return (104 + 8 * (i - 6)) * KB
    if i < 12: return 8 * (i - 8) * KB
    if i < 16: return (124 + 8 * (i - 12)) * KB
    if i < 19: return (32 + 8 * (i - 16)) * KB
    return b4_slot(i - 19)
L_SCR2 = 0
L_SCR4 = 104 * KB

class Base:
    def __init__(self, opt):
        self.o = opt
        self.p = Prog()
        self.vp = Pool("v", 1, 256)
        self.ap = Pool("a", 0, 256)
        self.sp = Pool("s", 44, 102)
        self.stamp_names = []
        self.tail_blocks = []
    def va(self, n=1, name="?", align=None): return self.vp.alloc(n, align, name)
    def aa(self, n=1, name="?"): return self.ap.alloc(n, 2 if n < 4 else 4, name)
    def sa(self, n=1, name="?"): return self.sp.alloc(n, None, name)
    def pv(self, name, n=1, align=None):
        if not hasattr(self, name): setattr(self, name, self.va(n, name, align))
        return getattr(self, name)
    def ps(self, name, n=1):
        if not hasattr(self, name): setattr(self, name, self.sp.alloc(n, 2 if n == 2 else None, name))
        return getattr(self, name)
    def cap(self, fn):
        old = self.p.ins; self.p.ins = []
        fn()
        got = self.p.ins; self.p.ins = old
        return got
    def weave(self, a, b, ra=1, rb=1):
        i = j = 0
        def isx(x): return x.op == "s_mov_b64" and str(x.ops[0]) == "exec"
        while i < len(a) or j < len(b):
            n = 0
            while i < len(a) and n < ra:
                x = a[i]; self.p.ins.append(x); i += 1; n += 1
                if isx(x) and x.ops[1] != -1:
                    while True:
                        x = a[i]; self.p.ins.append(x); i += 1
                        if isx(x) and x.ops[1] == -1: break
            self.p.ins.extend(b[j:j + rb]); j += rb
    def weave_groups(self, main, groups, start=0, every=8):
        out = []; k = 0; nxt = start; masked = False
        for n, ins in enumerate(main):
            if k < len(groups) and n >= nxt and not masked and not (out and out[-1].op.startswith("s_cmp")) and ins.kind != "branch":
                out.extend(groups[k]); k += 1; nxt = n + every
            if ins.op == "s_mov_b64" and str(ins.ops[0]) == "exec": masked = ins.ops[1] != -1
            out.append(ins)
        for g in groups[k:]: out.extend(g)
        self.p.ins.extend(out)
    def stamp(self, name):
        if not self.o.stamps: return
        if self.o.minstamps and name not in ("start", "end"): return
        p = self.p
        self.stamp_names.append(name)
        p("s_memrealtime", self.sT2)
        p("s_waitcnt", "lgkmcnt(0)")
        p("s_mov_b32", "m0", self.sStampIdx); p("s_nop", 3); p("v_writelane_b32", self.vStamp, self.sT2[0], "m0")
        p("s_add_u32", self.sStampIdx, self.sStampIdx, 1)
        if name in ("start", "end", "p3s", "p3main"):
            p("s_memtime", self.sT2); p("s_waitcnt", "lgkmcnt(0)")
            p("v_writelane_b32", self.vStamp, self.sT2[0], {"start": 60, "end": 61, "p3s": 62, "p3main": 63}[name])
    def fs(self, sec, n):
        if self.o.fine != sec: return
        if not hasattr(self, "_fine"): self._fine = [self.sp.alloc(2, 2, "fine") for _ in range(6)]
        self.p.raw("  s_memtime %s" % self._fine[n])
    def fs_dump(self, sec):
        if self.o.fine != sec: return
        self.p("s_waitcnt", "lgkmcnt(0)")
        for n, r in enumerate(self._fine): self.p("v_writelane_b32", self.vStamp, r[0], 50 + n)
    def srd(self, dst, lo, nbytes):
        p = self.p
        p("s_mov_b32", dst[0], lo[0]); p("s_and_b32", dst[1], lo[1], 0xffff)
        p("s_mov_b32", dst[2], nbytes); p("s_mov_b32", dst[3], 0x20000)
    def if_wave(self, w, fn, eq=True):
        p = self.p; l = p.newlabel("Lw")
        p("s_cmp_lg_u32" if eq else "s_cmp_eq_u32", self.sW, w)
        p("s_cbranch_scc1", l); fn(); p.label(l)
    def by_wave(self, blocks):
        p = self.p; end = p.newlabel("Lwe"); items = list(blocks.items())
        for n, (w, fn) in enumerate(items):
            nxt = p.newlabel("Lw")
            p("s_cmp_lg_u32", self.sW, w); p("s_cbranch_scc1", nxt)
            fn()
            if n != len(items) - 1: p("s_branch", end)
            p.label(nxt)
        p.label(end)
    def if_scalar(self, cmp, a, b, fn):
        p = self.p; l = p.newlabel("Li")
        inv = {"eq": "lg", "lg": "eq", "lt": "ge", "ge": "lt", "le": "gt", "gt": "le"}[cmp]
        p("s_cmp_%s_u32" % inv, a, b); p("s_cbranch_scc1", l); fn(); p.label(l)
    def dual_store(self, emit):
        p = self.p; slow = p.newlabel("Lsl"); back = p.newlabel("Lsb")
        p("s_cmp_eq_u32", self.sFast, 0); p("s_cbranch_scc1", slow)
        emit(""); p.label(back)
        blk = self.cap(lambda: (p.label(slow), emit(WT), p("s_branch", back)))
        self.tail_blocks.append(blk)
    def barrier(self): self.p("s_barrier")

    def prologue(self):
        p = self.p
        self.X0, self.WQKV, self.WO, self.WG, self.WU, self.WD, self.OUT, self.WS, self.DBG = [S(8 + 4 * i, 4) for i in range(9)]
        self.sT3 = S(3); self.sT = S(4); self.sT1 = S(5); self.sT2 = S(6, 2)
        p("s_cmp_ge_u32", S(2), 256)
        p("s_cbranch_scc1", "L_exit")
        ka = self.sp.alloc(16, 4, "ka"); kb = self.sp.alloc(4, 4, "kb")
        p("s_load_dwordx16", ka, S(0, 2), 0)
        p("s_load_dwordx4", kb, S(0, 2), 64)
        for n in "C J W XCC Nonce Fast Layer I JJ MH KH StampIdx Cb Own Spin Dm W1k W3k W4k".split():
            setattr(self, "s" + n, self.sp.alloc(1, None, n))
        self.vLane = self.va(1, "lane"); self.vM = self.va(1, "m"); self.vG = self.va(1, "g")
        self.vL16 = self.va(1, "l16"); self.vOnes = self.va(4, "ones"); self.vZero = self.va(1, "zero")
        t = self.va(1, "t")
        p("v_lshrrev_b32", t, 6, V(0))
        p("v_and_b32", self.vLane, 63, V(0))
        p("v_readfirstlane_b32", self.sW, t)
        p("v_and_b32", self.vM, 15, self.vLane)
        p("v_lshrrev_b32", self.vG, 4, self.vLane)
        p("v_lshlrev_b32", self.vL16, 4, self.vLane)
        p("v_mov_b32", self.vZero, 0)
        for i in range(4): p("v_mov_b32", self.vOnes[i], 0x3F803F80)
        p("s_getreg_b32", self.sXCC, "hwreg(HW_REG_XCC_ID, 0, 4)")
        p("s_and_b32", self.sT, S(2), 7); p("s_lshl_b32", self.sT, self.sT, 1)
        p("s_lshr_b32", self.sT1, S(2), 7); p("s_add_u32", self.sC, self.sT, self.sT1)
        p("s_lshr_b32", self.sJ, S(2), 3); p("s_and_b32", self.sJ, self.sJ, 15)
        if self.o.spread:
            p("s_lshr_b32", self.sC, S(2), 4); p("s_and_b32", self.sJ, S(2), 15)
        p("s_lshr_b32", self.sI, self.sJ, 3); p("s_and_b32", self.sJJ, self.sJ, 7)
        p("s_lshr_b32", self.sMH, self.sW, 1); p("s_and_b32", self.sKH, self.sW, 1)
        p("s_lshl_b32", self.sW1k, self.sW, 10); p("s_mul_i32", self.sW3k, self.sW, 3072); p("s_lshl_b32", self.sW4k, self.sW, 12)
        p("s_mov_b32", self.sLayer, 0); p("s_mov_b32", self.sFast, 0); p("s_mov_b32", self.sStampIdx, 0)
        p("s_lshl_b32", self.sCb, self.sC, 21); p("s_add_u32", self.sCb, self.sCb, CB0)
        p("s_lshl_b32", self.sT, self.sI, 2); p("s_lshl_b32", self.sT1, self.sMH, 1)
        p("s_add_u32", self.sT, self.sT, self.sT1); p("s_add_u32", self.sT, self.sT, self.sKH)
        p("s_add_u32", self.sOwn, self.sT, 1)
        if self.o.stamps:
            self.vStamp = self.va(1, "stamp"); p("v_mov_b32", self.vStamp, 0)
        p("s_waitcnt", "lgkmcnt(0)")
        self.srd(self.X0, ka[0:2], 2048 * 1024); self.srd(self.WQKV, ka[2:4], 512 * 3072)
        self.srd(self.DBG, kb[0:2], 256); self.srd(self.WS, kb[2:4], WS_END)
        self.srd(self.WG, ka[8:10], 512 * 2752); self.srd(self.WU, ka[10:12], 512 * 2752)
        self.srd(self.WO, ka[4:6], 512 * 1024); self.srd(self.WD, ka[12:14], 1376 * 1024)
        self.srd(self.OUT, ka[14:16], 2048 * 1024)
        self.sp.free(ka, kb); self.vp.free(t)
        if self.o.codepf:
            pc = self.sp.alloc(2, 2, "pc"); va_ = self.va(2, "pfa"); vd = self.va(1, "pfd")
            p.label("L_pcbase")
            p("s_getpc_b64", pc)
            p("s_lshr_b32", self.sT, S(2), 3); p("s_and_b32", self.sT, self.sT, 31); p("s_mul_i32", self.sT, self.sT, 16 * 128)
            p("v_and_b32", va_[0], 15, self.vLane); p("v_lshlrev_b32", va_[0], 7, va_[0]); p("v_add_u32", va_[0], self.sT, va_[0])
            p("v_min_u32", va_[0], self.o.codepf, va_[0])
            self.if_wave(2, lambda: p("global_load_dword", vd, va_[0], pc, token="codepf"))
            self.sp.free(pc); self.vp.free(va_); self._pfd = vd
        self.stamp("start")
        def wr():
            t2 = self.va(1, "t2")
            p("s_memrealtime", self.sT2); p("s_waitcnt", "lgkmcnt(0)")
            p("s_or_b32", self.sT, self.sT2[0], 1)
            p("v_mov_b32", t2, self.sT)
            p("buffer_store_dword", t2, self.vZero, self.DBG, 0, mods="offen " + WT)
            self.vp.free(t2)
        p("s_or_b32", self.sT, S(2), self.sW)
        self.if_scalar("eq", self.sT, 0, wr)

    def const_b1(self):
        p = self.p
        t = self.va(4, "t")
        self.pv("vB1", 3, 1)
        p("s_lshl_b32", self.sT, self.sJ, 6)
        if "samew" in self.o.exp: p("s_mov_b32", self.sT, 0)
        for u in range(3):
            p("v_add_u32", t[0], 64 * u, self.vLane)
            p("v_mul_u32_u24", t[1], 0x5556, t[0]); p("v_lshrrev_b32", t[1], 18, t[1])
            p("v_mul_u32_u24", t[2], 12, t[1]); p("v_sub_u32", t[2], t[0], t[2])
            p("v_lshrrev_b32", t[3], 2, t[1]); p("v_and_b32", t[3], 1, t[3]); p("v_lshlrev_b32", t[3], 1, t[3])
            p("v_xor_b32", t[2], t[2], t[3])
            p("v_mul_u32_u24", t[1], 3072, t[1])
            p("v_lshrrev_b32", t[3], 2, t[2]); p("v_lshlrev_b32", t[3], 10, t[3]); p("v_add_u32", t[1], t[1], t[3])
            p("v_and_b32", t[2], 3, t[2]); p("v_lshlrev_b32", t[2], 4, t[2]); p("v_add_u32", t[1], t[1], t[2])
            p("v_add_u32", t[1], self.sT, t[1])
            if u: p("v_subrev_u32", self.vB1[u], 1024 * u, t[1])
            else: p("v_mov_b32", self.vB1[u], t[1])
        self.vp.free(t)
    def const_st(self):
        p = self.p; t = self.va(2, "t", 1)
        self.pv("vSt"); self.pv("vStW")
        p("v_lshrrev_b32", t[1], 1, self.vG); p("v_lshlrev_b32", t[1], 6, t[1])
        p("v_lshlrev_b32", self.vSt, 2, self.vM); p("v_add_u32", self.vSt, self.vSt, t[1])
        p("v_and_b32", t[0], 1, self.vG); p("v_cmp_eq_u32", "vcc", 0, t[0])
        p("v_mov_b32", t[1], OOB); p("v_cndmask_b32", self.vStW, t[1], self.vSt, "vcc")
        p("v_lshlrev_b32", t[0], 7, t[0]); p("v_add_u32", self.vSt, self.vSt, t[0])
        self.vp.free(t)
    def consts(self):
        p = self.p
        t = self.va(4, "t")
        self.pv("vB2", 4, 1)
        p("v_lshrrev_b32", t[0], 3, self.vLane)
        p("v_lshrrev_b32", t[1], 1, t[0]); p("v_and_b32", t[1], 3, t[1]); p("v_lshlrev_b32", t[1], 1, t[1])
        p("v_and_b32", t[2], 7, self.vLane); p("v_xor_b32", t[2], t[2], t[1]); p("v_lshlrev_b32", t[2], 4, t[2])
        p("v_lshlrev_b32", t[0], 10, t[0]); p("v_add_u32", t[0], t[0], t[2])
        p("s_lshl_b32", self.sT, self.sJJ, 7)
        if "samew" in self.o.exp: p("s_mov_b32", self.sT, 0)
        p("v_add_u32", self.vB2[0], self.sT, t[0])
        for q in range(1, 4): p("v_add_u32", self.vB2[q], 7168 * q, self.vB2[0])
        self.pv("vRho"); self.pv("vIn")
        vr = t[0]
        p("v_lshrrev_b32", vr, 2, self.vM)
        p("v_and_b32", t[1], 3, self.vLane); p("v_lshlrev_b32", self.vIn, 3, t[1])
        p("v_lshlrev_b32", self.vRho, 2, self.vG); p("v_add_u32", self.vRho, self.vRho, vr)
        self.pv("vT1", 4, 1); self.pv("vT1b")
        p("v_mul_u32_u24", self.vT1b, 192, self.vRho); p("v_add_u32", self.vT1b, self.vT1b, self.vIn)
        p("v_and_b32", t[1], 1, self.vG); p("v_lshlrev_b32", t[1], 5, t[1])
        p("v_add_u32", self.vT1[0], self.vT1b, t[1]); p("v_sub_u32", self.vT1[2], self.vT1b, t[1])
        p("v_add_u32", self.vT1[1], 49152, self.vT1[0]); p("v_add_u32", self.vT1[3], 49152, self.vT1[2])
        self.pv("vT2", 4, 1)
        p("v_and_b32", t[1], 1, self.vG); p("v_lshlrev_b32", t[1], 1, t[1]); p("v_lshrrev_b32", t[2], 1, vr)
        p("v_add_u32", t[1], t[1], t[2])
        p("v_lshlrev_b32", t[2], 7, self.vRho); p("v_add_u32", t[2], t[2], self.vIn)
        p("s_lshl_b32", self.sT, self.sKH, 12); p("v_add_u32", t[2], self.sT, t[2])
        for nt in range(4):
            p("v_xor_b32", t[3], nt, t[1]); p("v_lshlrev_b32", t[3], 5, t[3]); p("v_add_u32", self.vT2[nt], t[2], t[3])
        self.pv("vBiasP", 4); self.pv("vBiasC", 4); self.pv("vBiasP0", 4)
        p("v_mov_b32", t[2], NEG)
        for r in range(4):
            p("v_lshlrev_b32", t[0], 2, self.vG); p("v_add_u32", t[0], r, t[0])
            p("v_sub_u32", t[1], self.vM, t[0]); p("v_and_b32", t[1], 0x80000001, t[1])
            p("v_cmp_eq_u32", "vcc", 0, t[1]); p("v_cndmask_b32", self.vBiasC[r], t[2], self.vZero, "vcc")
            p("v_cmp_eq_u32", "vcc", 0x80000000, t[1]); p("v_cndmask_b32", self.vBiasP[r], t[2], self.vZero, "vcc")
        p("s_or_b32", self.sT, self.sC, self.sW); p("s_cmp_eq_u32", self.sT, 0)
        p("s_cselect_b64", "vcc", -1, 0)
        for r in range(4): p("v_cndmask_b32", self.vBiasP0[r], self.vBiasP[r], t[2], "vcc")
        self.pv("vResF", 16)
        self.vp.free(t)
        if not hasattr(self, "sLeft"): self.sLeft = [self.sa(1, "left") for _ in range(6)]
        for n in range(6):
            p("s_add_u32", self.sT, self.sW, 4 * n); p("s_mul_i32", self.sT1, self.sT, 43); p("s_lshr_b32", self.sT1, self.sT1, 7)
            p("s_mul_i32", self.sT3, self.sT1, 3); p("s_sub_u32", self.sT, self.sT, self.sT3)
            p("s_mul_i32", self.sT1, self.sT1, 88); p("s_lshl_b32", self.sT, self.sT, 3); p("s_add_u32", self.sT, self.sT, self.sT1)
            p("s_add_u32", self.sT, self.sT, 64); p("s_lshl_b32", self.sLeft[n], self.sT, 10)
        self.ps("sW3"); p("s_mul_i32", self.sW3, self.sJ, W3SZ); p("s_add_u32", self.sW3, self.sW3, WS_W3)
        self.ps("sW1"); p("s_mul_i32", self.sW1, self.sJ, 96 * KB); p("s_add_u32", self.sW1, self.sW1, WS_W1)
        self.ps("sU3"); p("s_mul_i32", self.sU3, self.sW, 3); p("s_min_u32", self.sU3, self.sU3, 8); p("s_lshl_b32", self.sU3, self.sU3, 10)
        self.ps("sW3w"); p("s_add_u32", self.sW3w, self.sW3, self.sU3)
        self.ps("sPairL"); p("s_lshl_b32", self.sPairL, self.sMH, 13); p("s_lshl_b32", self.sT, self.sKH, 12); p("s_add_u32", self.sPairL, self.sPairL, self.sT)
        self.ps("sPairO"); self.ps("sPairD")
        p("s_lshl_b32", self.sT, self.sMH, 15); p("s_lshl_b32", self.sPairO, self.sKH, 18); p("s_add_u32", self.sPairO, self.sPairO, self.sT)
        p("s_mul_i32", self.sPairD, self.sKH, 704 * 1024); p("s_add_u32", self.sPairD, self.sPairD, self.sT)
        self.ps("sL2E", 2); p("s_mov_b32", self.sL2E[0], f2u(LOG2E)); p("s_mov_b32", self.sL2E[1], f2u(-LOG2E))
    def h_offsets(self):
        p = self.p
        self.pv("vH4"); self.pv("vHm")
        t = self.va(4, "t")
        p("s_mul_i32", self.sT3, self.sI, 22); p("s_add_u32", self.sT3, self.sT3, 16)
        def pos(dst, lam):
            p("v_lshrrev_b32", t[1], 2, lam); p("v_add_u32", t[1], self.sT3, t[1]); p("v_lshlrev_b32", t[1], 10, t[1])
            p("v_and_b32", t[2], 1, lam); p("v_lshlrev_b32", t[2], 1, t[2]); p("v_and_b32", t[3], 1, self.vG)
            p("v_add_u32", t[2], t[2], t[3]); p("v_lshlrev_b32", t[2], 4, t[2]); p("v_add_u32", t[2], t[2], self.vM)
            p("v_lshlrev_b32", t[2], 4, t[2]); p("v_add_u32", t[1], t[1], t[2])
            p("v_and_b32", t[2], 2, lam); p("v_lshlrev_b32", t[2], 2, t[2]); p("v_add_u32", dst, t[1], t[2])
        p("s_mul_i32", self.sT, self.sJJ, 3)
        p("v_lshrrev_b32", t[0], 1, self.vG); p("v_add_u32", t[0], self.sT, t[0]); pos(self.vH4, t[0])
        p("s_add_u32", self.sT, self.sT, 2); p("v_mov_b32", t[0], self.sT); pos(self.vHm, t[0])
        p("v_lshrrev_b32", t[0], 5, self.vLane); p("v_mul_u32_u24", t[0], HSTEPS * 1024, t[0]); p("v_add_u32", self.vHm, self.vHm, t[0])
        self.vp.free(t)
    def touch_tables(self):
        p = self.p
        self.pv("vTc1"); self.pv("vTc3")
        rel = self.va(1, "rel"); a = self.va(1, "a"); b = self.va(1, "b")
        def part(dst, lo, n, emit):
            p("v_subrev_u32", rel, lo, self.vLane); emit(a); p("v_cmp_gt_u32", "vcc", n, rel); p("v_cndmask_b32", dst, dst, a, "vcc")
        def lin(sBase):
            def e(d): p("v_lshlrev_b32", d, 7, rel); p("v_add_u32", d, sBase, d)
            return e
        sa_ = self.sa(1, "ta"); sb_ = self.sa(1, "tb"); sc = self.sa(1, "tc"); sd = self.sa(1, "td")
        p("v_mov_b32", self.vTc1, OOB)
        p("s_lshl_b32", sc, self.sW, 15); p("s_lshl_b32", self.sT, self.sJ, 10); p("s_add_u32", sc, sc, self.sT); p("s_add_u32", sc, sc, L_O)
        def eo(d):
            p("v_lshrrev_b32", d, 3, rel); p("v_lshlrev_b32", d, 14, d); p("v_and_b32", b, 7, rel); p("v_lshlrev_b32", b, 7, b); p("v_add3_u32", d, d, b, sc)
        part(self.vTc1, 0, 16, eo)
        p("s_lshl_b32", sc, self.sW, 1); p("s_mul_i32", sc, sc, HSTEPS * 1024); p("s_mul_i32", self.sT, self.sI, 22 * 1024); p("s_add_u32", sc, sc, self.sT); p("s_add_u32", sc, sc, L_H)
        p("s_lshl_b32", self.sT, self.sJJ, 11); p("s_add_u32", sd, sc, self.sT)
        p("v_mov_b32", self.vTc3, OOB)
        def full(d):
            p("v_lshrrev_b32", d, 4, rel); p("v_mul_u32_u24", d, HSTEPS * 1024, d); p("v_and_b32", b, 15, rel); p("v_lshlrev_b32", b, 7, b); p("v_add3_u32", d, d, b, sd)
        part(self.vTc3, 0, 32, full)
        p("s_mul_i32", sa_, self.sJJ, 3)
        def left(d):
            p("v_lshrrev_b32", d, 3, rel); p("v_and_b32", d, 1, d); p("v_lshlrev_b32", d, 1, d); p("v_add_u32", d, sa_, d)
            p("v_lshrrev_b32", d, 2, d); p("v_add_u32", d, 16, d); p("v_lshlrev_b32", d, 10, d)
            p("v_lshrrev_b32", b, 4, rel); p("v_and_b32", b, 1, b); p("v_mul_u32_u24", b, HSTEPS * 1024, b); p("v_add_u32", d, d, b)
            p("v_and_b32", b, 7, rel); p("v_lshlrev_b32", b, 7, b); p("v_add3_u32", d, d, b, sc)
        part(self.vTc3, 32, 32, left)
        self.vp.free(rel, a, b); self.sp.free(sa_, sb_, sc, sd)
        self.pv("vDum")
    def touch(self, tab):
        if self.o.touch: self.p("buffer_load_dword", self.vDum, tab, self.WS, self.sLb, mods="offen sc1")

    def dma(self, srd, voff, soff, off, token, lds, extra=""):
        m = "offen" + (" offset:%d" % off if off else "") + (" " + extra if extra else "") + " lds"
        self.p("buffer_load_dwordx4", voff, srd, soff, mods=m, token=token, lds=lds)
    def g_b3(self, s, token):
        p = self.p; lds = b3_slot(s); R = (lds, lds + 11 * KB)
        def f(u):
            if u == 0: p("s_add_u32", "m0", self.sU3, lds); p("s_add_u32", self.sDm, self.sW3w, s * 11264)
            self.dma(self.WS, self.vL16, self.sDm, 1024 * u, token, R, "sc1")
        return [(lambda u=u: f(u)) for u in range(3)]
    def g_pair(self, srd, sRow, rowoff, lds, token):
        p = self.p; R = (lds, lds + 16384)
        def f(q):
            if q == 0: p("s_add_u32", "m0", self.sPairL, lds); p("s_add_u32", self.sDm, sRow, rowoff)
            self.dma(srd, self.vB2[q], self.sDm, 1024 * q, token, R)
        return [(lambda q=q: f(q)) for q in range(4)]
    def g_b2(self, n, token): return self.g_pair(self.WO, self.sPairO, n * 64 * 1024, b2_slot(2 * n), token)
    def g_b4(self, n, token): return self.g_pair(self.WD, self.sPairD, n * 88 * 1024, b4_slot(2 * n), token)
    def r_b4left(self, kh, i, token):
        p = self.p; lds = b4_slot(i) + kh * 4096
        p("s_add_u32", "m0", self.sW1k, lds); p("s_add_u32", self.sDm, self.sLeft[i - 16], 704 * kh * 1024)
        self.dma(self.WD, self.vB2[0], self.sDm, 0, token, (lds, lds + 4096))
    def s_b4left(self, kh, i, token):
        p = self.p; lds = b4_slot(i) + kh * 4096
        p("s_mov_b32", "m0", lds)
        for q in range(4):
            p("s_mov_b32", self.sDm, hspace_F(22 * kh + i, 8 * q) * 1024 - 1024 * q)
            self.dma(self.WD, self.vB2[0], self.sDm, 1024 * q, token, (lds + q * KB, lds + (q + 1) * KB))
    def g_lin4(self, sGw4, goff, lds, token):
        p = self.p; R = (lds, lds + 16 * KB)
        def f(u):
            if u == 0: p("s_add_u32", "m0", self.sW4k, lds); p("s_add_u32", self.sDm, sGw4, goff)
            self.dma(self.WS, self.vL16, self.sDm, 1024 * u, token, R, "sc1")
        return [(lambda u=u: f(u)) for u in range(4)]
    def g_lin3(self, sGw3, goff, lds, token):
        p = self.p; R = (lds, lds + 12 * KB)
        def f(u):
            if u == 0: p("s_add_u32", "m0", self.sW3k, lds); p("s_add_u32", self.sDm, sGw3, goff)
            self.dma(self.WS, self.vL16, self.sDm, 1024 * u, token, R, "sc1")
        return [(lambda u=u: f(u)) for u in range(3)]
    def s_lin(self, sG, goff, lds, n, token):
        p = self.p; out = []
        for i0 in range(0, n, 4):
            def f(i0=i0):
                p("s_mov_b32", "m0", lds + i0 * KB); p("s_add_u32", self.sDm, sG, goff + i0 * KB)
                for u in range(min(4, n - i0)):
                    self.dma(self.WS, self.vL16, self.sDm, 1024 * u, token, (lds + (i0 + u) * KB, lds + (i0 + u + 1) * KB), "sc1")
            out.append(f)
        return out
    def s_rows(self, srd, row0, lds, token):
        p = self.p
        def f():
            p("s_mov_b32", "m0", lds); p("s_mov_b32", self.sDm, row0 * 1024)
            for q in range(4): self.dma(srd, self.vB2[q], self.sDm, 1024 * q, token, (lds + q * KB, lds + (q + 1) * KB))
        return [f]
    def split3(self, items):
        self.by_wave({w: (lambda w=w: [f() for f in items[w - 1::3]]) for w in (1, 2, 3)})

    def publish(self, phase, addr_s, force_wt=False):
        p = self.p
        t = self.va(2, "pub", 1)
        p("v_mov_b32", t[0], addr_s)
        if isinstance(phase, int): p("s_add_u32", self.sT, self.sNonce, phase * 16)
        else:
            p("s_lshl_b32", self.sT, phase, 4); p("s_add_u32", self.sT, self.sT, self.sNonce)
        p("s_add_u32", self.sT, self.sT, self.sXCC)
        p("v_mov_b32", t[1], self.sT)
        p("s_mov_b64", "exec", 1)
        if force_wt: p("buffer_store_dword", t[1], t[0], self.WS, 0, mods="offen " + WT)
        else: self.dual_store(lambda m: p("buffer_store_dword", t[1], t[0], self.WS, 0, mods=("offen " + m).strip()))
        p("s_mov_b64", "exec", -1)
        self.vp.free(t)
    def flag_addr(self, dst, base, sIdx, sSub):
        p = self.p
        p("s_lshl_b32", dst, sIdx, 8); p("s_lshl_b32", self.sT1, sSub, 2); p("s_add_u32", dst, dst, self.sT1); p("s_add_u32", dst, dst, base)
    def poll_loop(self, vaddr, vval, sThr, sLim, first_loaded=False, force_true=None, keep=None):
        p = self.p
        l = p.newlabel("Lpoll"); ok = p.newlabel("Lok"); t = self.va(1, "pt")
        def test():
            p("v_subrev_u32", t, sThr, vval)
            p("v_cmp_gt_u32", "vcc", sLim, t)
            if force_true is not None: p("s_or_b64", "vcc", "vcc", force_true)
            p("s_cmp_eq_u64", "vcc", "exec")
        if first_loaded:
            test(); p("s_cbranch_scc1", ok)
        p("s_mov_b32", self.sSpin, 0)
        p.label(l)
        p("s_add_u32", self.sSpin, self.sSpin, 1); p("s_cmp_gt_u32", self.sSpin, SPIN_MAX); p("s_cbranch_scc1", "L_exit")
        p("buffer_load_dword", vval, vaddr, self.WS, 0, mods="offen sc1")
        test(); p("s_cbranch_scc0", l)
        p.label(ok)
        if keep is not None: p("v_mov_b32", keep, t)
        self.vp.free(t)
    def poll(self, phase, base, sIdx, n=16, keep=None, force_true=None):
        p = self.p
        t = self.va(2, "poll", 1); sB = self.sa(1, "pb"); sL = self.sa(1, "pl")
        p("s_lshl_b32", sB, sIdx, 8); p("s_add_u32", sB, sB, base)
        p("v_and_b32", t[0], n - 1, self.vLane); p("v_lshlrev_b32", t[0], 2, t[0]); p("v_add_u32", t[0], sB, t[0])
        if isinstance(phase, int):
            p("s_add_u32", sB, self.sNonce, phase * 16); p("s_mov_b32", sL, 256 - phase * 16)
        else:
            p("s_lshl_b32", sL, phase, 4); p("s_add_u32", sB, sL, self.sNonce); p("s_sub_u32", sL, 256, sL)
        self.poll_loop(t[0], t[1], sB, sL, keep=keep, force_true=force_true)
        self.vp.free(t); self.sp.free(sB, sL)
    def handoff(self, pub_off, stored, pre=(), between=None, need=(), before_poll=None):
        p = self.p
        sec = 10 + pub_off
        self.fs(sec, 0)
        if pre: self.split3(list(pre))
        p.need(*stored); self.fs(sec, 1); self.barrier(); self.fs(sec, 2)
        sP = self.sa(1, "ph"); sA = self.sa(1, "pa")
        l1 = p.newlabel("Lh"); le = p.newlabel("Lhe")
        p("s_cmp_lg_u32", self.sW, 0); p("s_cbranch_scc1", l1)
        p("s_add_u32", sP, self.sPh, pub_off)
        self.flag_addr(sA, WS_FLAG, self.sC, self.sJ)
        self.publish(sP, sA)
        if before_poll: before_poll()
        self.fs(sec, 3)
        self.poll(sP, WS_FLAG, self.sC)
        self.fs(sec, 4)
        p("s_branch", le); p.label(l1)
        if between: between()
        p.label(le)
        if need: p.need(*need)
        self.barrier()
        self.fs(sec, 5); self.fs_dump(sec)
        self.sp.free(sP, sA)

    def stats_loads(self, dst4, sBase, off):
        return [(lambda i=i: self.p("buffer_load_dword", dst4[i], self.vSt, self.WS, sBase, mods="offen offset:%d sc1" % (off + i * 256))) for i in range(4)]
    def stats_finish(self, src4, pair, tmp):
        p = self.p
        p("v_add_f32", src4[0], src4[0], src4[1]); p("v_add_f32", src4[2], src4[2], src4[3])
        p("v_add_f32", src4[0], src4[0], src4[2])
        p("v_mov_b32", tmp, src4[0])
        p("v_permlane16_swap_b32", src4[0], tmp)
        p("v_add_f32", src4[0], src4[0], tmp)
        p("v_mov_b32", tmp, src4[0])
        p("v_permlane32_swap_b32", src4[0], tmp)
        p("v_mul_f32", pair[0], f2u(1.0 / 512), src4[0])
        p("v_mul_f32", tmp, f2u(1.0 / 512), tmp)
        p("v_fma_f32", tmp, "-" + str(pair[0]), pair[0], tmp)
        p("v_max_f32", tmp, 0, tmp)
        p("v_add_f32", tmp, f2u(1e-5), tmp)
        p("v_rsq_f32", pair[1], tmp)
    def stats_of_tile(self, x8, out, tmp):
        p = self.p
        s, q, s2, q2 = tmp[0], tmp[1], tmp[2], tmp[3]
        for (a, b, base) in ((s, q, 0), (s2, q2, 4)):
            p("v_dot2_f32_bf16", a, x8[base], self.vOnes[0], self.vZero)
            p("v_dot2_f32_bf16", b, x8[base], x8[base], self.vZero)
        for i in range(1, 4):
            for (a, b, base) in ((s, q, 0), (s2, q2, 4)):
                p("v_dot2_f32_bf16", a, x8[base + i], self.vOnes[0], a)
                p("v_dot2_f32_bf16", b, x8[base + i], x8[base + i], b)
        p("v_add_f32", s, s, s2); p("v_add_f32", q, q, q2)
        p("v_permlane32_swap_b32", s, q)
        p("v_add_f32", s, s, q)
        p("v_mov_b32", q, s); p("v_permlane16_swap_b32", s, q); p("v_add_f32", out, s, q)
    def mainloop(self, nsteps, nB, mf, rd, regs, two_half, extras, pre, aregs=None):
        p = self.p
        for nt in range(nB - 1):
            rd(0, nt, 0)
            if two_half: rd(0, nt, 1)
        for s in range(nsteps):
            for f in pre.get(s, []): f()
            if s == 0 or pre.get(s): p.needr(*aregs(s))
            for nt in range(nB):
                ps, pn = (s + 1, nt - 1) if nt > 0 else (s, nB - 1)
                ok = ps < nsteps
                ex = list(extras.pop((s, nt), []))
                mf(s, nt, 0)
                if ok: rd(ps, pn, 0)
                if ex: ex.pop(0)()
                mf(s, nt, 1)
                if ok and two_half: rd(ps, pn, 1)
                if not two_half and ex: ex.pop(0)()
                for f in ex: f()
                nx = nt + 1 if nt + 1 < nB else 0
                if nt + 1 < nB: p.needr(regs(nx))
                elif s + 1 < nsteps:
                    if pre.get(s + 1): p.needr(regs(nx))
                    else: p.needr(regs(nx), *aregs(s + 1))
        assert not extras, extras.keys()
    def a_loader(self, aX, sO, nsteps):
        p = self.p
        def f(s, t):
            if s >= nsteps: return
            if s and s % 4 == 0: p("s_add_u32", sO[t], sO[t], 4096)
            p("buffer_load_dwordx4", aX[t][s], self.vL16, self.WS, sO[t], mods="offen offset:%d sc1" % ((s % 4) * 1024))
        return f
```

```python
from gen3a import *

class PartB(Base):
    def get_nonce(self, v):
        p = self.p
        l = p.newlabel("Lnonce"); ok = p.newlabel("Lnok"); chk = p.newlabel("Lnchk")
        p("s_mov_b32", self.sSpin, 0)
        p("s_branch", chk)
        p.label(l)
        p("s_add_u32", self.sSpin, self.sSpin, 1); p("s_cmp_gt_u32", self.sSpin, SPIN_MAX); p("s_cbranch_scc1", "L_exit")
        p("buffer_load_dword", v, self.vZero, self.DBG, 0, mods="offen sc1")
        p.label(chk)
        p("s_memrealtime", self.sT2)
        p("v_readfirstlane_b32", self.sNonce, v); p("s_cmp_eq_u32", self.sNonce, 0); p("s_cbranch_scc1", l)
        p("s_cmp_gt_u32", self.sSpin, 4000); p("s_cbranch_scc1", ok)
        p("s_sub_u32", self.sT, self.sT2[0], self.sNonce); p("s_add_u32", self.sT, self.sT, 200); p("s_cmp_gt_u32", self.sT, 1900); p("s_cbranch_scc1", l)
        p.label(ok)
    def all_consts(self):
        self.const_st(); self.consts(); self.h_offsets(); self.touch_tables()
    def startup(self):
        p = self.p
        self.cap(lambda: (self.const_b1(), self.all_consts()))
        x = [self.va(8, "p0x%d" % i) for i in range(2)]
        vo = self.va(1, "p0off"); vn = self.va(1, "nonce")
        vq = self.va(6, "w3off", 1)
        r1 = [self.va(4, "r1") for _ in range(3)]
        sTwo = self.sa(1, "two"); sFa = self.sa(1, "fa"); sXo = self.sa(1, "xo"); sSo = self.sa(1, "so")
        def w1_loads():
            p("s_and_b32", self.sT, self.sW, 1); p("s_lshl_b32", self.sT1, self.sC, 1); p("s_add_u32", self.sT, self.sT, self.sT1)
            p("s_mul_i32", self.sT3, self.sT, 16 * 3072)
            for u in range(3): p("buffer_load_dwordx4", r1[u], self.vB1[u], self.WQKV, self.sT3, mods="offen" + (" offset:%d" % (1024 * u) if u else ""))
        l3 = p.newlabel("Ls3"); le = p.newlabel("Lse")
        p("s_cmp_eq_u32", self.sW, 3); p("s_cbranch_scc1", l3)
        p("s_lshl_b32", self.sT, self.sC, 7); p("s_mul_i32", self.sT1, self.sI, 5); p("s_add_u32", self.sT1, self.sT1, self.sW); p("s_lshl_b32", self.sT1, self.sT1, 4)
        p("s_add_u32", self.sT, self.sT, self.sT1); p("s_sub_u32", self.sT, self.sT, 16)
        p("v_add_u32", vo, self.sT, self.vM); p("v_lshlrev_b32", vo, 10, vo)
        p("v_lshlrev_b32", x[0][0], 4, self.vG); p("v_add_u32", vo, vo, x[0][0])
        p("s_lshl_b32", self.sT, self.sJJ, 7); p("v_add_u32", vo, self.sT, vo)
        for b in range(2): p("buffer_load_dwordx4", x[0][4 * b:4 * b + 4], vo, self.X0, 0, mods="offen" + (" offset:64" if b else ""))
        p("s_add_u32", sTwo, self.sW, self.sI)
        def second():
            p("v_add_u32", vo, 3 * 16384, vo)
            for b in range(2): p("buffer_load_dwordx4", x[1][4 * b:4 * b + 4], vo, self.X0, 0, mods="offen" + (" offset:64" if b else ""))
        self.if_scalar("le", sTwo, 1, second)
        p("buffer_load_dword", vn, self.vZero, self.DBG, 0, mods="offen sc1")
        t = self.va(4, "t")
        def w3_src(srd, lds):
            def f():
                p("s_mul_i32", self.sT, self.sJ, 176)
                p("s_mul_i32", self.sT3, self.sC, 32 * 2752)
                for u in range(6):
                    p("v_add_u32", t[0], 64 * u, self.vLane)
                    p("v_mul_u32_u24", t[1], 5958, t[0]); p("v_lshrrev_b32", t[1], 16, t[1])
                    p("v_mul_u32_u24", t[2], 11, t[1]); p("v_sub_u32", t[2], t[0], t[2])
                    p("v_and_b32", t[3], 16, t[1]); p("v_and_b32", t[0], 1, t[1]); p("v_lshlrev_b32", t[0], 3, t[0])
                    p("v_add_u32", t[3], t[3], t[0]); p("v_and_b32", t[0], 15, t[1]); p("v_lshrrev_b32", t[0], 1, t[0])
                    p("v_add_u32", t[3], t[3], t[0])
                    p("v_mul_u32_u24", t[3], 2752, t[3]); p("v_lshlrev_b32", t[2], 4, t[2]); p("v_add_u32", t[3], t[3], t[2])
                    p("v_add_u32", vq[u], self.sT, t[3])
                    if u == 5:
                        p("v_cmp_gt_u32", "vcc", 32, self.vLane); p("v_mov_b32", t[0], OOB)
                        p("v_cndmask_b32", vq[u], t[0], vq[u], "vcc")
                    p("s_mov_b32", "m0", lds + 1024 * u)
                    self.dma(srd, vq[u], self.sT3, 0, "w3src", (lds + 1024 * u, lds + 1024 * (u + 1)))
            return f
        self.by_wave({0: lambda: (self.const_b1(), w1_loads()), 1: w3_src(self.WG, L_RG), 2: w3_src(self.WU, L_RU)})
        self.vp.free(t)
        self.const_st()
        tmp = self.va(4, "tmp"); sv = self.va(1, "sv")
        def tile(n):
            f = x[n]
            for b in range(2):
                g = f[4 * b:4 * b + 4]
                p("v_permlane16_swap_b32", g[0], g[2]); p("v_permlane16_swap_b32", g[1], g[3])
            for b in range(2):
                g = f[4 * b:4 * b + 4]
                p("v_permlane32_swap_b32", g[0], g[2]); p("v_permlane32_swap_b32", g[1], g[3])
            p("s_mul_i32", self.sT, self.sI, 5); p("s_add_u32", self.sT, self.sT, self.sW); p("s_add_u32", self.sT, self.sT, 3 * n)
            p("s_lshl_b32", self.sT1, self.sT, 14); p("s_add_u32", sXo, self.sT1, self.sCb); p("s_lshl_b32", self.sT1, self.sJJ, 11); p("s_add_u32", sXo, sXo, self.sT1)
            p("s_lshl_b32", self.sT1, self.sT, 10); p("s_add_u32", sSo, self.sT1, self.sCb); p("s_lshl_b32", self.sT1, self.sJJ, 7); p("s_add_u32", sSo, sSo, self.sT1); p("s_add_u32", sSo, sSo, C_ST0)
            for b in range(2): p("buffer_store_dwordx4", f[4 * b:4 * b + 4], self.vL16, self.WS, sXo, mods="offen" + (" offset:1024 " if b else " ") + WT, token="p0st")
            self.stats_of_tile(f, sv, tmp)
            p("buffer_store_dword", sv, self.vStW, self.WS, sSo, mods="offen " + WT, token="p0st")
        tile(0)
        self.if_scalar("le", sTwo, 1, lambda: tile(1))
        self.vp.free(tmp, sv)
        self.consts(); self.h_offsets(); self.touch_tables()
        self.get_nonce(vn)
        t1 = self.va(1, "t1"); p("v_mov_b32", t1, L_NONCE); p("ds_write_b32", t1, vn, lds=(L_NONCE, L_NONCE + 4), token="nonce"); self.vp.free(t1)
        p("s_lshl_b32", self.sT, self.sJ, 2); p("s_add_u32", self.sT, self.sT, self.sW)
        p("s_lshl_b32", self.sT, self.sT, 2); p("s_lshl_b32", sFa, self.sC, 8); p("s_add_u32", sFa, sFa, self.sT); p("s_add_u32", sFa, sFa, WS_FLAG_P)
        p.need("p0st")
        self.publish(1, sFa, force_wt=True)
        p("s_branch", le)
        p.label(l3)
        self.const_b1()
        w1_loads()
        cst = self.cap(self.all_consts)
        groups = []
        for hs in range(32):
            def g(hs=hs):
                p("s_mov_b32", "m0", L_B1 + hs * 3072); p("s_mov_b32", self.sDm, hs * 16 * 3072)
                self.dma(self.WQKV, self.vB1[0], self.sDm, 0, "B1", (L_B1 + hs * 3072, L_B1 + (hs + 1) * 3072))
            groups.append(self.cap(g))
            for u in (1, 2):
                groups.append(self.cap(lambda u=u, hs=hs: self.dma(self.WQKV, self.vB1[u], self.sDm, 1024 * u, "B1", (L_B1 + hs * 3072, L_B1 + (hs + 1) * 3072))))
        self.weave_groups(cst, groups, start=0, every=max(1, len(cst) // len(groups)))
        p.label(le)
        self.vp.free(x, vo, vq); self.sp.free(sTwo, sFa, sXo, sSo)
        self.stamp("p0done")
        def w1_stores():
            p("s_and_b32", self.sT, self.sW, 1); p("s_lshl_b32", self.sT1, self.sC, 1); p("s_add_u32", self.sT, self.sT, self.sT1)
            p("s_mul_i32", self.sT3, self.sT, 3072); p("s_add_u32", self.sT3, self.sT3, self.sW1)
            for u in range(3): p("buffer_store_dwordx4", r1[u], self.vL16, self.WS, self.sT3, mods="offen offset:%d %s" % (1024 * u, WT), token="w3st")
        p.need("w3src", "nonce"); self.barrier()
        t1 = self.va(1, "t1"); p("v_mov_b32", t1, L_NONCE); p("ds_read_b32", t1, t1, lds=(L_NONCE, L_NONCE + 4)); p("v_readfirstlane_b32", self.sNonce, t1); self.vp.free(t1, vn)
        self.by_wave({0: w1_stores, 3: w1_stores})
        self.vp.free(r1)
        self.w3_repack()
        p.need("B1"); self.barrier()
        self.stamp("b1ready")
        self.csum1()

    def w3_repack(self):
        p = self.p
        t = self.va(4, "t"); base = self.va(1, "rb")
        p("v_and_b32", t[0], 1, self.vG); p("v_lshlrev_b32", t[0], 2, t[0])
        p("v_lshrrev_b32", t[1], 2, self.vM); p("v_add_u32", t[0], t[0], t[1]); p("v_lshlrev_b32", t[0], 1, t[0])
        p("v_lshrrev_b32", t[1], 1, self.vG); p("v_add_u32", t[0], t[0], t[1])
        p("v_mul_u32_u24", base, 176, t[0]); p("v_add_u32", base, L_RG, base)
        frag = [self.va(4, "frag") for _ in range(3)]; ad = self.va(1, "ad")
        sO = self.sa(1, "w3o")
        p("s_mul_i32", self.sT, self.sC, 11 * 1024); p("s_add_u32", sO, self.sW3, self.sT)
        cacc = [self.va(4, "cacc") for _ in range(3)]; cad = self.va(1, "cad"); sCs = self.sa(1, "cs")
        p("s_lshl_b32", sCs, self.sJ, 4); p("s_add_u32", sCs, sCs, self.sC); p("s_lshl_b32", sCs, sCs, 10); p("s_add_u32", sCs, sCs, WS_W3CS)
        p("v_lshlrev_b32", cad, 4, self.vG); p("v_mov_b32", t[0], OOB)
        p("v_cmp_eq_u32", "vcc", 0, self.vM); p("v_cndmask_b32", cad, t[0], cad, "vcc")
        R = (L_RG, L_RG + 12288)
        def tiles(lst):
            for n, nt in enumerate(lst):
                if nt < 10:
                    off = (0 if nt % 2 == 0 else L_RU - L_RG) + 32 * (nt // 2)
                    p("v_add_u32", ad, base, self.vIn)
                    p("ds_read_b64_tr_b16", frag[n][0:2], ad, mods="offset:%d" % off, lds=R)
                    p("ds_read_b64_tr_b16", frag[n][2:4], ad, mods="offset:%d" % (off + 16 * 176), lds=R)
                else:
                    p("v_and_b32", t[0], 1, self.vLane); p("v_lshlrev_b32", t[0], 3, t[0])
                    p("v_and_b32", t[1], 2, self.vLane); p("v_mul_u32_u24", t[1], (L_RU - L_RG) // 2, t[1])
                    p("v_add3_u32", ad, base, t[0], t[1])
                    p("ds_read_b64_tr_b16", frag[n][0:2], ad, mods="offset:%d" % 160, lds=R)
                    p("ds_read_b64_tr_b16", frag[n][2:4], ad, mods="offset:%d" % (160 + 16 * 176), lds=R)
            for n, nt in enumerate(lst):
                p("s_add_u32", self.sT, sO, nt * 1024)
                p("buffer_store_dwordx4", frag[n], self.vL16, self.WS, self.sT, mods="offen " + WT, token="w3st")
                p(MFMA, cacc[n], frag[n], self.vOnes, 0)
            for n, nt in enumerate(lst):
                p("buffer_store_dwordx4", cacc[n], cad, self.WS, sCs, mods="offen offset:%d %s" % (nt * 64, WT), token="w3st")
        self.by_wave({w: (lambda w=w: tiles(list(range(w, 11, 4)))) for w in range(4)})
        self.vp.free(t, base, frag, ad, cacc, cad); self.sp.free(sO, sCs)

    def wave_tile_base(self, dst, sNt):
        p = self.p; t = self.va(1, "t")
        p("v_and_b32", t, 1, self.vG); p("v_xor_b32", t, sNt, t); p("v_lshlrev_b32", t, 5, t)
        p("v_add_u32", dst, self.vT1b, t); self.vp.free(t)
    def csum1(self):
        p = self.p
        bT = self.va(2, "bT", 1); bV = self.va(2, "bV", 1)
        self.wave_tile_base(bT[0], self.sW); p("v_add_u32", bT[1], 49152, bT[0])
        p("s_and_b32", self.sT, self.sW, 1); p("s_add_u32", self.sT, self.sT, 4)
        self.wave_tile_base(bV[0], self.sT); p("v_add_u32", bV[1], 49152, bV[0])
        accT = self.va(4, "cT"); accV = self.va(4, "cV")
        fT = [self.aa(4, "fT") for _ in range(3)]; fV = [self.aa(4, "fV") for _ in range(3)]
        def rd(s):
            hi, so = s // 8, (s % 8) * 6144; R = (s * 6144, (s + 1) * 6144)
            p("ds_read_b64_tr_b16", fT[s % 3][0:2], bT[hi], mods="offset:%d" % so, lds=R)
            p("ds_read_b64_tr_b16", fT[s % 3][2:4], bT[hi], mods="offset:%d" % (so + 3072), lds=R)
            p("ds_read_b64_tr_b16", fV[s % 3][0:2], bV[hi], mods="offset:%d" % so, lds=R)
            p("ds_read_b64_tr_b16", fV[s % 3][2:4], bV[hi], mods="offset:%d" % (so + 3072), lds=R)
        rd(0); rd(1)
        for s in range(16):
            if s + 2 < 16: rd(s + 2)
            p(MFMA, accT, fT[s % 3], self.vOnes, accT if s else 0)
            p(MFMA, accV, self.vOnes, fV[s % 3], accV if s else 0)
        ad = self.va(1, "ad")
        p("s_lshl_b32", self.sT, self.sW, 6); p("s_add_u32", self.sT, self.sT, L_CS1T)
        p("v_lshlrev_b32", ad, 4, self.vG); p("v_add_u32", ad, self.sT, ad)
        p("s_mov_b32", "exec_lo", 0x00010001); p("s_mov_b32", "exec_hi", 0x00010001)
        p("ds_write_b128", ad, accT, lds=(L_CS1T, L_CS1T + 256))
        p("s_and_b32", self.sT, self.sW, 1); p("s_lshl_b32", self.sT, self.sT, 6); p("s_add_u32", self.sT, self.sT, L_CS1V)
        p("s_mov_b64", "exec", -1)
        p("v_lshlrev_b32", ad, 2, self.vM); p("v_add_u32", ad, self.sT, ad)
        p("s_mov_b64", "exec", 0xFFFF)
        p("ds_write_b32", ad, accV[0], lds=(L_CS1V, L_CS1V + 128))
        p("s_mov_b64", "exec", -1)
        self.vp.free(bT, bV, accT, accV, ad); self.ap.free(fT, fV)
    def entry(self):
        p = self.p
        def first_poll():
            k = self.va(2, "k", 1); sM = self.sp.alloc(2, 2, "msk")
            p("v_and_b32", k[0], 3, self.vLane); p("v_cmp_eq_u32", sM, 3, k[0])
            self.poll(1, WS_FLAG_P, self.sC, n=64, keep=k[0], force_true=sM)
            p("v_and_b32", k[0], 15, k[0]); p("v_cmp_eq_u32", "vcc", self.sXCC, k[0]); p("s_or_b64", "vcc", "vcc", sM)
            p("s_cmp_eq_u64", "vcc", "exec"); p("s_cselect_b32", self.sT, 0 if self.o.slow else 1, 0)
            p("v_mov_b32", k[0], self.sT); p("v_mov_b32", k[1], L_NONCE + 4); p("ds_write_b32", k[1], k[0], lds=(L_NONCE + 4, L_NONCE + 8))
            self.vp.free(k); self.sp.free(sM)
        self.if_wave(0, first_poll)
        p("s_waitcnt", "lgkmcnt(0)")
        self.barrier()
        t = self.va(1, "t"); p("v_mov_b32", t, L_NONCE + 4); p("ds_read_b32", t, t, lds=(L_NONCE + 4, L_NONCE + 8)); p("v_readfirstlane_b32", self.sFast, t); self.vp.free(t)
        self.stamp("x0ready")

    def layer_bases(self):
        p = self.p
        for n in "Lb Ph".split():
            if not hasattr(self, "s" + n): setattr(self, "s" + n, self.sa(1, n))
        L = self.sLayer
        p("s_mul_i32", self.sT, L, LBSZ); p("s_add_u32", self.sT, self.sT, self.sCb); p("s_add_u32", self.sLb, self.sT, C_L)
        p("s_lshl_b32", self.sPh, L, 2)

    def lnT(self, dst2, a4, c4, pm, pr, prsel):
        p = self.p
        for i in range(2):
            p("v_pk_fma_f32", a4[2 * i:2 * i + 2], c4[2 * i:2 * i + 2], pm, a4[2 * i:2 * i + 2], mods="op_sel_hi:[1,0,1] neg_lo:[0,1,0] neg_hi:[0,1,0]")
        for i in range(2):
            p("v_pk_mul_f32", a4[2 * i:2 * i + 2], a4[2 * i:2 * i + 2], pr, mods=("op_sel:[0,1] op_sel_hi:[1,1]" if prsel else "op_sel_hi:[1,0]"))
        for i in range(2): p("v_cvt_pk_bf16_f32", dst2[i], a4[2 * i], a4[2 * i + 1])
    def ln_batch(self, jobs):
        p = self.p
        NEG = "op_sel_hi:[1,0,1] neg_lo:[0,1,0] neg_hi:[0,1,0]"
        for j in jobs:
            for i in range(2):
                a = j[2][2 * i:2 * i + 2]
                if j[0] == "T": p("v_pk_fma_f32", a, j[3][2 * i:2 * i + 2], j[4], a, mods=NEG)
                else: p("v_pk_fma_f32", a, j[4][2 * i:2 * i + 2], j[3], a, mods=NEG)
        for j in jobs:
            for i in range(2):
                a = j[2][2 * i:2 * i + 2]
                if j[0] == "T": p("v_pk_mul_f32", a, a, j[5], mods=("op_sel:[0,1] op_sel_hi:[1,1]" if j[6] else "op_sel_hi:[1,0]"))
                else: p("v_pk_mul_f32", a, a, j[5][2 * i:2 * i + 2])
        for j in jobs:
            for i in range(2): p("v_cvt_pk_bf16_f32", j[1][i], j[2][2 * i], j[2][2 * i + 1])
    def lnN(self, dst2, a4, cv, m4, r4):
        p = self.p
        for i in range(2):
            p("v_pk_fma_f32", a4[2 * i:2 * i + 2], m4[2 * i:2 * i + 2], cv, a4[2 * i:2 * i + 2], mods="op_sel_hi:[1,0,1] neg_lo:[0,1,0] neg_hi:[0,1,0]")
        for i in range(2): p("v_pk_mul_f32", a4[2 * i:2 * i + 2], a4[2 * i:2 * i + 2], r4[2 * i:2 * i + 2])
        for i in range(2): p("v_cvt_pk_bf16_f32", dst2[i], a4[2 * i], a4[2 * i + 1])
    def p1(self):
        p, o = self.p, self.o
        D = o.d1
        aX = [[self.aa(4, "aX") for s in range(16)] for t in range(2)]
        aB = [self.aa(4, "aB") for nt in range(6)]
        acc = [[self.va(4, "acc") for nt in range(6)] for t in range(2)]
        sA = [self.sa(1, "p1a") for _ in range(2)]
        p("s_lshl_b32", self.sT, self.sW, 15); p("s_add_u32", sA[0], self.sT, self.sCb); p("s_add_u32", sA[0], sA[0], C_X0 + 16384)
        p("s_add_u32", sA[1], sA[0], 16384)
        ld = self.a_loader(aX, sA, 16)
        for s in range(D):
            for t in range(2): ld(s, t)
        def rdB(s, nt, half):
            b = self.vT1[(nt & 1) * 2 + s // 8]; so = (s % 8) * 6144 + nt * 32; R = (s * 6144, (s + 1) * 6144)
            p("ds_read_b64_tr_b16", aB[nt][2 * half:2 * half + 2], b, mods="offset:%d" % (so + 3072 * half), lds=R)
        st4 = [self.va(4, "st4", 1) for t in range(2)]; sth = self.va(4, "sth", 1)
        sS = self.sa(1, "p1s"); sHX = self.sa(1, "hx"); sHS = self.sa(1, "hs"); sThr = self.sa(1, "thr"); sLim = self.sa(1, "lim")
        p("s_lshl_b32", self.sT, self.sW, 11); p("s_add_u32", sS, self.sT, self.sCb); p("s_add_u32", sS, sS, C_ST0 + 1024)
        p("s_mul_i32", self.sT, self.sLayer, 9 * 16384); p("s_add_u32", self.sT, self.sT, self.sCb); p("s_add_u32", sHX, self.sT, C_X0)
        p("s_mul_i32", self.sT, self.sLayer, 9 * 1024); p("s_add_u32", self.sT, self.sT, self.sCb); p("s_add_u32", sHS, self.sT, C_ST0)
        p("s_cmp_eq_u32", self.sC, 0)
        p("s_cselect_b32", sHX, CB0 + C_X0, sHX); p("s_cselect_b32", sHS, CB0 + C_ST0, sHS)
        p("s_add_u32", sHX, sHX, self.sW4k)
        pv = self.va(2, "pv", 1)
        p("s_min_u32", self.sT3, self.sC, self.sLayer); p("s_cmp_lg_u32", self.sT3, 0)
        p("s_mov_b32", self.sT1, WS_FLAG_P); p("s_mov_b32", sThr, 16)
        p("s_cselect_b32", self.sT1, WS_FLAG_H, self.sT1)
        p("s_cselect_b32", sThr, 5 * 16, sThr); p("s_cselect_b32", self.sT3, 2, 4)
        p("s_lshl_b32", self.sT, self.sC, 8); p("s_add_u32", self.sT, self.sT, self.sT1)
        p("v_and_b32", pv[0], 7, self.vLane); p("v_lshlrev_b32", pv[0], self.sT3, pv[0]); p("v_add_u32", pv[0], self.sT, pv[0])
        p("s_sub_u32", sLim, 256, sThr); p("s_add_u32", sThr, sThr, self.sNonce)
        rp = self.va(8, "rp")
        def ld_res():
            p("s_lshl_b32", self.sT, self.sOwn, 14); p("s_add_u32", self.sT, self.sT, self.sCb)
            p("s_lshl_b32", self.sT1, self.sJJ, 11); p("s_add_u32", self.sT, self.sT, self.sT1)
            p("buffer_load_dwordx4", rp[0:4], self.vL16, self.WS, self.sT, mods="offen sc1")
            p("buffer_load_dwordx4", rp[4:8], self.vL16, self.WS, self.sT, mods="offen offset:1024 sc1")
        st = [self.va(4, "st") for t in range(2)]; tmp = self.va(1, "tmp"); hst = self.va(4, "hst")
        slot = {}
        def at(s, nt, fn): slot.setdefault((s, nt), []).append(fn)
        for t in range(2):
            for i, f in enumerate(self.stats_loads(st4[t], sS, t * 1024)): at(2 + 2 * t + i // 2, (2, 4)[i % 2], f)
        at(6, 1, lambda: self.if_scalar("eq", self.sLayer, 0, ld_res))
        at(7, 1, lambda: p("buffer_load_dword", pv[1], pv[0], self.WS, 0, mods="offen sc1"))
        def wpub():
            sA_ = self.sa(1, "a"); self.flag_addr(sA_, WS_FLAG_W, self.sJ, self.sC); self.publish(1, sA_, force_wt=True); self.sp.free(sA_)
        pre1 = {3: [lambda: (p.need("B1t"), self.barrier())],
                10: [lambda: (p.need("B1b", "w3st"), self.barrier(), self.if_scalar("eq", self.sLayer, 0, lambda: self.if_wave(1, wpub)))]}
        sW1w = self.sa(1, "w1w"); p("s_add_u32", sW1w, self.sW1, self.sW3k)
        b1b = self.g_lin3(sW1w, 6 * 12 * KB, L_B1 + 6 * 12 * KB, "B1b") + self.g_lin3(sW1w, 7 * 12 * KB, L_B1 + 7 * 12 * KB, "B1b")
        for n, f in enumerate(b1b): at(n, 5, lambda f=f: self.if_scalar("eq", self.sLayer, 1, f))
        at(9, 1, lambda: self.poll_loop(pv[0], pv[1], sThr, sLim, first_loaded=True))
        for f, (s_, nt_) in zip(self.g_lin4(sHX, 0, L_HA, "HA"), [(9, 4), (10, 1), (10, 4), (11, 1)]): at(s_, nt_, f)
        for f, (s_, nt_) in zip(self.stats_loads(sth, sHS, 0), [(11, 4), (11, 5), (12, 1), (12, 2)]): at(s_, nt_, f)
        at(13, 1, lambda: self.touch(self.vTc1))
        b2 = self.g_b2(0, "B2a") + self.g_b2(1, "B2a")
        for f, (s_, nt_) in zip(b2, [(12, 4), (13, 3), (13, 5), (14, 0), (14, 3), (15, 0), (15, 2), (15, 4)]): at(s_, nt_, f)
        for s_ in range(16 - D):
            slot.setdefault((s_, 0), []).insert(0, lambda s_=s_: ld(s_ + D, 0)); slot.setdefault((s_, 3), []).insert(0, lambda s_=s_: ld(s_ + D, 1))
        def mf(s, nt, t):
            c = acc[t][nt] if s else 0
            if nt < 4: p(MFMA, acc[t][nt], aB[nt], aX[t][s], c)
            else: p(MFMA, acc[t][nt], aX[t][s], aB[nt], c)
        self.mainloop(16, 6, mf, rdB, lambda nt: aB[nt], True, slot, pre1, lambda s: (aX[0][s], aX[1][s]))
        self.stamp("p1main")
        for t in range(2): self.ap.free(aX[t])
        self.ap.free(aB); self.sp.free(sA, sS, sHX, sHS, sThr, sLim, sW1w); self.vp.free(pv)
        self.if_scalar("eq", self.sLayer, 0, lambda: self.unpack_resid(rp))
        self.vp.free(rp)
        self.fs(1, 0)
        p.need("HA"); self.barrier()
        self.fs(1, 1)
        Q = [[self.va(2, "Q") for h in range(2)] for t in range(2)]
        K = [[self.va(2, "K") for h in range(2)] for t in range(2)]
        KV = [self.va(8, "KV") for h in range(2)]
        o4 = [self.va(4, "o4") for t in range(2)]
        ad = self.va(4, "ad", 1)
        mN = [self.va(4, "mN") for t in range(3)]; rN = [self.va(4, "rN") for t in range(3)]
        cs = [self.va(4, "cs") for nt in range(4)]; csV = [self.va(2, "csV") for h in range(2)]
        ch = self.va(4, "ch")
        RS = (L_RMEAN, L_RRSTD + 576)
        hb = self.va(2, "hb", 1); xa = self.va(1, "xa")
        NB = o.nb_mini
        hT = self.va(4, "hT"); hN = self.va(4, "hN"); fW = [self.aa(4, "fW") for _ in range(NB)]; fX = [self.aa(4, "fX") for _ in range(NB)]
        p("s_add_u32", self.sT, self.sW, 2); self.wave_tile_base(hb[0], self.sT); p("v_add_u32", hb[1], 49152, hb[0])
        p("v_add_u32", xa, L_HA, self.vL16)
        def streamB():
            def rd(s):
                hi, so = s // 8, (s % 8) * 6144; R = (s * 6144, (s + 1) * 6144)
                p("ds_read_b64_tr_b16", fW[s % NB][0:2], hb[hi], mods="offset:%d" % so, lds=R)
                p("ds_read_b64_tr_b16", fW[s % NB][2:4], hb[hi], mods="offset:%d" % (so + 3072), lds=R)
                p("ds_read_b128", fX[s % NB], xa, mods="offset:%d" % (s * 1024), lds=(L_HA + s * KB, L_HA + (s + 1) * KB))
            for s in range(NB - 1): rd(s)
            for s in range(16):
                p(MFMA, hT, fW[s % NB], fX[s % NB], hT if s else 0)
                p(MFMA, hN, fX[s % NB], fW[s % NB], hN if s else 0)
                if s + NB - 1 < 16: rd(s + NB - 1)
        def streamA():
            if o.touch3_at == -2: self.touch(self.vTc3)
            p("v_lshlrev_b32", ad[2], 4, self.vG); p("v_add_u32", ad[2], L_MISC, ad[2])
            p("v_lshlrev_b32", ad[3], 2, self.vM); p("v_add_u32", ad[3], L_MISC, ad[3])
            for t in range(2):
                self.stats_finish(st4[t], st[t], tmp)
                p("v_mul_f32", st[t][2], f2u(0.25), st[t][1])
            self.stats_finish(sth, hst, tmp)
            p("s_lshl_b32", self.sT, self.sW, 7); p("s_add_u32", self.sT, self.sT, 64)
            p("v_add_u32", ad[0], self.sT, ad[3]); p("v_add_u32", ad[1], self.sT, ad[2])
        def streamA2():
            p("s_mov_b64", "exec", 0xFFFF)
            for t in range(2):
                p("ds_write_b32", ad[0], st[t][0], mods="offset:%d" % (L_RMEAN - L_MISC + 64 * t), lds=RS + ("p",))
                p("ds_write_b32", ad[0], st[t][1], mods="offset:%d" % (L_RRSTD - L_MISC + 64 * t), lds=RS + ("p",))
            p("ds_write_b32", ad[3], hst[0], mods="offset:%d" % (L_RMEAN - L_MISC), lds=RS + ("p",)); p("ds_write_b32", ad[3], hst[1], mods="offset:%d" % (L_RRSTD - L_MISC), lds=RS + ("p",))
            p("s_mov_b64", "exec", -1)
            for nt in (2, 3): p("ds_read_b128", cs[nt], ad[2], mods="offset:%d" % (L_CS1T - L_MISC + 64 * nt), lds=(L_CS1T, L_CS1T + 256))
            for h in range(2): p("ds_read_b32", csV[h][0], ad[3], mods="offset:%d" % (L_CS1V - L_MISC + 64 * h), lds=(L_CS1V, L_CS1V + 128))
            for t in range(2):
                p("ds_read_b128", mN[t], ad[1], mods="offset:%d" % (L_RMEAN - L_MISC + 64 * t), lds=RS + ("p",))
                p("ds_read_b128", rN[t], ad[1], mods="offset:%d" % (L_RRSTD - L_MISC + 64 * t), lds=RS + ("p",))
            p("ds_read_b128", mN[2], ad[2], mods="offset:%d" % (L_RMEAN - L_MISC), lds=RS + ("p",)); p("ds_read_b128", rN[2], ad[2], mods="offset:%d" % (L_RRSTD - L_MISC), lds=RS + ("p",))
            for nt in (0, 1): p("ds_read_b128", cs[nt], ad[2], mods="offset:%d" % (L_CS1T - L_MISC + 64 * nt), lds=(L_CS1T, L_CS1T + 256))
            p("s_and_b32", self.sT, self.sW, 1); p("s_lshl_b32", self.sT, self.sT, 6); p("s_add_u32", self.sT1, self.sT, 128)
            p("v_add_u32", ad[0], self.sT1, ad[2]); p("ds_read_b128", ch, ad[0], mods="offset:%d" % (L_CS1T - L_MISC), lds=(L_CS1T, L_CS1T + 256))
        B_ = self.cap(streamB)
        npro = 3 * (NB - 1)
        self.p.ins.extend(B_[:npro])
        nloop = len(B_) - npro
        cut = sum(1 for _ in range(0))
        k_last_read = max(i for i, x in enumerate(B_) if x.kind == "ds")
        A1_, A2_ = self.cap(streamA), self.cap(streamA2)
        if "nomini" in o.exp: B_ = B_[:npro]; k_last_read = npro - 1
        if "nostat" in o.exp: A1_ = []; A2_ = []
        if "serial" in o.exp:
            self.p.ins.extend(B_[npro:]); self.fs(1, 0); self.p.ins.extend(A1_); self.p.ins.extend(A2_)
        else:
            self.weave(A1_, B_[npro:k_last_read + 1], 1, 1)
            self.weave(A2_, B_[k_last_read + 1:], 2, 1)
        self.vp.free(st4[0], st4[1], sth)
        self.fs(1, 2)
        p.needr(hT, hN) if False else None
        p("s_waitcnt", "lgkmcnt(0)"); self.barrier()
        hp = self.va(2, "hp")
        def t2a():
            self.ln_batch([("T", K[t][h], acc[t][2 + h], cs[2 + h], st[t][0:2], st[t][0:2], 1) for t in range(2) for h in range(2)] +
                          [("N", KV[h][4 + 2 * t:6 + 2 * t], acc[t][4 + h], csV[h], mN[t], rN[t]) for t in range(2) for h in range(2)])
        items = self.g_b2(2, "B2b") + self.g_b2(3, "B2b")
        for s3 in range(o.att_b3): items += self.g_b3(s3, "B3a")
        allg = [self.cap(f) for f in items]
        body = self.cap(t2a)
        self.weave_groups(body, allg[:o.t2_items], start=1, every=max(2, len(body) // max(1, o.t2_items)))
        p("s_lshl_b32", self.sT, self.sW, 11); p("s_add_u32", self.sT, self.sT, L_EX + 2048)
        p("v_add_u32", ad[0], self.sT, self.vL16)
        for h in range(2):
            p("ds_write_b64", ad[0], K[1][h], mods="offset:%d" % (1024 * h), lds=(L_EX + 2048, L_EX + 10240))
            p("ds_write_b64", ad[0], KV[h][6:8], mods="offset:%d" % (1024 * h + 8), lds=(L_EX + 2048, L_EX + 10240))
        lN = p.newlabel("LhN"); lE = p.newlabel("LhE")
        p("s_cmp_ge_u32", self.sW, 2); p("s_cbranch_scc1", lN)
        self.lnT(hp, hT, ch, hst[0:2], hst[0:2], 1)
        p("s_branch", lE); p.label(lN)
        cvh = self.va(2, "cvh")
        p("s_cmp_eq_u32", self.sW, 2); p("s_cselect_b64", "vcc", -1, 0)
        p("v_cndmask_b32", cvh[0], csV[1][0], csV[0][0], "vcc")
        self.lnN(hp, hN, cvh, mN[2], rN[2])
        self.vp.free(cvh)
        p.label(lE)
        p("s_and_b32", self.sT, self.sW, 1); p("s_lshl_b32", self.sT, self.sT, 10)
        p("s_lshr_b32", self.sT1, self.sW, 1); p("s_lshl_b32", self.sT1, self.sT1, 3)
        p("s_add_u32", self.sT, self.sT, self.sT1); p("s_add_u32", self.sT, self.sT, L_EX)
        p("v_add_u32", xa, self.sT, self.vL16)
        p("ds_write_b64", xa, hp, lds=(L_EX, L_EX + 2048))
        self.ln_batch([("T", Q[t][h], acc[t][h], cs[h], st[t][0:2], st[t][2:4], 0) for t in range(2) for h in range(2)])
        for t in range(2): self.vp.free(acc[t])
        self.vp.free(mN, rN, st, cs, csV, ch, hb, hT, hN, hp, hst); self.ap.free(fW, fX)
        self.fs(1, 3)
        p("s_waitcnt", "lgkmcnt(0)"); self.barrier()
        self.stamp("p1x1")
        p("s_lshl_b32", self.sT, self.sW, 11); p("s_add_u32", self.sT, self.sT, L_EX)
        p("v_add_u32", xa, self.sT, self.vL16)
        for h in range(2): p("ds_read_b128", KV[h][0:4], xa, mods="offset:%d" % (1024 * h), lds=(L_EX, L_EX + 8192))
        self.fs(1, 4)
        att = self.cap(lambda: self.attention([(Q[1][h], K[0][h], K[1][h], KV[h][4:8], self.vBiasP, o4[1][2 * h:2 * h + 2]) for h in range(2)] +
                       [(Q[0][h], KV[h][0:2], K[0][h], KV[h][2:6], self.vBiasP0, o4[0][2 * h:2 * h + 2]) for h in range(2)]))
        groups = allg[o.t2_items:]
        self.weave_groups(att, groups, start=2, every=max(3, int(len(att) * o.att_frac) // max(1, len(groups))))
        self.fs(1, 5); self.fs_dump(1)
        sO = [self.sa(1, "o") for _ in range(2)]
        p("s_lshl_b32", self.sT, self.sW, 15); p("s_add_u32", self.sT, self.sT, self.sLb)
        p("s_lshl_b32", self.sT1, self.sJ, 10); p("s_add_u32", self.sT, self.sT, self.sT1); p("s_add_u32", sO[0], self.sT, L_O)
        p("s_add_u32", sO[1], sO[0], 16384)
        def st_o(m):
            for t in range(2): p("buffer_store_dwordx4", o4[t], self.vL16, self.WS, sO[t], mods=("offen " + m).strip(), token="ost")
        self.dual_store(st_o)
        self.sp.free(sO)
        self.vp.free(Q, K, KV, o4, tmp, ad, xa)
        self.if_scalar("eq", self.sLayer, 0, lambda: self.if_wave(0, lambda: self.poll(1, WS_FLAG_W, self.sJ)))
        self.stamp("p1done")

    def attention(self, units):
        p = self.p
        streams = []; frees = []
        for (Q, Kp, Kc, V4, bP, out) in units:
            q = Prog()
            Sp = self.va(4, "Sp"); Sc = self.va(4, "Sc"); m = self.va(2, "m"); t = self.va(1, "t"); P = self.va(4, "P"); O = self.va(4, "O"); Sm = self.va(4, "Sm")
            q(MFMA16, Sp, Kp, Q, bP); q(MFMA16, Sc, Kc, Q, self.vBiasC)
            q("v_max3_f32", m[0], Sp[0], Sp[1], Sp[2]); q("v_max3_f32", m[0], m[0], Sp[3], Sc[0])
            q("v_max3_f32", m[0], m[0], Sc[1], Sc[2]); q("v_max_f32", m[0], m[0], Sc[3])
            q("v_mov_b32", t, m[0]); q("v_permlane16_swap_b32", m[0], t); q("v_max_f32", m[0], m[0], t)
            q("v_mov_b32", t, m[0]); q("v_permlane32_swap_b32", m[0], t); q("v_max_f32", m[0], m[0], t)
            q("v_mul_f32", m[0], self.sL2E[1], m[0])
            for Sx in (Sp, Sc):
                for i in range(4): q("v_fma_f32", Sx[i], Sx[i], self.sL2E[0], m[0])
            for Sx in (Sp, Sc):
                for i in range(4): q("v_exp_f32", Sx[i], Sx[i])
            q("v_cvt_pk_bf16_f32", P[0], Sp[0], Sp[1]); q("v_cvt_pk_bf16_f32", P[1], Sp[2], Sp[3])
            q("v_cvt_pk_bf16_f32", P[2], Sc[0], Sc[1]); q("v_cvt_pk_bf16_f32", P[3], Sc[2], Sc[3])
            q(MFMA, Sm, self.vOnes, P, 0); q(MFMA, O, V4, P, 0)
            q("v_rcp_f32", m[0], Sm[0])
            for i in range(4): q("v_mul_f32", O[i], O[i], m[0])
            for i in range(2): q("v_cvt_pk_bf16_f32", out[i], O[2 * i], O[2 * i + 1])
            streams.append(q.take()); frees.append([Sp, Sc, m, t, P, O, Sm])
        n = max(len(s) for s in streams)
        for i in range(n):
            for s in streams:
                if i < len(s): p.ins.append(s[i])
        for f in frees: self.vp.free(f)
```

```python
KB = 1024
WS_FLAG   = 0x0
WS_FLAG_W = 0x2000
WS_FLAG_H = 0x4000
WS_FLAG_P = 0x6000
WS_STAMP  = 0x8000
WS_W3CS   = 0x20000
WS_W1     = 0x80000
W3SZ = 16 * 11 * KB
WS_W3     = 0x200000
CB0 = 0x600000; CBSZ = 0x200000
XSZ = 10 * 16 * KB
C_X0 = 0x0; C_ST0 = 0x28000
C_L = 0x2C000; LBSZ = 0x78000
L_O = 0x0; L_H = 0x20000
HSTEPS = 44
WS_END = CB0 + 16 * CBSZ
def ws_x(n, c): return CB0 + c * CBSZ + C_X0
def ws_o(L, c): return CB0 + c * CBSZ + C_L + L * LBSZ + L_O
def ws_h(L, c): return CB0 + c * CBSZ + C_L + L * LBSZ + L_H
LDS_SIZE = 163840
L_MISC = 159744
L_CS1T = L_MISC
L_CS1V = L_MISC + 256
L_CS3  = L_MISC + 384
L_RMEAN = L_MISC + 1088
L_RRSTD = L_MISC + 1664
L_NONCE = L_MISC + 2240
def hspace_F(sigma, k):
    kh, i = divmod(sigma, 22)
    if i < 16:
        return 704 * kh + 88 * (i >> 1) + 32 * (i & 1) + k
    lam = 4 * (i - 16) + (k >> 3)
    return 704 * kh + 88 * (lam // 3) + 64 + 8 * (lam % 3) + (k & 7)
```

```python
from gen3b import *

class G(PartB):
    def tr_bases(self, windows):
        p = self.p; out = {0: [self.vT2[nt] for nt in range(4)]}; tmp = []
        for w in windows:
            if w == 0: continue
            r = self.va(4, "vbw", 1); tmp.append(r)
            for nt in range(4): p("v_add_u32", r[nt], 65536 * w, self.vT2[nt])
            out[w] = [r[nt] for nt in range(4)]
        return out, tmp
    def gemm64(self, nsteps, sAbase, a_tile_stride, slot_of, D, hooks):
        p = self.p
        aX = [[self.aa(4, "aX") for s in range(nsteps)] for t in range(2)]
        aB = [self.aa(4, "aB") for nt in range(4)]
        acc = [[self.va(4, "acc") for nt in range(4)] for t in range(2)]
        sO = [self.sa(1, "ao") for _ in range(2)]
        p("s_lshl_b32", self.sT, self.sMH, 1); p("s_add_u32", self.sT1, self.sT, self.sKH)
        p("s_mul_i32", self.sT1, self.sT1, a_tile_stride); p("s_add_u32", sO[0], sAbase, self.sT1)
        p("s_add_u32", self.sT, self.sT, 1); p("s_sub_u32", self.sT, self.sT, self.sKH)
        p("s_mul_i32", self.sT1, self.sT, a_tile_stride); p("s_add_u32", sO[1], sAbase, self.sT1)
        ld = self.a_loader(aX, sO, nsteps)
        for s in range(D):
            for t in range(2): ld(s, t)
        bases, tmpb = self.tr_bases(sorted({slot_of(s) >> 16 for s in range(nsteps)}))
        def rdB(s, nt, half):
            a = slot_of(s); w = a >> 16; so = a & 0xffff
            p("ds_read_b64_tr_b16", aB[nt][2 * half:2 * half + 2], bases[w][nt], mods="offset:%d" % (so + 2048 * half), lds=(a, a + 8192))
        ex = {k: list(v) for k, v in hooks.items() if len(k) == 2}
        pre = {k[0]: v for k, v in hooks.items() if len(k) == 3}
        for s_ in range(nsteps - D):
            ex.setdefault((s_, 0), []).insert(0, lambda s_=s_: ld(s_ + D, 0)); ex.setdefault((s_, 2), []).insert(0, lambda s_=s_: ld(s_ + D, 1))
        self.mainloop(nsteps, 4, lambda s, nt, t: p(MFMA, acc[t][nt], aB[nt], aX[t][s], acc[t][nt] if s else 0), rdB, lambda nt: aB[nt], True, ex, pre, lambda s: (aX[0][s], aX[1][s]))
        self.sp.free(sO); self.vp.free(tmpb)
        for t in range(2): self.ap.free(aX[t])
        self.ap.free(aB)
        return acc
    def reduce64(self, acc, scratch, groups=()):
        p = self.p
        ad = self.va(2, "ad", 1); xp = self.va(8, "xp")
        R = (scratch, scratch + 16384)
        def part1():
            p("s_add_u32", self.sT, self.sW4k, scratch)
            p("v_add_u32", ad[0], self.sT, self.vL16)
            for nt in range(4): p("ds_write_b128", ad[0], acc[1][nt], mods="offset:%d" % (1024 * nt), lds=R)
            p("s_xor_b32", self.sT, self.sW4k, 4096); p("s_add_u32", self.sT, self.sT, scratch)
            p("v_add_u32", ad[1], self.sT, self.vL16)
            for nt in range(4):
                for i in range(2): p("v_pk_add_f32", acc[0][nt][2 * i:2 * i + 2], acc[0][nt][2 * i:2 * i + 2], self.vResF[4 * nt + 2 * i:4 * nt + 2 * i + 2])
        self.weave_groups(self.cap(part1), [self.cap(g) for g in groups], start=2, every=2)
        p("s_waitcnt", "lgkmcnt(0)"); self.barrier()
        for nt in range(4): p("ds_read_b128", acc[1][nt], ad[1], mods="offset:%d" % (1024 * nt), lds=R)
        for nt in range(4):
            for i in range(2): p("v_pk_add_f32", acc[0][nt][2 * i:2 * i + 2], acc[0][nt][2 * i:2 * i + 2], acc[1][nt][2 * i:2 * i + 2])
            for i in range(2): p("v_cvt_pk_bf16_f32", xp[2 * nt + i], acc[0][nt][2 * i], acc[0][nt][2 * i + 1])
        self.vp.free(ad, acc[0], acc[1])
        return xp
    def unpack_resid(self, xp):
        for i in range(8):
            self.p("v_lshlrev_b32", self.vResF[2 * i], 16, xp[i]); self.p("v_and_b32", self.vResF[2 * i + 1], 0xffff0000, xp[i])
    def store_x(self, xp, token):
        xoff, stoff = C_X0, C_ST0
        p = self.p
        tmp = self.va(4, "tmp"); sv = self.va(1, "sv")
        sa_ = self.sa(1, "xa"); sb_ = self.sa(1, "xb")
        p("s_lshl_b32", self.sT, self.sOwn, 14); p("s_add_u32", sa_, self.sT, self.sCb); p("s_lshl_b32", self.sT1, self.sJJ, 11); p("s_add_u32", sa_, sa_, self.sT1); p("s_add_u32", sa_, sa_, xoff)
        def st1(m):
            p("buffer_store_dwordx4", xp[0:4], self.vL16, self.WS, sa_, mods=("offen " + m).strip(), token=token)
            p("buffer_store_dwordx4", xp[4:8], self.vL16, self.WS, sa_, mods=("offen offset:1024 " + m).strip(), token=token)
        self.dual_store(st1)
        p("s_lshl_b32", self.sT, self.sOwn, 10); p("s_add_u32", sb_, self.sT, self.sCb); p("s_lshl_b32", self.sT1, self.sJJ, 7); p("s_add_u32", sb_, sb_, self.sT1); p("s_add_u32", sb_, sb_, stoff)
        self.stats_of_tile(xp, sv, tmp)
        self.dual_store(lambda m: p("buffer_store_dword", sv, self.vStW, self.WS, sb_, mods=("offen " + m).strip(), token=token))
        self.vp.free(tmp); self.sp.free(sa_, sb_)
        return sv

    def p2(self):
        p, o = self.p, self.o
        sA = self.sa(1, "p2a")
        p("s_lshl_b32", self.sT, self.sI, 16); p("s_add_u32", sA, self.sT, self.sLb)
        p("s_lshl_b32", self.sT, self.sKH, 13); p("s_add_u32", sA, sA, self.sT); p("s_add_u32", sA, sA, L_O)
        hooks = {(3, 0, "pre"): [lambda: (p.need("B2b"), self.barrier())]}
        acc = self.gemm64(8, sA, 16384, b2_slot, o.d2, hooks)
        self.sp.free(sA)
        self.stamp("p2main")
        self.barrier()
        groups = []
        if o.touch3_at == -1: groups.append(lambda: self.touch(self.vTc3))
        for s in o.p2tail_b3: groups += self.g_b3(s, "B3a")
        xp = self.reduce64(acc, L_SCR2, groups)
        sv = self.store_x(xp, "xst")
        self.vp.free(sv)
        self.stamp("p2done")
        return xp

    def csum3_load(self):
        p = self.p
        ad = self.va(1, "ad"); la = self.va(1, "la")
        self.c3 = [self.va(4, "c3") for _ in range(4)]
        p("v_lshlrev_b32", ad, 10, self.vM); p("v_lshlrev_b32", la, 4, self.vG); p("v_add_u32", ad, ad, la)
        p("s_lshl_b32", self.sT3, self.sJ, 14); p("s_add_u32", self.sT3, self.sT3, WS_W3CS)
        p("s_sub_u32", self.sT, self.sW, 1); p("s_lshl_b32", self.sT, self.sT, 6); p("s_add_u32", self.sT3, self.sT3, self.sT)
        for n in range(4):
            p("buffer_load_dwordx4", self.c3[n], ad, self.WS, self.sT3, mods="offen offset:%d sc1" % (192 * n))
        self.vp.free(ad, la)
    def csum3_finish(self):
        p = self.p
        v = self.c3; la = self.va(1, "la")
        for rot in (8, 4, 2, 1):
            for n in range(4):
                for r in range(4):
                    p("v_add_f32_dpp", v[n][r], v[n][r], v[n][r], mods="row_ror:%d row_mask:0xf bank_mask:0xf" % rot)
        p("v_lshlrev_b32", la, 4, self.vG)
        p("s_sub_u32", self.sT, self.sW, 1); p("s_lshl_b32", self.sT, self.sT, 6); p("s_add_u32", self.sT, self.sT, L_MISC); p("v_add_u32", la, self.sT, la)
        p("s_mov_b32", "exec_lo", 0x00010001); p("s_mov_b32", "exec_hi", 0x00010001)
        R = (L_CS3, L_CS3 + 704)
        for n in range(3): p("ds_write_b128", la, v[n], mods="offset:%d" % (L_CS3 - L_MISC + 192 * n), lds=R)
        def last(): p("ds_write_b128", la, v[3], mods="offset:%d" % (L_CS3 - L_MISC + 576), lds=R)
        self.if_wave(3, last, eq=False)
        p("s_mov_b64", "exec", -1)
        p("s_waitcnt", "lgkmcnt(0)")
        self.vp.free(la)

    def p3(self):
        p, o = self.p, self.o
        aX = [[self.aa(4, "aX") for s in range(16)] for t in range(2)]
        aB = [self.aa(4, "aB") for nt in range(11)]
        acc = [[self.va(4, "acc") for nt in range(11)] for t in range(2)]
        sA = [self.sa(1, "p3a") for _ in range(2)]
        p("s_lshl_b32", self.sT, self.sW, 15); p("s_add_u32", sA[0], self.sT, self.sCb); p("s_add_u32", sA[0], sA[0], C_X0 + 16384)
        p("s_add_u32", sA[1], sA[0], 16384)
        ld = self.a_loader(aX, sA, 16)
        D0 = o.d3
        for s in range(D0):
            for t in range(2): ld(s, t)
        st4 = [self.va(4, "st4", 1) for t in range(2)]
        sS = self.sa(1, "p3s")
        p("s_lshl_b32", self.sT, self.sW, 11); p("s_add_u32", sS, self.sT, self.sCb); p("s_add_u32", sS, sS, C_ST0 + 1024)
        lb = self.va(2, "lb", 1)
        p("v_add_u32", lb[0], 65536, self.vL16); p("v_add_u32", lb[1], 131072, self.vL16)
        def rdB(s, nt, half):
            a = b3_slot(s) + nt * 1024
            p("ds_read_b128", aB[nt], (self.vL16, lb[0], lb[1])[a >> 16], mods="offset:%d" % (a & 0xffff), lds=(a, a + 1024))
        self.stamp("p3s")
        work = {s: [] for s in range(16)}; pre = {}
        nxt = D0
        for s in range(16):
            for _ in range(o.ramp3):
                if nxt < 16:
                    fa = lambda n=nxt: ld(n, 0); fb = lambda n=nxt: ld(n, 1)
                    fa.isA = fb.isA = True
                    work[s].append(fa); work[s].append(fb); nxt += 1
        sl = self.stats_loads(st4[0], sS, 0) + self.stats_loads(st4[1], sS, 1024)
        for n, f in enumerate(sl): work[10 + n // 4].append(f)
        lead = 16 - o.jit3
        tok = {}
        for s3 in range(lead, 16):
            at_ = s3 - lead
            tok[s3] = "B3s%d" % s3
            work[at_] += self.g_b3(s3, tok[s3])
        bars = o.bars3
        for bi, b in enumerate(bars):
            hi = bars[bi + 1] if bi + 1 < len(bars) else 15
            need = [tok[x] for x in range(lead, min(hi, 15) + 1)]
            pre[b] = (lambda need=tuple(need) + (("B3b",) if bi == 0 else ()): (p.need(*need), self.barrier()))
        if o.touch3_at >= 0: work[o.touch3_at].append(lambda: self.touch(self.vTc3))
        b4m = []
        for n in range(o.b4_main_pairs): b4m += self.g_b4(n, "B4a")
        slots4 = [10, 11, 11, 12, 12, 13, 13, 13, 14, 14, 14, 14, 15, 15, 15, 15]
        for f, s_ in zip(b4m, slots4[16 - len(b4m):] if len(b4m) <= 16 else slots4): work[s_].append(f)
        if "nodma3" in o.exp:
            keep = {}
            for s_ in work: work[s_] = [f for f in work[s_] if getattr(f, "isA", False)]
        if "noA3" in o.exp:
            for s_ in work: work[s_] = [f for f in work[s_] if not getattr(f, "isA", False)]
        fine = []
        if o.fine == 3:
            fine = [self.sp.alloc(2, 2, "fine") for _ in range(5)]
        ex = {}; prel = {s: [f] for s, f in pre.items()}
        for s in range(16):
            if o.fine == 3 and s in o.finesteps:
                prel.setdefault(s, []).insert(0, lambda s=s: p.raw("  s_memtime %s" % fine[o.finesteps.index(s)]))
            items = list(work[s]); n = len(items)
            for i, f in enumerate(items): ex.setdefault((s, min(10, (i * 11) // max(n, 1))), []).append(f)
        self.mainloop(16, 11, lambda s, nt, t: p(MFMA, acc[t][nt], aB[nt], aX[t][s], acc[t][nt] if s else 0), rdB, lambda nt: aB[nt], False, ex, prel, lambda s: (aX[0][s], aX[1][s]))
        if o.fine == 3:
            p("s_waitcnt", "lgkmcnt(0)")
            for n, r in enumerate(fine): p("v_writelane_b32", self.vStamp, r[0], 50 + n)
            self.sp.free(fine)
        self.sp.free(sA, sS)
        self.stamp("p3main")
        for t in range(2): self.ap.free(aX[t])
        self.ap.free(aB); self.vp.free(lb)
        self.barrier()
        tmp = self.va(1, "tmp"); st = [self.va(4, "st") for t in range(2)]
        ad = self.va(1, "ad"); hp = [self.va(4, "hp") for _ in range(2)]
        sH = [self.sa(1, "h") for _ in range(2)]; sHf = [self.sa(1, "hf") for _ in range(2)]
        cg = [self.va(4, "cg") for _ in range(2)]; cu = [self.va(4, "cu") for _ in range(2)]; hm = self.va(2, "hm")
        NEGM = "op_sel_hi:[1,0,1] neg_lo:[0,1,0] neg_hi:[0,1,0]"
        RC = (L_CS3, L_CS3 + 704)
        def head():
            p("v_lshlrev_b32", ad, 4, self.vG); p("v_add_u32", ad, L_MISC, ad)
            p("ds_read_b128", cg[0], ad, mods="offset:%d" % (L_CS3 - L_MISC), lds=RC); p("ds_read_b128", cu[0], ad, mods="offset:%d" % (L_CS3 - L_MISC + 64), lds=RC)
            for t in range(2):
                self.stats_finish(st4[t], st[t], tmp)
                p("v_mul_f32", st[t][3], tmp, st[t][1])
                p("v_mul_f32", st[t][2], self.sL2E[1], st[t][1])
            p("s_lshl_b32", self.sT, self.sW, 1); p("s_mul_i32", self.sT, self.sT, HSTEPS * 1024); p("s_add_u32", sH[0], self.sT, self.sLb); p("s_add_u32", sH[0], sH[0], L_H)
            p("s_add_u32", sH[1], sH[0], HSTEPS * 1024)
            p("s_mul_i32", self.sT, self.sI, 22); p("s_lshl_b32", self.sT1, self.sJJ, 1); p("s_add_u32", self.sT, self.sT, self.sT1); p("s_lshl_b32", self.sT, self.sT, 10)
            for t in range(2): p("s_add_u32", sHf[t], sH[t], self.sT)
        def glu2(i, cgi, cui, dsts):
            ss = []
            for t in range(2):
                q = Prog(); Gt, U = acc[t][2 * i], acc[t][2 * i + 1]; dst2 = dsts[t]
                for a in range(2): q("v_pk_fma_f32", Gt[2 * a:2 * a + 2], cgi[2 * a:2 * a + 2], st[t][0:2], Gt[2 * a:2 * a + 2], mods=NEGM)
                for a in range(2): q("v_pk_mul_f32", Gt[2 * a:2 * a + 2], Gt[2 * a:2 * a + 2], st[t][2:4], mods="op_sel_hi:[1,0]")
                for a in range(4): q("v_exp_f32", Gt[a], Gt[a])
                for a in range(2): q("v_pk_fma_f32", U[2 * a:2 * a + 2], cui[2 * a:2 * a + 2], st[t][0:2], U[2 * a:2 * a + 2], mods=NEGM)
                for a in range(2): q("v_pk_fma_f32", Gt[2 * a:2 * a + 2], Gt[2 * a:2 * a + 2], st[t][2:4], st[t][2:4], mods="op_sel:[0,1,1] op_sel_hi:[1,1,1]")
                for a in range(4): q("v_rcp_f32", Gt[a], Gt[a])
                for a in range(2): q("v_pk_mul_f32", U[2 * a:2 * a + 2], U[2 * a:2 * a + 2], Gt[2 * a:2 * a + 2])
                for a in range(2): q("v_cvt_pk_bf16_f32", dst2[a], U[2 * a], U[2 * a + 1])
                ss.append(q.take())
            for a, b in zip(*ss): p.ins.append(a); p.ins.append(b)
        def part(i):
            n = (i + 1) % 2; nx = i + 1
            if nx < 5:
                p("ds_read_b128", cg[n], ad, mods="offset:%d" % (L_CS3 - L_MISC + 128 * nx), lds=RC); p("ds_read_b128", cu[n], ad, mods="offset:%d" % (L_CS3 - L_MISC + 128 * nx + 64), lds=RC)
            else:
                p("ds_read_b128", cg[n], ad, mods="offset:%d" % (L_CS3 - L_MISC + 640), lds=RC)
            dsts = [hp[t][2 * (i & 1):2 * (i & 1) + 2] if i < 4 else hp[t][0:2] for t in range(2)]
            glu2(i, cg[i % 2], cu[i % 2], dsts)
        def stores(i):
            if i in (1, 3):
                def stf(m):
                    for t in range(2): p("buffer_store_dwordx4", hp[t], self.vL16, self.WS, sHf[t], mods=("offen offset:%d " % (1024 * (i >> 1)) + m).strip(), token="hst")
                self.dual_store(stf)
            elif i == 4:
                def stf(m):
                    for t in range(2): p("buffer_store_dwordx2", hp[t][0:2], self.vH4, self.WS, sH[t], mods=("offen " + m).strip(), token="hst")
                self.dual_store(stf)
        items = []
        for n in range(o.b4_main_pairs, o.b4_tail_pairs): items += self.g_b4(n, "B4a")
        for i in range(16, 16 + o.b4_tail_left):
            for kh in range(2): items.append(lambda i=i, kh=kh: self.r_b4left(kh, i, "B4a"))
        groups = [self.cap(f) for f in items]
        body = self.cap(lambda: (head(), part(0), part(1), stores(1), part(2), part(3)))
        self.weave_groups(body, groups, start=2, every=max(3, int(len(body) * 0.92) // len(groups)))
        stores(3); part(4); stores(4)
        cm = cg[1]
        for t in range(2):
            M = acc[t][10]
            for a in range(2): p("v_pk_fma_f32", M[2 * a:2 * a + 2], cm[2 * a:2 * a + 2], st[t][0:2], M[2 * a:2 * a + 2], mods=NEGM)
            for a in range(2): p("v_pk_mul_f32", M[2 * a:2 * a + 2], M[2 * a:2 * a + 2], st[t][0:2], mods="op_sel:[0,1] op_sel_hi:[1,1]")
        X, Y = acc[0][10], acc[1][10]
        for a in range(4): p("v_permlane32_swap_b32", X[a], Y[a])
        for a in range(4): p("v_mul_f32", X[a], self.sL2E[1], X[a])
        for a in range(4): p("v_exp_f32", X[a], X[a])
        for a in range(2): p("v_pk_add_f32", X[2 * a:2 * a + 2], X[2 * a:2 * a + 2], 1.0, mods="op_sel_hi:[1,0]")
        for a in range(4): p("v_rcp_f32", X[a], X[a])
        for a in range(2): p("v_pk_mul_f32", Y[2 * a:2 * a + 2], Y[2 * a:2 * a + 2], X[2 * a:2 * a + 2])
        for a in range(2): p("v_cvt_pk_bf16_f32", hm[a], Y[2 * a], Y[2 * a + 1])
        self.dual_store(lambda m: p("buffer_store_dwordx2", hm, self.vHm, self.WS, sH[0], mods=("offen " + m).strip(), token="hst"))
        for t in range(2): self.vp.free(acc[t])
        self.vp.free(tmp, st, ad, hp, cg, cu, hm, st4[0], st4[1]); self.sp.free(sH, sHf)
        self.stamp("p3done")

    def p4(self):
        p, o = self.p, self.o
        sA = self.sa(1, "p4a")
        p("s_lshl_b32", self.sT, self.sI, 2); p("s_mul_i32", self.sT, self.sT, HSTEPS * 1024); p("s_add_u32", sA, self.sT, self.sLb)
        p("s_mul_i32", self.sT, self.sKH, 22 * 1024); p("s_add_u32", sA, sA, self.sT); p("s_add_u32", sA, sA, L_H)
        hooks = {(4, 0, "pre"): [self.barrier], (min(14, 2 * o.b4_tail_pairs - 2), 0, "pre"): [lambda: (p.need("B4w"), self.barrier())], (17, 0, "pre"): [lambda: (p.need("B4b"), self.barrier())]}
        k = 0
        for i in range(19, 22):
            for kh in range(2):
                hooks.setdefault((4 + k, (1, 3)[k % 2]), []).append(lambda i=i, kh=kh: self.r_b4left(kh, i, "B4b")); k += 1
        self.sW1w = self.sa(1, "w1w"); p("s_add_u32", self.sW1w, self.sW1, self.sW3k)
        early = []
        for n in (0, 1): early += self.g_lin3(self.sW1w, n * 12 * KB, L_B1 + n * 12 * KB, "B1")
        early += self.g_lin3(self.sW1w, 5 * 12 * KB, L_B1 + 5 * 12 * KB, "B1")
        pos = [(17, 1), (17, 3), (18, 1), (18, 3), (19, 1), (19, 3), (20, 1), (20, 3), (21, 1)]
        if o.b1_early:
            for f, (s, nt) in zip(early, pos): hooks.setdefault((s, nt), []).append(lambda f=f: self.if_scalar("eq", self.sLayer, 0, f))
        acc = self.gemm64(22, sA, HSTEPS * 1024, b4_slot, o.d4, hooks)
        self.sp.free(sA)
        self.stamp("p4main")
        self.barrier()
        groups = []
        xp = self.reduce64(acc, L_SCR4, groups)
        self.sp.free(self.sW1w)
        return xp

    def store_out(self, xp):
        p = self.p
        for b in range(2):
            p("v_permlane16_swap_b32", xp[4 * b], xp[4 * b + 2]); p("v_permlane16_swap_b32", xp[4 * b + 1], xp[4 * b + 3])
        ad = self.va(2, "ad", 1)
        p("s_lshl_b32", self.sT, self.sC, 7); p("s_lshl_b32", self.sT1, self.sOwn, 4); p("s_add_u32", self.sT, self.sT, self.sT1); p("s_sub_u32", self.sT, self.sT, 16)
        p("v_add_u32", ad[0], self.sT, self.vM); p("v_lshlrev_b32", ad[0], 10, ad[0])
        p("v_and_b32", ad[1], 1, self.vG); p("v_lshlrev_b32", ad[1], 5, ad[1]); p("v_add_u32", ad[0], ad[0], ad[1])
        p("v_lshrrev_b32", ad[1], 1, self.vG); p("v_lshlrev_b32", ad[1], 4, ad[1]); p("v_add_u32", ad[0], ad[0], ad[1])
        p("s_lshl_b32", self.sT, self.sJJ, 7)
        for b in range(2):
            p("buffer_store_dwordx4", xp[4 * b:4 * b + 4], ad[0], self.OUT, self.sT, mods="offen" + (" offset:%d" % (64 * b) if b else ""))
        self.vp.free(ad)
    def halo_export(self, xp, sv):
        p = self.p
        def f():
            p("s_add_u32", self.sT, self.sCb, CBSZ + C_X0 + 9 * 16384); p("s_lshl_b32", self.sT1, self.sJJ, 11); p("s_add_u32", self.sT3, self.sT, self.sT1)
            p("buffer_store_dwordx4", xp[0:4], self.vL16, self.WS, self.sT3, mods="offen " + WT, token="xst")
            p("buffer_store_dwordx4", xp[4:8], self.vL16, self.WS, self.sT3, mods="offen offset:1024 " + WT, token="xst")
            p("s_add_u32", self.sT, self.sCb, CBSZ + C_ST0 + 9 * 1024); p("s_lshl_b32", self.sT1, self.sJJ, 7); p("s_add_u32", self.sT3, self.sT, self.sT1)
            p("buffer_store_dword", sv, self.vStW, self.WS, self.sT3, mods="offen " + WT, token="xst")
        self.if_scalar("eq", self.sOwn, 8, lambda: self.if_scalar("lt", self.sC, 15, f))
    def dump_stamps(self):
        if not self.o.stamps: return
        p = self.p
        def f():
            t = self.va(1, "t")
            p("s_lshl_b32", self.sT, S(2), 8); p("s_add_u32", self.sT, self.sT, WS_STAMP)
            p("v_lshlrev_b32", t, 2, self.vLane)
            p("buffer_store_dword", self.vStamp, t, self.WS, self.sT, mods="offen")
            self.vp.free(t)
        self.if_wave(0, f)
    def build(self):
        p, o = self.p, self.o
        self.prologue()
        self.startup()
        self.entry()
        if "samew" in o.exp:
            p("s_mov_b32", self.sW3, WS_W3); p("s_add_u32", self.sW3w, self.sW3, self.sU3); p("s_mov_b32", self.sW1, WS_W1)
        p.label("L_layer")
        self.layer_bases()
        self.p1()
        self.handoff(2, ("ost", "B2a"), between=lambda: self.if_scalar("eq", self.sLayer, 0, self.csum3_load))
        self.stamp("h12")
        lead = 16 - o.jit3
        o.p2tail_b3 = list(range(o.att_b3, min(lead, o.att_b3 + o.p2t)))
        rest = list(range(o.att_b3 + len(o.p2tail_b3), lead))
        xp = self.p2()
        def lin_steps(steps, tok):
            out = []
            for s3 in steps: out += self.s_lin(self.sW3, s3 * 11264, b3_slot(s3), 11, tok)
            return out
        def w23():
            if rest: self.split3(lin_steps(rest, "B3b"))
            self.unpack_resid(xp)
            self.if_scalar("eq", self.sLayer, 0, self.csum3_finish)
        self.handoff(3, ("xst",), between=w23, need=("B3a", "B2b"), before_poll=lambda: self.unpack_resid(xp))
        self.vp.free(xp, self.c3)
        self.stamp("h23")
        self.p3()
        it34 = []
        for i in range(2 * o.b4_tail_pairs, 16):
            for kh in range(2): it34 += self.s_rows(self.WD, hspace_F(22 * kh + i, 0), b4_slot(i) + kh * 4096, "B4w")
        for i in range(16 + o.b4_tail_left, 19):
            for kh in range(2): it34.append(lambda i=i, kh=kh: self.s_b4left(kh, i, "B4w"))
        self.handoff(4, ("hst", "B4a"), pre=it34[:o.pre34], between=(lambda: self.split3(it34[o.pre34:])) if it34[o.pre34:] else None)
        self.stamp("h34")
        xp = self.p4()
        lout = p.newlabel("Lout")
        p("s_cmp_eq_u32", self.sLayer, 1); p("s_cbranch_scc1", lout)
        sv = self.store_x(xp, "xst")
        self.halo_export(xp, sv)
        self.vp.free(sv)
        self.stamp("p4done")
        def hpub():
            sN = self.sa(1, "cn"); sA = self.sa(1, "a")
            p("s_add_u32", sN, self.sC, 1); self.flag_addr(sA, WS_FLAG_H, sN, self.sJJ); self.publish(5, sA, force_wt=True)
            self.sp.free(sN, sA)
        def w0_41():
            self.if_scalar("eq", self.sI, 1, lambda: self.if_scalar("lt", self.sC, 15, hpub))
            self.unpack_resid(xp)
        def w41():
            self.split3(self.s_lin(self.sW1, 24 * KB, L_B1 + 24 * KB, 36, "B1t"))
            self.unpack_resid(xp)
        self.handoff(5, ("xst",), between=w41, need=("B1",), before_poll=w0_41)
        self.stamp("h41")
        p("s_mov_b32", self.sLayer, 1)
        p("s_branch", "L_layer")
        p.label(lout)
        self.store_out(xp)
        self.vp.free(xp)
        p.label("L_fin")
        self.stamp("end")
        self.dump_stamps()
        p.label("L_exit")
        p("s_endpgm")
        for blk in self.tail_blocks: p.ins.extend(blk)

def emit(opt):
    g = G(opt); g.build()
    ins = finalize(g.p.ins)
    errs = check_loop(ins, "L_layer")
    if errs:
        print("LOOP CHECK:", len(errs)); print("\n".join(errs[:20]))
    k = [n for n, i in enumerate(ins) if i.op == "label" and i.label == "L_layer"][0]
    e = [n for n, i in enumerate(ins) if i.kind == "branch" and i.target == "L_layer"][0]
    errs = check_lds(ins[:e] + ins[k:])
    if errs:
        print("LDS CHECK:", len(errs)); print("\n".join(errs[:30]))
    hdr = open(opt.header).read() if opt.header else ""
    txt = hdr
    txt += '.amdgcn_target "amdgcn-amd-amdhsa--gfx950"\n.text\n.globl %s\n.p2align 8\n.type %s,@function\n%s:\n' % (KNAME, KNAME, KNAME)
    txt += to_text(ins)
    txt += '''.section .rodata,"a"
.p2align 6
.amdhsa_kernel %s
  .amdhsa_next_free_vgpr 512
  .amdhsa_next_free_sgpr 102
  .amdhsa_accum_offset 256
  .amdhsa_group_segment_fixed_size 0
  .amdhsa_kernarg_size 80
  .amdhsa_user_sgpr_count 2
  .amdhsa_user_sgpr_kernarg_segment_ptr 1
  .amdhsa_system_sgpr_workgroup_id_x 1
  .amdhsa_float_denorm_mode_32 3
.end_amdhsa_kernel
''' % KNAME
    return txt, g, ins

def args():
    ap = argparse.ArgumentParser()
    ap.add_argument("-o", default="out.s")
    ap.add_argument("--stamps", action="store_true"); ap.add_argument("--minstamps", action="store_true"); ap.add_argument("--slow", action="store_true"); ap.add_argument("--spread", action="store_true")
    ap.add_argument("--header", default="header.txt")
    ap.add_argument("--d1", type=int, default=4); ap.add_argument("--d2", type=int, default=5); ap.add_argument("--d3", type=int, default=3); ap.add_argument("--d4", type=int, default=6)
    ap.add_argument("--ramp3", type=int, default=1)
    ap.add_argument("--h12_b3", type=int, default=3)
    ap.add_argument("--att_b3", type=int, default=2); ap.add_argument("--att_frac", type=float, default=0.55); ap.add_argument("--p2t", type=int, default=3)
    ap.add_argument("--jit3", type=int, default=10); ap.add_argument("--bars3", type=lambda x: [int(v) for v in x.split(",")], default=[4, 7, 10, 13])
    ap.add_argument("--b2b_att", type=int, default=1); ap.add_argument("--pre12", type=int, default=6); ap.add_argument("--pre34", type=int, default=0)
    ap.add_argument("--b1_early", type=int, default=1); ap.add_argument("--b4_tail_pairs", type=int, default=8)
    ap.add_argument("--t2_items", type=int, default=4); ap.add_argument("--nb_mini", type=int, default=6)
    ap.add_argument("--codepf", type=int, default=36000); ap.add_argument("--b4_main_pairs", type=int, default=4); ap.add_argument("--b4_tail_left", type=int, default=3)
    ap.add_argument("--touch3_at", type=int, default=9)
    ap.add_argument("--touch", type=int, default=1); ap.add_argument("--exp", default="")
    ap.add_argument("--fine", type=int, default=0); ap.add_argument("--finesteps", type=lambda x: [int(v) for v in x.split(",")], default=[0, 4, 8, 11, 14])
    return ap
if __name__ == "__main__":
    opt = args().parse_args()
    txt, g, ins = emit(opt)
    open(opt.o, "w").write(txt)
    nb = sum(1 for i in ins if i.op not in ("label", "raw", "need"))
    print("instructions:", nb, "vgpr high", g.vp.high, "agpr high", g.ap.high, "sgpr high", g.sp.high)
    if opt.stamps: open(opt.o + ".stamps", "w").write("\n".join(g.stamp_names))
```
